```python
import torch

def _softmax(x, axis=-1):
    return torch.softmax(x, dim=axis)
def _gelu(x):
    return torch.nn.functional.gelu(x, approximate="tanh")
def _silu(x):
    return torch.nn.functional.silu(x)
def _sigmoid(x):
    return torch.sigmoid(x)
def _layernorm(x, axis=-1, eps=1e-5):
    m = x.mean(dim=axis, keepdim=True)
    v = x.var(dim=axis, keepdim=True, unbiased=False)
    return (x - m) / torch.sqrt(v + eps)
def _scatter_add(tgt, idx, src, axis=0):
    return tgt.clone().index_add_(axis, idx, src)
def _segment_sum(src, seg, n):
    out = torch.zeros((n,) + src.shape[1:], dtype=src.dtype)
    return out.index_add_(0, seg, src)
def _pad(x, pw):
    flat = tuple(v for pair in reversed(pw) for v in pair)
    return torch.nn.functional.pad(x, flat)

kernel_name = 'gated_mix__compressed_kv_cla__moe_arch_mod__prompt'

def setup_inputs():

    _w = (lambda a: (lambda t: t.to(torch.bfloat16) if t.is_floating_point() else t)(torch.as_tensor(a)))
    def _A_setup():
        B, H, Sq, Sk, D, M = 1, 32, 2048, 2048, 128, 512
        Dc = 4 * D
        return {
            "x": _w((lambda *s: torch.randn(*s, dtype=torch.bfloat16) * 0.05)(B, Sq, M)),
            "c_kv": _w((lambda *s: torch.randn(*s, dtype=torch.bfloat16) * 0.8)(B, Sk, Dc)),
            "w_q": _w((lambda *s: torch.randn(*s, dtype=torch.bfloat16) * 6.4)(M, H, D) * (M ** -0.5)),
            "w_uk": _w((lambda *s: torch.randn(*s, dtype=torch.bfloat16) * 6.4)(Dc, H, D) * (Dc ** -0.5)),
            "w_uv": _w((lambda *s: torch.randn(*s, dtype=torch.bfloat16) * 0.8)(Dc, H, D) * (Dc ** -0.5)),
            "w_o": _w((lambda *s: torch.randn(*s, dtype=torch.bfloat16) * 0.8)(H, D, M) * ((H * D) ** -0.5)),
        }
    _A_in = _A_setup()

    def _B_setup():
        B, S, D, F, C = 1, 2048, 512, 1792, 2
        return {
            "x": _w((lambda *s: torch.randn(*s, dtype=torch.bfloat16) * 0.05)(B, S, D)),
            "w_r": _w((lambda *s: torch.randn(*s, dtype=torch.bfloat16) * 3.2)(D)),
            "w_gate": _w((lambda *s: torch.randn(*s, dtype=torch.bfloat16) * 0.2)(D, F)),
            "w_up": _w((lambda *s: torch.randn(*s, dtype=torch.bfloat16) * 0.2)(D, F)),
            "w_down": _w((lambda *s: torch.randn(*s, dtype=torch.bfloat16) * 0.2)(F, D)),
        }
    _B_in = _B_setup()

    return {
        "A_x": _A_in["x"],
        "A_c_kv": _A_in["c_kv"],
        "A_w_q": _A_in["w_q"],
        "A_w_uk": _A_in["w_uk"],
        "A_w_uv": _A_in["w_uv"],
        "A_w_o": _A_in["w_o"],
        "B_x": _B_in["x"],
        "B_w_r": _B_in["w_r"],
        "B_w_gate": _B_in["w_gate"],
        "B_w_up": _B_in["w_up"],
        "B_w_down": _B_in["w_down"],
        "gate_w": _w((lambda *s: torch.randn(*s, dtype=torch.bfloat16) * 0.05)(512) * 16.0),
    }

def reference(A_x, A_c_kv, A_w_q, A_w_uk, A_w_uv, A_w_o, B_x, B_w_r, B_w_gate, B_w_up, B_w_down, gate_w):
    def _A_ref(x, c_kv, w_q, w_uk, w_uv, w_o):
        B, Sq, M = x.shape[0], x.shape[1], x.shape[2]
        Sk = c_kv.shape[1]
        H, D = w_q.shape[1], w_q.shape[2]
        q = torch.einsum("bqm,mhd->bhqd", x, w_q)
        k = torch.einsum("bkc,chd->bhkd", c_kv, w_uk)
        v = torch.einsum("bkc,chd->bhkd", c_kv, w_uv)
        scores = torch.einsum("bhqd,bhkd->bhqk", q, k) * (D ** -0.5)
        off = Sk - Sq
        qi = torch.arange(Sq)[:, None]
        kj = torch.arange(Sk)[None, :]
        cmask = kj <= (qi + off)
        scores = torch.where(cmask[None, None], scores, -1e9)
        p = _softmax(scores, axis=-1)
        ctx = torch.einsum("bhqk,bhkd->bhqd", p, v)
        return torch.einsum("bhqd,hdm->bqm", ctx, w_o)

    def _B_ref(x, w_r, w_gate, w_up, w_down):
        B, S, D = x.shape
        C = 2
        r = x @ w_r
        idx = torch.argsort(-r, axis=-1)[:, :C]
        idx_e = (lambda x, n, axis: torch.repeat_interleave(x, n, dim=axis))(idx.reshape(B, C, 1), D, axis=2)
        x_sel = (lambda x, i, axis: torch.take_along_dim(x, i, dim=axis))(x, idx_e, axis=1)
        g = _silu(x_sel @ w_gate)
        u = x_sel @ w_up
        y = (g * u) @ w_down
        r_sel = _sigmoid((lambda x, i, axis: torch.take_along_dim(x, i, dim=axis))(r, idx, axis=1))
        y = y * r_sel.reshape(B, C, 1)
        b_off = (torch.arange(B) * S).reshape(B, 1)
        flat_idx = (idx + b_off).reshape(B * C)
        zero = (x * 0.0).reshape(B * S, D)
        upd = _scatter_add(zero, flat_idx, y.reshape(B * C, D), axis=0)
        return x + upd.reshape(B, S, D)

    x = A_x
    g = _sigmoid((x * gate_w).sum(-1, keepdims=True))
    a = _A_ref(x, A_c_kv, A_w_q, A_w_uk, A_w_uv, A_w_o)
    b = _B_ref(x, B_w_r, B_w_gate, B_w_up, B_w_down)
    return g * a + (1 - g) * b
```

```python
class Asm:
    def __init__(self):
        self.L = []
        self.vm = []
        self.lg = []
    def __call__(self, s):
        for ln in s.split("\n"):
            self.L.append(ln)
    def text(self): return "\n".join(self.L) + "\n"
    def vmem(self, s, tag=None):
        self(s); self.vm.append(tag)
        assert len(self.vm) <= 63, "vmcnt overflow"
    def vm_wait_n(self, tags):
        last = -1
        for i, t in enumerate(self.vm):
            if t in tags: last = i
        if last < 0: return None
        return len(self.vm) - 1 - last
    def wait_vm(self, tags, emit=True):
        if not isinstance(tags, (set, list, tuple)): tags = [tags]
        n = self.vm_wait_n(set(tags))
        if n is None: return None
        self.vm = self.vm[len(self.vm) - n:] if n else []
        s = f"s_waitcnt vmcnt({n})"
        if emit: self(s)
        return s
    def lds(self, s, tag=None):
        self(s); self.lg.append(tag)
        assert len(self.lg) <= 15, "lgkmcnt overflow"
    def wait_lg(self, tags, emit=True):
        if not isinstance(tags, (set, list, tuple)): tags = [tags]
        tags = set(tags)
        last = -1
        for i, t in enumerate(self.lg):
            if t in tags: last = i
        if last < 0: return None
        n = len(self.lg) - 1 - last
        self.lg = self.lg[len(self.lg) - n:] if n else []
        s = f"s_waitcnt lgkmcnt({n})"
        if emit: self(s)
        return s

def kdesc(name, vgpr, accum, sgpr=102):
    return f""".section .rodata,"a"
.p2align 6
.amdhsa_kernel {name}
  .amdhsa_next_free_vgpr {vgpr}
  .amdhsa_next_free_sgpr {sgpr}
  .amdhsa_accum_offset {accum}
  .amdhsa_group_segment_fixed_size 0
  .amdhsa_kernarg_size 120
  .amdhsa_user_sgpr_count 2
  .amdhsa_user_sgpr_kernarg_segment_ptr 1
  .amdhsa_system_sgpr_workgroup_id_x 1
  .amdhsa_float_denorm_mode_32 3
.end_amdhsa_kernel
.text
"""

def khead(name):
    return f".p2align 8\n.globl {name}\n.type {name},@function\n{name}:"

def srd(A, d, ptr, nbytes):
    A(f"s_mov_b32 s{d}, s{ptr}")
    A(f"s_and_b32 s{d+1}, s{ptr+1}, 0xffff")
    A(f"s_mov_b32 s{d+2}, {nbytes}")
    A(f"s_mov_b32 s{d+3}, 0x20000")

def vr(b, n=4): return f"v[{b}:{b+n-1}]"
def ar(b, n=4): return f"a[{b}:{b+n-1}]"

KA = dict(x=0, ckv=8, wq=16, wuk=24, wuv=32, wo=40, bx=48, wr=56, wgate=64, wup=72, wdown=80, gatew=88, out=96, dbg=104, ws=112)
WS_K = 0
WS_V = 16 << 20
WS_CTX = 32 << 20
WS_R = 48 << 20
WS_G = WS_R + 8192
WS_Y = WS_R + 16384
WS_BYTES = 268435456

WS_STAMP = 49 << 20
SB = 68
def stamp(A, n, wait=True):
    A(f"s_memrealtime s[{SB+4*n}:{SB+4*n+1}]")
    A(f"s_memtime s[{SB+4*n+2}:{SB+4*n+3}]")
    if wait:
        A("s_waitcnt lgkmcnt(0)")
        A.lg = []
def stamp_begin(A):
    for i in range(SB+4, SB+32): A(f"s_mov_b32 s{i}, 0")
    stamp(A, 0, wait=False)
def stamp_end(A, kidx, sWS, swave, drain=True):
    if drain: A("s_waitcnt vmcnt(0)")
    stamp(A, 7)
    A(f"s_lshl_b32 s100, s2, 2\ns_add_u32 s100, s100, s{swave}\ns_lshl_b32 s100, s100, 6")
    A(f"s_add_u32 s100, s100, {WS_STAMP + kidx*131072}")
    for n in range(8):
        A(f"v_mov_b32 v{n}, s{SB+4*n}\nv_mov_b32 v{8+n}, s{SB+4*n+2}")
    A("v_mov_b32 v16, 0")
    A("s_mov_b64 exec, 1")
    for q in range(4):
        A(f"buffer_store_dwordx4 v[{4*q}:{4*q+3}], v16, s[{sWS}:{sWS+3}], s100 offen offset:{16*q}")
```

```python
import re, sys
TRANS = ("v_exp_f32", "v_log_f32", "v_rcp_f32", "v_rsq_f32", "v_sqrt_f32")
def regs(tok):
    tok = tok.strip()
    neg = tok.lstrip("-|").rstrip("|")
    m = re.fullmatch(r"(abs\()?([vas])(\d+)\)?", neg)
    if m: return {(m.group(2), int(m.group(3)))}
    m = re.fullmatch(r"([vas])\[(\d+):(\d+)\]", neg)
    if m: return {(m.group(1), i) for i in range(int(m.group(2)), int(m.group(3)) + 1)}
    if neg == "vcc": return {("s", 106), ("s", 107)}
    if neg == "vcc_lo": return {("s", 106)}
    if neg == "vcc_hi": return {("s", 107)}
    if neg == "m0": return {("s", 124)}
    if neg == "exec": return {("s", 126), ("s", 127)}
    return set()
class I:
    pass
def parse(line):
    s = line.split(";")[0].strip()
    if not s or s.startswith(".") or s.endswith(":"): return None
    p = s.split(None, 1)
    op = p[0]; rest = p[1] if len(p) > 1 else ""
    ops = [o.strip() for o in rest.split(",")] if rest else []
    mods = ""
    if ops:
        q = ops[-1].split()
        ops[-1] = q[0] if q else ""
        mods = " ".join(q[1:])
    i = I(); i.op = op; i.text = s; i.w = set(); i.r = set(); i.c = set(); i.ab = set(); i.kind = "other"; i.states = 1
    i.dpp = "row_" in mods or "quad_perm" in mods or "wave_" in mods or "_dpp" in op
    i.data = set()
    if op == "s_nop":
        i.states = int(ops[0], 0) + 1; i.kind = "salu"
    elif op.startswith("v_mfma"):
        i.kind = "mfma"; i.passes = 8 if "32x32" in op else 4
        i.w = regs(ops[0]); i.ab = regs(ops[1]) | regs(ops[2]); i.c = regs(ops[3]); i.r = i.ab | i.c
    elif op.startswith("v_cmp"):
        i.kind = "valu"; i.w = regs(ops[0]);
        for o in ops[1:]: i.r |= regs(o)
    elif op.startswith("v_permlane") and "swap" in op:
        i.kind = "valu"; i.w = regs(ops[0]) | regs(ops[1]); i.r = set(i.w)
    elif op.startswith("v_"):
        i.kind = "valu"; i.w = regs(ops[0])
        k = 1
        if "_co_" in op: i.w |= regs(ops[1]); k = 2
        for o in ops[k:]: i.r |= regs(o)
        if op.startswith("v_cndmask") and len(ops) == 3: i.r |= regs("vcc")
        if op.startswith(("v_fmac", "v_mac", "v_dot2c", "v_writelane")): i.r |= i.w
        if i.dpp: i.r |= i.w
    elif op.startswith(("buffer_load", "global_load")):
        i.kind = "vmem"
        lds = " lds" in (" " + mods) or "_lds_" in op
        i.lds = lds
        if lds:
            for o in ops: i.r |= regs(o)
            i.r |= regs("m0")
        else:
            i.w = regs(ops[0])
            for o in ops[1:]: i.r |= regs(o)
    elif op.startswith(("buffer_store", "buffer_atomic")):
        i.kind = "vmem"
        for o in ops: i.r |= regs(o)
        if "x4" in op or "x3" in op: i.data = regs(ops[0])
    elif op.startswith(("global_store", "global_atomic")):
        i.kind = "vmem"
        for o in ops: i.r |= regs(o)
        if "x4" in op or "x3" in op: i.data = regs(ops[1])
    elif op.startswith("ds_read") or op.startswith("ds_bpermute") or op.startswith("ds_swizzle"):
        i.kind = "ds"; i.w = regs(ops[0])
        for o in ops[1:]: i.r |= regs(o)
    elif op.startswith("ds_"):
        i.kind = "ds"
        for o in ops: i.r |= regs(o)
    elif op.startswith("s_"):
        i.kind = "salu"
        if op.startswith(("s_cmp", "s_cbranch", "s_branch", "s_waitcnt", "s_barrier", "s_endpgm", "s_sleep", "s_setprio", "s_bitcmp")):
            for o in ops: i.r |= regs(o)
        else:
            if ops: i.w = regs(ops[0])
            for o in ops[1:]: i.r |= regs(o)
    return i
def need(p, c):
    n = 0
    if p.kind == "valu":
        vw = {r for r in p.w if r[0] != "s"}; sw = {r for r in p.w if r[0] == "s"}
        if c.kind == "mfma" and vw & c.r: n = max(n, 2)
        if c.kind == "valu":
            if p.op.startswith(TRANS) and not c.op.startswith(TRANS) and vw & c.r: n = max(n, 1)
            if p.op.startswith(TRANS) and vw & c.r: n = max(n, 1)
            if sw & c.r: n = max(n, 4 if c.op.startswith(("v_readlane", "v_writelane")) else 2)
            if c.op.startswith(("v_readlane", "v_readfirstlane")) and vw & c.r: n = max(n, 1)
            if c.op.startswith("v_permlane") and vw & c.r: n = max(n, 2)
            if c.dpp and vw & c.r: n = max(n, 2)
        if c.kind == "vmem" and sw & c.r: n = max(n, 5)
        if ("s", 126) in p.w and c.kind in ("mfma", "valu"): n = max(n, 5)
    if p.kind == "mfma":
        big = p.passes == 8
        if c.kind == "mfma":
            if p.w & c.c and not (p.w == c.c and p.passes == c.passes): n = max(n, 10 if big else 6)
            if p.w & c.ab: n = max(n, 12 if big else 8)
            if p.w & c.w and not (p.w == c.c): n = max(n, 12 if big else 8) if p.w != c.w else n
        elif c.kind in ("valu", "vmem", "ds"):
            if p.w & (c.r | c.w): n = max(n, 12 if big else 8)
            if c.kind == "valu" and p.c & c.w: n = max(n, 7 if big else 3)
            if c.kind in ("ds", "vmem") and p.c & c.w: n = max(n, 7 if big else 3)
    if p.kind == "salu" and ("s", 124) in p.w and c.kind == "vmem" and getattr(c, "lds", False): n = max(n, 1)
    if p.kind == "vmem" and p.data and c.kind in ("valu", "mfma", "ds", "vmem") and p.data & c.w: n = max(n, 2)
    return n
def check_seq(seq, report, tag=""):
    for j, c in enumerate(seq):
        d = 0
        for k in range(j - 1, max(-1, j - 14), -1):
            p = seq[k]
            n = need(p, c)
            if n > d: report.add((tag, p.ln, c.ln, n, d, p.text, c.text))
            d += p.states
            if d >= 12: break
def check(text):
    lines = text.split("\n")
    ins = []; labels = {}
    for ln, l in enumerate(lines):
        s = l.split(";")[0].strip()
        if s.endswith(":") and not s.startswith("."): labels[s[:-1]] = len(ins)
        i = parse(l)
        if i: i.ln = ln + 1; ins.append(i)
    rep = set()
    seg = []
    for i in ins:
        seg.append(i)
        if i.op in ("s_endpgm", "s_branch", "s_setpc_b64"):
            check_seq(seg, rep); seg = []
    check_seq(seg, rep)
    for j, i in enumerate(ins):
        if i.op.startswith(("s_cbranch", "s_branch")):
            t = i.text.split()[1]
            if t in labels:
                k = labels[t]
                check_seq(ins[max(0, j - 14):j + 1] + ins[k:k + 14], rep, "br")
    return sorted(rep, key=lambda x: x[2])
if __name__ == "__main__":
    r = check(open(sys.argv[1]).read())
    for x in r[:40]: print(x)
    print(len(r), "hazards")
```

```python
from asmlib import *
from collections import defaultdict

MF = "v_mfma_f32_16x16x32_bf16"

class Sched:
    def __init__(s, A):
        s.A = A; s.mf = []; s.fill = defaultdict(list)
    def mfma(s, text, need=()): s.mf.append((text, need))
    def at(s, gap, kind, text=None, tag=None): s.fill[gap].append((kind, text, tag))
    def emit_op(s, op):
        A = s.A; kind, text, tag = op
        if kind == "lds": A.lds(text, tag)
        elif kind == "vm": A.vmem(text, tag)
        elif kind == "wvm": A.wait_vm(tag)
        elif kind == "wlg": A.wait_lg(tag)
        elif kind == "fn": text()
        else: A(text)
    def emit(s):
        A = s.A
        for g in sorted(k for k in s.fill if k < 0):
            for op in s.fill[g]: s.emit_op(op)
        for m, (text, need) in enumerate(s.mf):
            if need: A.wait_lg(need)
            A(text)
            for op in s.fill.get(m, []): s.emit_op(op)
        for g in sorted(k for k in s.fill if k >= len(s.mf)):
            for op in s.fill[g]: s.emit_op(op)

def wave_reduce_add(A, v, t):
    for dpp in ("quad_perm:[1,0,3,2]", "quad_perm:[2,3,0,1]", "row_half_mirror", "row_mirror"):
        A("s_nop 1")
        A(f"v_add_f32_dpp v{v}, v{v}, v{v} {dpp} row_mask:0xf bank_mask:0xf")
    for sw in ("v_permlane16_swap_b32", "v_permlane32_swap_b32"):
        A(f"v_mov_b32 v{t}, v{v}")
        A("s_nop 1")
        A(f"{sw} v{v}, v{t}")
        A("s_nop 1")
        A(f"v_add_f32 v{v}, v{v}, v{t}")

def gen_k1(name, L=16, NB=6, st_flags="", extra_start=6*64, store_start=9*64-32, store_step=10, stampk=None):
    A = Asm()
    A(khead(name))
    A(f"s_cmp_ge_u32 s2, 256\ns_cbranch_scc1 L_end_{name}")
    if stampk is not None: stamp_begin(A)
    A("s_load_dwordx4 s[4:7], s[0:1], 0")
    A("s_load_dwordx4 s[8:11], s[0:1], 24")
    A("s_load_dwordx2 s[12:13], s[0:1], 56")
    A("s_load_dwordx2 s[14:15], s[0:1], 88")
    A("s_load_dwordx2 s[16:17], s[0:1], 112")
    A("v_lshrrev_b32 v1, 6, v0")
    A("v_and_b32 v0, 63, v0")
    A("v_readfirstlane_b32 s42, v1")
    A("s_and_b32 s40, s2, 31")
    A("s_lshr_b32 s41, s2, 5")
    vL = 0
    aW = list(range(2, 10))
    aV = list(range(10, 14))
    aC = [14, 15, 26, 27]
    dW = 16; dV = [17, 18]; dC = [19, 20]; vSt = 21
    t0, t1, t2, t3 = 22, 23, 24, 25
    A(f"v_lshrrev_b32 v{t0}, 4, v0")
    A(f"v_bfe_u32 v{t1}, v0, 2, 2")
    A(f"v_and_b32 v{t2}, 3, v0")
    A(f"v_and_b32 v{t3}, 1, v{t0}")
    A(f"v_lshl_or_b32 v{t3}, v{t3}, 2, v{t1}")
    A(f"v_lshlrev_b32 v{aW[0]}, 13, v{t0}")
    A(f"v_lshl_or_b32 v{aW[0]}, v{t1}, 8, v{aW[0]}")
    A(f"v_lshl_or_b32 v{aW[0]}, v{t3}, 5, v{aW[0]}")
    A(f"v_lshl_or_b32 v{aW[0]}, v{t2}, 3, v{aW[0]}")
    for d in range(1, 8): A(f"v_xor_b32 v{aW[d]}, {d<<5}, v{aW[0]}")
    A(f"v_lshrrev_b32 v{aV[0]}, 1, v{t0}")
    A(f"v_lshlrev_b32 v{aV[0]}, 13, v{aV[0]}")
    A(f"v_and_b32 v{t3}, 1, v{t0}")
    A(f"v_lshl_or_b32 v{aV[0]}, v{t3}, 10, v{aV[0]}")
    A(f"v_lshl_or_b32 v{aV[0]}, v{t1}, 7, v{aV[0]}")
    A(f"v_lshl_or_b32 v{aV[0]}, v{t3}, 6, v{aV[0]}")
    A(f"v_lshrrev_b32 v{t3}, 1, v{t1}")
    A(f"v_lshl_or_b32 v{aV[0]}, v{t3}, 5, v{aV[0]}")
    A(f"v_lshl_or_b32 v{aV[0]}, v{t2}, 3, v{aV[0]}")
    for d in range(1, 4): A(f"v_xor_b32 v{aV[d]}, {d<<5}, v{aV[0]}")
    A(f"v_and_b32 v{t1}, 15, v0")
    A(f"v_lshrrev_b32 v{t2}, 1, v{t1}")
    A(f"v_xor_b32 v{t2}, v{t2}, v{t0}")
    A(f"v_lshlrev_b32 v{aC[0]}, 7, v{t1}")
    A(f"v_lshl_or_b32 v{aC[0]}, v{t2}, 4, v{aC[0]}")
    A("s_lshl_b32 s43, s42, 13")
    A(f"v_add_u32 v{aC[0]}, s43, v{aC[0]}")
    A(f"v_add_u32 v{aC[0]}, 0x10000, v{aC[0]}")
    A(f"v_xor_b32 v{aC[1]}, 64, v{aC[0]}")
    A(f"v_add_u32 v{aC[2]}, 0x10000, v{aC[0]}")
    A(f"v_add_u32 v{aC[3]}, 0x10000, v{aC[1]}")
    A("s_and_b32 s44, s42, 1")
    A("s_lshl_b32 s44, s44, 3")
    A(f"v_lshlrev_b32 v{t2}, 1, v{t0}")
    A(f"v_xor_b32 v{t2}, v{t2}, v{t1}")
    A(f"v_xor_b32 v{t2}, s44, v{t2}")
    A(f"v_lshlrev_b32 v{dW}, 13, v{t0}")
    A(f"v_lshl_or_b32 v{dW}, v{t2}, 4, v{dW}")
    A(f"v_lshrrev_b32 v{t1}, 3, v0")
    A(f"v_and_b32 v{t2}, 7, v0")
    A(f"v_and_b32 v{t3}, 1, v{t0}")
    A(f"v_lshlrev_b32 v{t3}, 1, v{t3}")
    A(f"v_xor_b32 v{t3}, v{t3}, v{t2}")
    A(f"v_lshlrev_b32 v{dV[0]}, 13, v{t1}")
    A(f"v_lshl_or_b32 v{dV[0]}, v{t3}, 4, v{dV[0]}")
    A(f"v_xor_b32 v{dV[1]}, 64, v{dV[0]}")
    A(f"v_xor_b32 v{t3}, v{t2}, v{t0}")
    A(f"v_lshlrev_b32 v{dC[0]}, 10, v{t1}")
    A(f"v_lshl_or_b32 v{dC[0]}, v{t3}, 4, v{dC[0]}")
    A(f"v_xor_b32 v{dC[1]}, 64, v{dC[0]}")
    A(f"v_lshlrev_b32 v{vSt}, 4, v0")
    A("s_waitcnt lgkmcnt(0)")
    sX, sC, sK, sV, sWS, sR, sG = 20, 24, 28, 32, 36, 48, 52
    srd(A, sX, 4, 2048*1024); srd(A, sC, 6, 2048*1024)
    srd(A, sK, 8, 4096*1024); srd(A, sV, 10, 4096*1024)
    srd(A, sWS, 16, WS_BYTES); srd(A, sR, 12, 1024); srd(A, sG, 14, 1024)
    A("s_lshl_b32 s45, s41, 2\ns_add_u32 s45, s45, s42")
    A("s_lshl_b32 s46, s45, 16")
    A("s_lshl_b32 s47, s40, 8")
    A("s_lshl_b32 s56, s42, 16\ns_add_u32 s56, s56, s47")
    A("s_lshl_b32 s57, s42, 17\ns_add_u32 s57, s57, s47")
    A("s_lshl_b32 s58, s40, 6\ns_lshl_b32 s59, s45, 1\ns_add_u32 s58, s58, s59\ns_lshl_b32 s58, s58, 13")
    A("s_mov_b32 s64, 0x3e0293ee\ns_mov_b32 s65, 0x3e0293ee")
    A("s_lshl_b32 s60, s2, 2\ns_add_u32 s60, s60, s42\ns_lshl_b32 s61, s60, 11")
    RG = 64
    A.vmem(f"buffer_load_dwordx4 {vr(RG)}, v{vSt}, s[{sX}:{sX+3}], s61 offen", "rg")
    A.vmem(f"buffer_load_dwordx4 {vr(RG+4)}, v{vSt}, s[{sX}:{sX+3}], s61 offen offset:1024", "rg")
    A.vmem(f"buffer_load_dwordx4 {vr(RG+8)}, v{vSt}, s[{sR}:{sR+3}], 0 offen", "rg")
    A.vmem(f"buffer_load_dwordx4 {vr(RG+12)}, v{vSt}, s[{sG}:{sG+3}], 0 offen", "rg")

    S = Sched(A)
    def wslot(hs):
        if hs < 22: return ((hs % 8) >> 2, hs & 3)
        k = hs - 22
        return (2 + (k >> 2), k & 3)
    def dma_w(gap, hs, spread=1):
        b, t = wslot(hs)
        for j in range(2):
            lds = b*32768 + t*2048 + j*1024
            if hs < 16:
                goff = (hs*32 + 4*j) * 8192; base, vo, sr = 56, dW, sK
            else:
                c2, q = (hs-16) >> 3, (hs-16) & 7
                goff = (q*64 + 8*j) * 8192 + c2*128; base, vo, sr = 57, dV[j], sV
            g = gap + j*spread
            S.at(g, "s", f"s_add_u32 m0, s43, {lds}")
            S.at(g, "s", f"s_add_u32 s62, s{base}, {goff}")
            S.at(g, "vm", f"buffer_load_dwordx4 v{vo}, s[{sr}:{sr+3}], s62 offen lds", ("W", hs))
    def cblock(s): return 2 + ((s+1) % 3)
    def dma_c(gap, s, spread=2):
        for j in range(8):
            g = gap + j*spread
            S.at(g, "s", f"s_add_u32 m0, s43, {cblock(s)*32768 + j*1024}")
            S.at(g, "s", f"s_add_u32 s62, s46, {j*8192 + s*128}")
            S.at(g, "vm", f"buffer_load_dwordx4 v{dC[j&1]}, s[{sC}:{sC+3}], s62 offen lds", ("C", s))
    def creg(ks, tg): return (ks*4 + tg) * 4
    def read_c(gap, s, spread=4):
        S.at(gap, "wvm", tag=[("C", s)])
        n = 0
        for k2 in range(2):
            for tg in range(4):
                off = ((cblock(s)-2)&1)*32768 + tg*2048
                S.at(gap + n*spread, "lds", f"ds_read_b128 {ar(creg(2*s+k2, tg))}, v{aC[k2 + 2*((cblock(s)-2)>>1)]} offset:{off}", ("c", 2*s+k2, tg))
                n += 1
    g = -1000
    for (kind, idx) in [("C",0),("W",0),("W",1),("C",1),("W",2),("W",3),("C",2),("W",4),("W",5)]:
        if kind == "C": dma_c(g, idx, 1); g += 8
        else: dma_w(g, idx); g += 2
    def rg():
        A.wait_vm("rg")
        for tk in range(2):
            xr = RG + 4*tk; acc_r, acc_g = RG+16+2*tk, RG+17+2*tk
            tx, tw, tp = RG+24, RG+25, RG+26
            first = True
            for j in range(4):
                for hi in range(2):
                    if hi: A(f"v_and_b32 v{tx}, 0xffff0000, v{xr+j}")
                    else: A(f"v_lshlrev_b32 v{tx}, 16, v{xr+j}")
                    if hi: A(f"v_and_b32 v{tw}, 0xffff0000, v{RG+8+j}")
                    else: A(f"v_lshlrev_b32 v{tw}, 16, v{RG+8+j}")
                    if first: A(f"v_mul_f32 v{acc_r}, v{tx}, v{tw}")
                    else: A(f"v_fmac_f32 v{acc_r}, v{tx}, v{tw}")
                    if hi: A(f"v_and_b32 v{tw}, 0xffff0000, v{RG+12+j}")
                    else: A(f"v_lshlrev_b32 v{tw}, 16, v{RG+12+j}")
                    A(f"v_mul_f32 v{tp}, v{tx}, v{tw}")
                    A(f"v_cvt_pk_bf16_f32 v{tp}, v{tp}, v{tp}")
                    A(f"v_and_b32 v{tp}, 0xffff0000, v{tp}")
                    if first: A(f"v_mov_b32 v{acc_g}, v{tp}")
                    else: A(f"v_add_f32 v{acc_g}, v{acc_g}, v{tp}")
                    first = False
            wave_reduce_add(A, acc_r, tx)
            wave_reduce_add(A, acc_g, tx)
            A(f"v_cvt_pk_bf16_f32 v{acc_r}, v{acc_r}, v{acc_r}")
            A(f"v_ashrrev_i32 v{tx}, 31, v{acc_r}")
            A(f"v_or_b32 v{tx}, 0x80000000, v{tx}")
            A(f"v_xor_b32 v{acc_r}, v{acc_r}, v{tx}")
            A(f"v_and_b32 v{acc_r}, 0xffff0000, v{acc_r}")
            A(f"s_lshl_b32 s62, s60, 1\ns_sub_u32 s62, {2047 - tk}, s62")
            A(f"v_or_b32 v{acc_r}, s62, v{acc_r}")
            A(f"v_cvt_pk_bf16_f32 v{acc_g}, v{acc_g}, v{acc_g}")
            A(f"v_and_b32 v{acc_g}, 0xffff0000, v{acc_g}")
            A(f"v_mul_f32 v{acc_g}, 0xbfb8aa3b, v{acc_g}")
            A(f"v_exp_f32 v{acc_g}, v{acc_g}")
            A("s_nop 0")
            A(f"v_add_f32 v{acc_g}, 1.0, v{acc_g}")
            A(f"v_rcp_f32 v{acc_g}, v{acc_g}")
            A("s_nop 0")
            A(f"v_cvt_pk_bf16_f32 v{acc_g}, v{acc_g}, v{acc_g}")
            A(f"v_and_b32 v{acc_g}, 0xffff0000, v{acc_g}")
        A(f"v_mov_b32 v{RG+28}, v{RG+16}\nv_mov_b32 v{RG+29}, v{RG+18}")
        A(f"v_mov_b32 v{RG+30}, v{RG+17}\nv_mov_b32 v{RG+31}, v{RG+19}")
        A(f"v_mov_b32 v{RG+24}, 0")
        A("s_lshl_b32 s62, s60, 3")
        A(f"s_add_u32 s62, s62, {WS_R}")
        A("s_mov_b64 exec, 1")
        A.vmem(f"buffer_store_dwordx2 v[{RG+28}:{RG+29}], v{RG+24}, s[{sWS}:{sWS+3}], s62 offen", "rgs")
        A(f"s_add_u32 s62, s62, {WS_G-WS_R}")
        A.vmem(f"buffer_store_dwordx2 v[{RG+30}:{RG+31}], v{RG+24}, s[{sWS}:{sWS+3}], s62 offen", "rgs")
        A("s_mov_b64 exec, -1")
    S.at(-900, "fn", rg)
    read_c(-800, 0, 1)
    S.at(-700, "wlg", tag=[("c", 1, 3)])
    dma_c(-600, 3, 1)
    FB = 40
    ACC1, ACC2 = 64, 192
    def acc(p, dt, tg):
        if p == 0: return ACC1 + (dt*4 + tg)*4
        if p == 1: return ACC2 + (dt*4 + tg)*4
        return ACC1 + (dt*4 + tg)*4
    win = 0
    for f in range(256):
        fb = FB + (f % NB)*4
        hs = f >> 3
        b, t = wslot(hs)
        if f < 128:
            p, ks, dt = 0, f >> 3, f & 7
            offs = [(b*32768 + t*2048 + pp*1024, aW[dt]) for pp in range(2)]
        else:
            f2 = f - 128
            p, ks, dt = 1 + (f2 >> 6), (f2 >> 2) & 15, f2 & 3
            w2 = b >> 1
            if w2 != win:
                for d in range(4): S.at(4*f - L - 1, "v", f"v_add_u32 v{aV[d]}, 0x10000, v{aV[d]}")
                win = w2
            offs = [((b&1)*32768 + (ks&1)*16384 + t*2048 + pp*512, aV[dt]) for pp in range(2)]
        if f % 8 == 0:
            gb = 4*f - L - 1
            S.at(gb, "wvm", tag=[("W", hs)])
            S.at(gb, "s", "s_barrier")
            if hs + 6 < 22: dma_w(gb + 3, hs + 6, 4)
        for pp in range(2):
            S.at(4*f - L + pp, "lds", f"ds_read_b64_tr_b16 v[{fb+2*pp}:{fb+2*pp+1}], v{offs[pp][1]} offset:{offs[pp][0]}", ("w", f))
        for tg in range(4):
            d = acc(p, dt, tg); c = vr(d) if ks else "0"
            need = [("w", f)] + ([("c", ks, tg)] if p == 0 else [])
            if p == 0: S.mfma(f"{MF} {vr(d)}, {vr(fb)}, {ar(creg(ks,tg))}, {c}", need)
            else: S.mfma(f"{MF} {vr(d)}, {ar(creg(ks,tg))}, {vr(fb)}, {c}", need)
    for s in range(1, 8):
        read_c(64*(s-1) + 6, s, 4)
        if s + 3 < 8:
            S.at(64*(s-1) + 46, "wlg", tag=[("c", 2*s+1, 3)])
            dma_c(64*(s-1) + 46, s + 3, 2)
    g = extra_start + 2
    for hs in range(22, 32):
        blk = wslot(hs)[0]
        g = max(g, 64*(blk + 3) + 2)
        dma_w(g, hs, 4); g += 12
    last_dma = g
    def drain(gap0, step, p):
        g = gap0
        items = []
        if p == 0:
            for ds in range(4):
                for tg in range(4):
                    items.append((acc(0, 2*ds, tg), acc(0, 2*ds+1, tg), WS_K + (tg >> 1)*8192 + ((tg & 1)*4 + ds)*1024))
        else:
            for dt in range(4):
                for u in range(2):
                    items.append((acc(p, dt, 2*u), acc(p, dt, 2*u+1), WS_V + u*8192 + ((p-1)*4 + dt)*1024))
        for (a0, a1, off) in items:
            if p == 0:
                for k, a in enumerate((a0, a0+2, a1, a1+2)):
                    S.at(g - 2 + (k >> 1), "v", f"v_pk_mul_f32 v[{a}:{a+1}], v[{a}:{a+1}], s[64:65]")
            S.at(g, "v", f"v_cvt_pk_bf16_f32 v{a0}, v{a0}, v{a0+1}")
            S.at(g, "v", f"v_cvt_pk_bf16_f32 v{a0+1}, v{a0+2}, v{a0+3}")
            S.at(g+1, "v", f"v_cvt_pk_bf16_f32 v{a0+2}, v{a1}, v{a1+1}")
            S.at(g+1, "v", f"v_cvt_pk_bf16_f32 v{a0+3}, v{a1+2}, v{a1+3}")
            S.at(g+2, "s", f"s_add_u32 s62, s58, {off}")
            S.at(g+2, "vm", f"buffer_store_dwordx4 {vr(a0)}, v{vSt}, s[{sWS}:{sWS+3}], s62 offen {st_flags}", "st")
            g += step
        return g
    e = drain(max(store_start, last_dma) + 2, store_step, 0)
    assert e <= 768 + 8, e
    drain(768 + 10, 12, 1)
    S.at(1024, "s", "s_nop 7")
    drain(1025, 3, 2)
    if stampk is not None:
        S.at(-901, "fn", lambda: stamp(A, 1))
        S.at(-899, "fn", lambda: stamp(A, 2))
        S.at(0, "fn", lambda: stamp(A, 3))
        S.at(512, "fn", lambda: stamp(A, 4))
        S.at(768, "fn", lambda: stamp(A, 5))
        S.at(1023, "fn", lambda: stamp(A, 6))
    S.emit()
    if stampk is not None: stamp_end(A, stampk, sWS, 42)
    A(f"L_end_{name}:\ns_endpgm")
    return A.text() + kdesc(name, 512, 256)

def gen_nul(name, kidx):
    A = Asm()
    A(khead(name))
    A(f"s_cmp_ge_u32 s2, 256\ns_cbranch_scc1 L_end_{name}")
    stamp_begin(A)
    A("s_load_dwordx2 s[16:17], s[0:1], 112")
    A("v_lshrrev_b32 v1, 6, v0\ns_nop 0\nv_readfirstlane_b32 s42, v1")
    A("s_waitcnt lgkmcnt(0)")
    srd(A, 36, 16, WS_BYTES)
    stamp_end(A, kidx, 36, 42)
    A(f"L_end_{name}:\ns_endpgm")
    return A.text() + kdesc(name, 64, 64)

if __name__ == "__main__":
    import hazard
    n = "k1_kernel"
    out = f"; @launch kernel={n} grid=(256,1,1) block=(256,1,1) lds=163840\n"
    out += '.amdgcn_target "amdgcn-amd-amdhsa--gfx950"\n.text\n'
    import sys, json
    kw = json.loads(sys.argv[1]) if len(sys.argv) > 1 else {}
    out = out.replace(".amdgcn", "; @launch kernel=nul_kernel grid=(256,1,1) block=(256,1,1) lds=0\n.amdgcn")
    out += gen_k1(n, stampk=0, **kw) + gen_nul("nul_kernel", 1)
    open(sys.argv[2] if len(sys.argv) > 2 else "k1.s", "w").write(out)
    r = hazard.check(out)
    for x in r[:20]: print(x)
    print(len(r), "hazards")
```

```python
from asmlib import *
from k1 import Sched, MF
from collections import defaultdict

NEGV = "0xf149f2ca"
def S(kt, qg): return 32 + (kt*4 + qg)*4
def P(b, qg): return 64 + b*16 + qg*4
def C(kt, qg): return 96 + (kt*4 + qg)*4
def O(dt, qg): return 128 + (dt*4 + qg)*4
def Kf(f): return f*4
def Vf(dt): return 32 + dt*4
def Q(qg, ds): return 64 + (qg*4 + ds)*4
def Lr(qg): return 128 + qg*4
ONES = 144
vSt = 21; vA = [2, 3]; vNM = [4, 5, 6, 7]; vNMP = [8, 9]; vNEG = 10; vT = [11, 12, 13, 14, 15, 16]; vPark = 17
sX, sW, sWS, sKV = 20, 24, 36, 28
sH, sI, sWv, sW8 = 40, 41, 42, 43
sN, sSw, sA, sB, sT, sG = 44, 45, 46, 47, 48, 49
sEv = 50
sTT = 52
sRbA, sRbB, sRbP = 53, 54, 55
sTri = [56, 58, 60, 62]
sRet = 64
sCtxA, sCtxB = 66, 67
sBad = 32
sTmp = 18
sRbS = 19

class Placer:
    def __init__(s, n, cap=2):
        s.n = n; s.cap = cap; s.load = defaultdict(float); s.ops = defaultdict(list)
    def put(s, g, text, cost=1):
        s.load[g] += cost; s.ops[g].append(text); return g
    def place(s, gmin, text, cost=1, gmax=None):
        g = gmin
        while s.load[g] + cost > s.cap: g += 1
        assert gmax is None or g <= gmax, (text, g, gmax)
        return s.put(g, text, cost)

def quad_ops():
    return ["s_add_u32 m0, m0, 16384", "s_and_b32 m0, m0, 0x1ffff", f"s_add_u32 s{sG}, s{sG}, 8192"] + \
           [f"buffer_load_dwordx4 v{vSt}, s[{sKV}:{sKV+3}], s{sG} offen offset:{j*1024} lds" for j in range(4)]

def interval(A, c, mode, name, opt):
    mf = []
    if mode != "T33":
        for kt in range(2):
            for ds in range(4):
                for qg in range(4):
                    cc = vr(C(kt, qg)) if ds == 0 else vr(S(kt, qg))
                    mf.append(f"{MF} {vr(S(kt,qg))}, {ar(Kf(kt*4+ds))}, {ar(Q(qg,ds))}, {cc}")
    nq = len(mf)
    for qg in range(4):
        mf.append(f"{MF} {ar(Lr(qg))}, {ar(ONES)}, {vr(P(c,qg))}, {ar(Lr(qg))}")
    for dt in range(8):
        for qg in range(4):
            mf.append(f"{MF} {vr(O(dt,qg))}, {ar(Vf(dt))}, {vr(P(c,qg))}, {vr(O(dt,qg))}")
    pl = Placer(len(mf))
    EG = opt.get("eg", [0,2,4,6,8,10,12,14, 17,18,20,21,23,24,26,27,29,30,33,35,37,39,41,43, 45,47,49,51,53,55,57,59])
    eg = list(EG)
    def tile(kt, qg, pb, g0, gmax):
        s = S(kt, qg); p = P(pb, qg) + 2*kt
        for r in range(4):
            g = eg.pop(0); assert g0 <= g <= gmax, (kt, qg, g)
            pl.put(g, f"v_exp_f32 v{s+r}, v{s+r}", 0)
            if r & 1:
                pend.append((g + 1, f"v_cvt_pk_bf16_f32 v{p+(r>>1)}, v{s+r-1}, v{s+r}", gmax))
        return g0
    for g in EG: pl.load[g] += 2
    pend = []
    def flush_pend():
        for (g, t, gm) in pend: pl.place(g, t, 1, gm)
        pend.clear()
    if mode == "T33":
        for dt in range(8): A(f"ds_read_b128 {ar(Vf(dt))}, v{vA[c]} offset:{8192+dt*1024}")
        for qg in (2, 3):
            for r in range(4): A(f"v_exp_f32 v{S(1,qg)+r}, v{S(1,qg)+r}")
        for qg in (2, 3):
            for r in (0, 2): A(f"v_cvt_pk_bf16_f32 v{P(c,qg)+2+(r>>1)}, v{S(1,qg)+r}, v{S(1,qg)+r+1}")
        A("s_waitcnt lgkmcnt(0)")
        for m in mf: A(m)
        return
    pl.put(31, "s_waitcnt vmcnt(%d) lgkmcnt(0)" % (16 if mode != "T32" else 0))
    pl.put(31, "s_barrier")
    pl.put(66, "s_waitcnt lgkmcnt(0)")
    pl.put(67, "", 2)
    g = 0
    for qg in (2, 3): g = tile(1, qg, c, g, 15 + qg)
    g = 1
    for dt in range(8):
        g = pl.place(g, f"ds_read_b128 {ar(Vf(dt))}, v{vA[c]} offset:{8192+dt*1024}", 1, 22)
        if dt & 1: g += 1
    flush_pend()
    if mode == "L1":
        g = pl.place(17, f"s_add_u32 s{sA}, s{sA}, 16384")
        g = pl.place(g, f"s_add_u32 s{sB}, s{sB}, 32768")
        g = pl.place(g+1, f"s_max_i32 s{sT}, s{sA}, s{sB}")
        g = pl.place(g, f"s_and_b32 s{sT}, s{sT}, 0x1ffff")
    else:
        g = pl.place(17, f"s_add_u32 s{sB}, s{sB}, 32768")
        g = pl.place(g, f"s_and_b32 s{sT}, s{sB}, 0x1ffff")
    ga = pl.place(max(g+1, 23), f"v_add_u32 v{vA[c]}, s{sT}, v{vSt}", 1, 31)
    pl.place(ga, f"s_add_u32 s{sN}, s{sN}, 1")
    g = 17
    for qg in range(4): tile(0, qg, 1-c, 15 + qg, 66)
    for qg in range(2): tile(1, qg, 1-c, 32 + qg, 66)
    flush_pend()
    if mode != "T32":
        ops = []
        q = quad_ops()
        ops += q
        kr = [f"ds_read_b128 {ar(Kf(f))}, v{vA[c]} offset:{f*1024}" for f in range(8)]
        seq = []
        if mode == "L2":
            q2 = quad_ops()
            seq = q[:3] + [kr[0], q[3], kr[1], q[4], kr[2], q[5], kr[3], q[6]] + q2[:2] + [kr[4], q2[2], kr[5], q2[3], kr[6], q2[4], kr[7], q2[5], q2[6]]
        else:
            seq = q[:3] + [kr[0], q[3], kr[1], q[4], kr[2], q[5], kr[3], q[6]] + kr[4:]
        g = 32
        for k, t in enumerate(seq):
            g = pl.place(g, t, 1, 64)
            pass
    for m, t in enumerate(mf):
        A(t)
        for o in pl.ops.get(m, []):
            if o and not any(a in o for a in opt.get("abl", [])): A(o.replace("vmcnt(16)", opt.get("vmc", "vmcnt(16)")))

def hook_site(A, k, name):
    A(f"s_bitcmp1_b64 s[{sEv}:{sEv+1}], s{sN}")
    A(f"s_cbranch_scc1 L_stub{k}_{name}")
    A(f"L_back{k}_{name}:")

def flush(A, q0, lregs, sctx, sbad, st_flags):
    for j in range(2):
        A(f"v_cmp_nlt_f32 vcc, v{lregs[j]}, v{vT[4]}")
        A(f"v_rcp_f32 v{lregs[j]}, v{lregs[j]}")
        A(f"s_or_b64 s[{sbad}:{sbad+1}], s[{sbad}:{sbad+1}], vcc")
    for j in range(2):
        qg = q0 + j
        if j: A(f"s_add_u32 s{sTmp}, s{sctx}, {128*1024}")
        for ds in range(4):
            a0, a1 = O(2*ds, qg), O(2*ds+1, qg)
            for a in (a0, a0+2, a1, a1+2):
                A(f"v_pk_mul_f32 v[{a}:{a+1}], v[{a}:{a+1}], v[{lregs[j]}:{lregs[j]+1}] op_sel_hi:[1,0]")
            A(f"v_cvt_pk_bf16_f32 v{a0}, v{a0}, v{a0+1}")
            A(f"v_cvt_pk_bf16_f32 v{a0+1}, v{a0+2}, v{a0+3}")
            A(f"v_cvt_pk_bf16_f32 v{a0+2}, v{a1}, v{a1+1}")
            A(f"v_cvt_pk_bf16_f32 v{a0+3}, v{a1+2}, v{a1+3}")
            A(f"buffer_store_dwordx4 {vr(a0)}, v{vSt}, s[{sWS}:{sWS+3}], s{sTmp if j else sctx} offen offset:{ds*1024} {st_flags}")

def gen_hook(A, name, st_flags):
    A(f"L_hook_{name}:")
    A(f"s_max_i32 s{sT}, s{sA}, s{sB}")
    A(f"s_lshr_b32 s{sT}, s{sT}, 14")
    A(f"s_cmp_lg_u32 s{sN}, s{sTT}")
    A(f"s_cbranch_scc1 L_h1_{name}")
    A("s_nop 7")
    A(f"v_accvgpr_read_b32 v{vT[0]+1}, a{Lr(0)}")
    A(f"v_accvgpr_read_b32 v{vT[2]+1}, a{Lr(1)}")
    A(f"v_mov_b32 v{vT[4]}, 0x5d800000")
    flush(A, 0, [vT[0]+1, vT[2]+1], sCtxA, sBad, st_flags)
    for q in range(2):
        for r in range(4): A(f"v_accvgpr_write_b32 a{Lr(q)+r}, 0")
    for dt in range(8):
        for q in range(2):
            A(f"v_mov_b64 v[{O(dt,q)}:{O(dt,q)+1}], 0")
            A(f"v_mov_b64 v[{O(dt,q)+2}:{O(dt,q)+3}], 0")
    A(f"L_h1_{name}:")
    A(f"s_add_u32 s{sTmp}, s{sN}, 1")
    A(f"s_cmp_lg_u32 s{sTmp}, s{sTT}")
    A(f"s_cbranch_scc1 L_h2_{name}")
    for q in range(2):
        for ds in range(4):
            A(f"ds_read_b128 {ar(Q(q,ds))}, v{vPark} offset:{(q*4+ds)*1024}")
    for q in range(2):
        A(f"v_mov_b32 v{vNM[q]}, v{vNMP[q]}")
        for kt in range(2):
            for r in range(4): A(f"v_mov_b32 v{C(kt,q)+r}, v{vNMP[q]}")
    A(f"s_mov_b32 s{sRbA}, s{sRbP}")
    A("s_waitcnt lgkmcnt(0)")
    A(f"L_h2_{name}:")
    for hb, (q0, srb) in enumerate(((0, sRbA), (2, sRbB))):
        A(f"s_cmp_lt_u32 s{sT}, s{srb}")
        A(f"s_cbranch_scc1 L_hd{hb}_{name}")
        A(f"s_cmp_eq_u32 s{sT}, s{srb}")
        A(f"s_cbranch_scc1 L_hg{hb}_{name}")
        for kt in range(2):
            for q in (q0, q0+1):
                for r in range(4): A(f"v_mov_b32 v{C(kt,q)+r}, v{vNEG}")
        A(f"s_branch L_hd{hb}_{name}")
        A(f"L_hg{hb}_{name}:")
        for r in range(4):
            A(f"v_cndmask_b32 v{C(0,q0)+r}, v{vNEG}, v{vNM[q0]}, s[{sTri[r]}:{sTri[r]+1}]")
            A(f"v_mov_b32 v{C(1,q0)+r}, v{vNEG}")
            A(f"v_cndmask_b32 v{C(1,q0+1)+r}, v{vNEG}, v{vNM[q0+1]}, s[{sTri[r]}:{sTri[r]+1}]")
        A(f"L_hd{hb}_{name}:")
    A("s_nop 1")
    A(f"s_setpc_b64 s[{sRet}:{sRet+1}]")

def gen_slow(A, name, st_flags):
    A(f"L_slow_{name}:")
    A("s_waitcnt vmcnt(0)")
    A(f"s_cmp_eq_u64 s[{sBad}:{sBad+1}], 0\ns_cbranch_scc1 L_slow1_{name}")
    A(f"s_mov_b32 s12, s{sRbS}\ns_mov_b32 s13, s{sCtxA}")
    A(f"s_call_b64 s[{sRet}:{sRet+1}], L_sub_{name}")
    A(f"L_slow1_{name}:")
    A(f"s_cmp_eq_u64 s[{sBad+2}:{sBad+3}], 0\ns_cbranch_scc1 L_fin_{name}")
    A(f"s_mov_b32 s12, s{sRbB}\ns_mov_b32 s13, s{sCtxB}")
    A(f"s_call_b64 s[{sRet}:{sRet+1}], L_sub_{name}")
    A(f"s_branch L_fin_{name}")
    A(f"L_sub_{name}:")
    WF, XF, KF, VF, SS, PP, QQ = 32, 64, 32, 64, 96, 112, 24
    def o(dt, q): return O(dt, q)
    def qq(q, ds): return O(2*ds, 2+q)
    vX, vW, M, L, AL, t0, t1 = 2, 3, [4, 5], [6, 8], [12, 14], 16, 17
    A(f"v_and_b32 v{t0}, 15, v0")
    A(f"v_lshrrev_b32 v{t1}, 4, v0")
    A(f"v_lshlrev_b32 v{vX}, 10, v{t0}")
    A(f"v_lshl_or_b32 v{vX}, v{t1}, 4, v{vX}")
    A(f"v_lshlrev_b32 v{vW}, 16, v{t1}")
    A(f"v_lshl_or_b32 v{vW}, v{t0}, 1, v{vW}")
    for dt in range(8):
        for q in range(2):
            for r in range(4): A(f"v_mov_b32 v{o(dt,q)+r}, 0")
    A(f"s_lshl_b32 s14, s12, 15")
    A(f"s_lshl_b32 s15, s{sH}, 8")
    A(f"s_mov_b32 s{sN}, 0")
    A(f"L_sq_{name}:")
    A(f"buffer_load_dwordx4 {vr(XF)}, v{vX}, s[{sX}:{sX+3}], s14 offen")
    A(f"s_add_u32 s{sT}, s14, 16384")
    A(f"buffer_load_dwordx4 {vr(XF+4)}, v{vX}, s[{sX}:{sX+3}], s{sT} offen")
    for j in range(8):
        for dt in range(8):
            A(f"buffer_load_ushort v{(72+dt) if j & 1 else WF+dt*4+(j>>1)}, v{vW}, s[{sW}:{sW+3}], s15 offen offset:{dt*32}")
        A(f"s_add_u32 s15, s15, 8192")
        if j & 1:
            A("s_waitcnt vmcnt(0)")
            for dt in range(8): A(f"v_lshl_or_b32 v{WF+dt*4+(j>>1)}, v{72+dt}, 16, v{WF+dt*4+(j>>1)}")
    A("s_nop 1")
    for dt in range(8):
        for q in range(2):
            A(f"{MF} {vr(o(dt,q))}, {vr(WF+dt*4)}, {vr(XF+4*q)}, {vr(o(dt,q))}")
    A(f"s_add_u32 s15, s15, {24*8192}")
    A(f"s_add_u32 s14, s14, 64")
    A(f"s_add_u32 s{sN}, s{sN}, 1")
    A("s_nop 7")
    A(f"s_cmp_lt_u32 s{sN}, 16\ns_cbranch_scc1 L_sq_{name}")
    for q in range(2):
        for ds in range(4):
            a0, a1, d = o(2*ds, q), o(2*ds+1, q), qq(q, ds)
            A(f"v_cvt_pk_bf16_f32 v{d}, v{a0}, v{a0+1}")
            A(f"v_cvt_pk_bf16_f32 v{d+1}, v{a0+2}, v{a0+3}")
            A(f"v_cvt_pk_bf16_f32 v{d+2}, v{a1}, v{a1+1}")
            A(f"v_cvt_pk_bf16_f32 v{d+3}, v{a1+2}, v{a1+3}")
    for dt in range(8):
        for q in range(2):
            for r in range(4): A(f"v_mov_b32 v{o(dt,q)+r}, 0")
    for q in range(2):
        A(f"v_mov_b32 v{M[q]}, 0xff800000")
        A(f"v_mov_b32 v{L[q]}, 0")
    A(f"s_lshl_b32 s14, s{sH}, 19")
    A(f"s_mov_b32 s{sN}, 0")
    A(f"L_su_{name}:")
    for hf in range(2):
        A(f"s_add_u32 s{sT}, s14, {WS_K + hf*4096}")
        for j in range(4): A(f"buffer_load_dwordx4 {vr(KF+(hf*4+j)*4)}, v{vSt}, s[{sWS}:{sWS+3}], s{sT} offen offset:{j*1024}")
        A(f"s_add_u32 s{sT}, s14, {WS_V + hf*4096}")
        for j in range(4): A(f"buffer_load_dwordx4 {vr(VF+(hf*4+j)*4)}, v{vSt}, s[{sWS}:{sWS+3}], s{sT} offen offset:{j*1024}")
    A("s_waitcnt vmcnt(0)")
    def ss(kt, q): return SS + (kt*2+q)*4
    for ds in range(4):
        for kt in range(2):
            for q in range(2):
                A(f"{MF} {vr(ss(kt,q))}, {vr(KF+(kt*4+ds)*4)}, {vr(qq(q,ds))}, {vr(ss(kt,q)) if ds else 0}")
    A("s_nop 7")
    A(f"s_cmp_lg_u32 s{sN}, s12\ns_cbranch_scc1 L_snd_{name}")
    for r in range(4):
        A(f"v_cndmask_b32 v{ss(0,0)+r}, v{vNEG}, v{ss(0,0)+r}, s[{sTri[r]}:{sTri[r]+1}]")
        A(f"v_mov_b32 v{ss(1,0)+r}, v{vNEG}")
        A(f"v_cndmask_b32 v{ss(1,1)+r}, v{vNEG}, v{ss(1,1)+r}, s[{sTri[r]}:{sTri[r]+1}]")
    A(f"L_snd_{name}:")
    for q in range(2):
        a, b = ss(0, q), ss(1, q)
        A(f"v_max3_f32 v{t0}, v{a}, v{a+1}, v{a+2}")
        A(f"v_max3_f32 v{t0}, v{t0}, v{a+3}, v{b}")
        A(f"v_max3_f32 v{t0}, v{t0}, v{b+1}, v{b+2}")
        A(f"v_max3_f32 v{t0}, v{t0}, v{b+3}, v{M[q]}")
        for sw in ("v_permlane16_swap_b32", "v_permlane32_swap_b32"):
            A(f"v_mov_b32 v{t1}, v{t0}")
            A("s_nop 1")
            A(f"{sw} v{t0}, v{t1}")
            A("s_nop 1")
            A(f"v_max_f32 v{t0}, v{t0}, v{t1}")
        A(f"v_sub_f32 v{AL[q]}, v{M[q]}, v{t0}")
        A(f"v_exp_f32 v{AL[q]}, v{AL[q]}")
        A(f"v_mov_b32 v{M[q]}, v{t0}")
        A(f"v_mul_f32 v{L[q]}, v{L[q]}, v{AL[q]}")
        for x in (a, b):
            for r in range(4): A(f"v_sub_f32 v{x+r}, v{x+r}, v{t0}")
            for r in range(4): A(f"v_exp_f32 v{x+r}, v{x+r}")
            A("s_nop 0")
            for r in range(4): A(f"v_add_f32 v{L[q]}, v{L[q]}, v{x+r}")
        A(f"v_cvt_pk_bf16_f32 v{PP+4*q}, v{a}, v{a+1}")
        A(f"v_cvt_pk_bf16_f32 v{PP+4*q+1}, v{a+2}, v{a+3}")
        A(f"v_cvt_pk_bf16_f32 v{PP+4*q+2}, v{b}, v{b+1}")
        A(f"v_cvt_pk_bf16_f32 v{PP+4*q+3}, v{b+2}, v{b+3}")
        for dt in range(8):
            for r in range(4): A(f"v_mul_f32 v{o(dt,q)+r}, v{o(dt,q)+r}, v{AL[q]}")
    A("s_nop 1")
    for dt in range(8):
        for q in range(2):
            A(f"{MF} {vr(o(dt,q))}, {vr(VF+dt*4)}, {vr(PP+4*q)}, {vr(o(dt,q))}")
    A(f"s_add_u32 s14, s14, 8192")
    A(f"s_add_u32 s{sN}, s{sN}, 1")
    A("s_nop 7")
    A(f"s_cmp_le_u32 s{sN}, s12\ns_cbranch_scc1 L_su_{name}")
    for q in range(2):
        for sw in ("v_permlane16_swap_b32", "v_permlane32_swap_b32"):
            A(f"v_mov_b32 v{t1}, v{L[q]}")
            A("s_nop 1")
            A(f"{sw} v{L[q]}, v{t1}")
            A("s_nop 1")
            A(f"v_add_f32 v{L[q]}, v{L[q]}, v{t1}")
    flush(A, 0, L, 13, 14, st_flags)
    A("s_waitcnt vmcnt(0)")
    A(f"s_setpc_b64 s[{sRet}:{sRet+1}]")

def gen_k2(name, L=16, NB=6, st_flags="sc1", stampk=None, opt={}):
    A = Asm()
    A(khead(name))
    A(f"s_cmp_ge_u32 s2, 256\ns_cbranch_scc1 L_end_{name}")
    if stampk is not None: stamp_begin(A)
    A("s_load_dwordx2 s[4:5], s[0:1], 0")
    A("s_load_dwordx2 s[6:7], s[0:1], 16")
    A("s_load_dwordx2 s[16:17], s[0:1], 112")
    A("v_lshrrev_b32 v1, 6, v0")
    A("v_and_b32 v0, 63, v0")
    A(f"v_readfirstlane_b32 s{sWv}, v1")
    A(f"s_and_b32 s{sH}, s2, 31")
    A(f"s_lshr_b32 s{sI}, s2, 5")
    aW = list(range(2, 10)); aC = [10, 11, 12, 13]; dW = 16; dC = [19, 20]
    t0, t1, t2, t3 = 22, 23, 24, 25
    A(f"v_lshrrev_b32 v{t0}, 4, v0")
    A(f"v_lshrrev_b32 v{t1}, 3, v0")
    A(f"v_and_b32 v{t2}, 7, v0")
    A(f"v_xor_b32 v{t3}, v{t2}, v{t0}")
    A(f"v_lshlrev_b32 v{dC[0]}, 10, v{t1}")
    A(f"v_lshl_or_b32 v{dC[0]}, v{t3}, 4, v{dC[0]}")
    A(f"v_xor_b32 v{dC[1]}, 64, v{dC[0]}")
    A(f"v_and_b32 v{t1}, 15, v0")
    A(f"s_and_b32 s{sT}, s{sWv}, 1")
    A(f"s_lshl_b32 s{sT}, s{sT}, 3")
    A(f"v_lshlrev_b32 v{t2}, 1, v{t0}")
    A(f"v_xor_b32 v{t2}, v{t2}, v{t1}")
    A(f"v_xor_b32 v{t2}, s{sT}, v{t2}")
    A(f"v_lshlrev_b32 v{dW}, 13, v{t0}")
    A(f"v_lshl_or_b32 v{dW}, v{t2}, 4, v{dW}")
    A(f"s_lshl_b32 s{sW8}, s{sWv}, 13")
    sXs, sXl, sWb = 8, 9, 10
    A(f"s_lshl_b32 s{sXs}, s{sI}, 17")
    A(f"s_lshl_b32 s{sT}, s{sWv}, 15")
    A(f"s_sub_u32 s{sXl}, {15<<17}, s{sXs}")
    A(f"s_add_u32 s{sXs}, s{sXs}, s{sT}")
    A(f"s_add_u32 s{sXl}, s{sXl}, s{sT}")
    A(f"s_lshl_b32 s{sWb}, s{sWv}, 16")
    A(f"s_lshl_b32 s{sT}, s{sH}, 8")
    A(f"s_add_u32 s{sWb}, s{sWb}, s{sT}")
    A("s_waitcnt lgkmcnt(0)")
    srd(A, sX, 4, 2048*1024); srd(A, sW, 6, 4096*1024)

    Sc = Sched(A)
    def wslot(hs): return (3 + ((hs >> 2) & 1), hs & 3)
    def dma_w(gap, hs, spread=1):
        b, t = wslot(hs)
        for j in range(2):
            g = gap + j*spread
            Sc.at(g, "s", f"s_add_u32 m0, s{sW8}, {b*32768 + t*2048 + j*1024}")
            Sc.at(g, "s", f"s_add_u32 s{sTmp}, s{sWb}, {(hs*32 + 4*j) * 8192}")
            Sc.at(g, "vm", f"buffer_load_dwordx4 v{dW}, s[{sW}:{sW+3}], s{sTmp} offen lds", ("W", hs))
    def cblock(s): return (s+1) % 3
    def dma_c(gap, s, spread=2):
        for j in range(8):
            g = gap + j*spread
            Sc.at(g, "s", f"s_add_u32 m0, s{sW8}, {cblock(s)*32768 + j*1024}")
            Sc.at(g, "s", f"s_add_u32 s{sTmp}, s{sXs if j < 4 else sXl}, {(j&3)*8192 + s*128}")
            Sc.at(g, "vm", f"buffer_load_dwordx4 v{dC[j&1]}, s[{sX}:{sX+3}], s{sTmp} offen lds", ("C", s))
    def creg(ks, tg): return (ks*4 + tg) * 4
    def read_c(gap, s, spread=4):
        Sc.at(gap, "wvm", tag=[("C", s)])
        n = 0
        for k2 in range(2):
            for tg in range(4):
                off = (cblock(s)&1)*32768 + tg*2048
                Sc.at(gap + n*spread, "lds", f"ds_read_b128 {ar(creg(2*s+k2, tg))}, v{aC[k2 + 2*(cblock(s)>>1)]} offset:{off}", ("c", 2*s+k2, tg))
                n += 1
    g = -1000
    for (kind, idx) in [("C",0),("W",0),("W",1),("C",1),("W",2),("W",3),("C",2),("W",4),("W",5)]:
        if kind == "C": dma_c(g, idx, 1); g += 8
        else: dma_w(g, idx); g += 2
    def consts():
        A(f"v_bfe_u32 v{t1}, v0, 2, 2")
        A(f"v_and_b32 v{t2}, 3, v0")
        A(f"v_and_b32 v{t3}, 1, v{t0}")
        A(f"v_lshl_or_b32 v{t3}, v{t3}, 2, v{t1}")
        A(f"v_lshlrev_b32 v{aW[0]}, 13, v{t0}")
        A(f"v_lshl_or_b32 v{aW[0]}, v{t1}, 8, v{aW[0]}")
        A(f"v_lshl_or_b32 v{aW[0]}, v{t3}, 5, v{aW[0]}")
        A(f"v_lshl_or_b32 v{aW[0]}, v{t2}, 3, v{aW[0]}")
        A(f"v_add_u32 v{aW[0]}, 0x18000, v{aW[0]}")
        for d in range(1, 8): A(f"v_xor_b32 v{aW[d]}, {d<<5}, v{aW[0]}")
        A(f"v_and_b32 v{t1}, 15, v0")
        A(f"v_lshrrev_b32 v{t2}, 1, v{t1}")
        A(f"v_xor_b32 v{t2}, v{t2}, v{t0}")
        A(f"v_lshlrev_b32 v{aC[0]}, 7, v{t1}")
        A(f"v_lshl_or_b32 v{aC[0]}, v{t2}, 4, v{aC[0]}")
        A(f"v_add_u32 v{aC[0]}, s{sW8}, v{aC[0]}")
        A(f"v_xor_b32 v{aC[1]}, 64, v{aC[0]}")
        A(f"v_add_u32 v{aC[2]}, 0x10000, v{aC[0]}")
        A(f"v_add_u32 v{aC[3]}, 0x10000, v{aC[1]}")
        A(f"v_lshlrev_b32 v{vSt}, 4, v0")
        A(f"v_lshlrev_b32 v{t2}, 2, v{t0}")
        A(f"v_sub_u32 v{t2}, v{t1}, v{t2}")
        for r in range(4): A(f"v_cmp_le_i32 s[{sTri[r]}:{sTri[r]+1}], {r}, v{t2}")
        srd(A, sWS, 16, WS_BYTES)
        A(f"s_lshr_b32 s{sT}, s{sWv}, 1\ns_lshl_b32 s{sT}, s{sT}, 24")
        A(f"s_lshl_b32 s{sG}, s{sH}, 19\ns_add_u32 s{sG}, s{sG}, s{sT}")
        A(f"s_lshl_b32 s{sT}, s{sI}, 15\ns_sub_u32 s{sT}, {64*8192}, s{sT}")
        A(f"s_mov_b32 s{sKV}, s16\ns_and_b32 s{sKV+1}, s17, 0xffff\ns_add_u32 s{sKV+2}, s{sG}, s{sT}\ns_mov_b32 s{sKV+3}, 0x20000")
        A(f"s_and_b32 s{sT}, s{sWv}, 1\ns_lshl_b32 s{sT}, s{sT}, 12\ns_add_u32 s{sG}, s{sG}, s{sT}")
        A(f"s_lshl_b32 s{sTT}, s{sI}, 2\ns_add_u32 s{sRbA}, s{sTT}, s{sWv}")
        A(f"s_sub_u32 s{sRbB}, 60, s{sTT}\ns_xor_b32 s{sRbP}, s{sWv}, 1\ns_add_u32 s{sRbP}, s{sRbP}, s{sRbB}\ns_add_u32 s{sRbB}, s{sRbB}, s{sWv}")
        A(f"s_add_u32 s{sTT}, s{sTT}, 4\ns_mov_b32 s{sRbS}, s{sRbA}")
        A(f"s_and_b32 s{sT}, s{sWv}, 2\ns_add_u32 s{sSw}, s{sTT}, s{sT}\ns_sub_u32 s{sSw}, s{sSw}, 2")
        A(f"s_mov_b32 s{sEv}, 63\ns_mov_b32 s{sEv+1}, 0")
        A(f"s_lshl_b64 s[{sEv}:{sEv+1}], s[{sEv}:{sEv+1}], s{sTT}")
        A(f"s_lshr_b64 s[{sEv}:{sEv+1}], s[{sEv}:{sEv+1}], 5")
        A(f"s_or_b32 s{sEv}, s{sEv}, 0x80000000\ns_or_b32 s{sEv+1}, s{sEv+1}, 1")
        A(f"s_mov_b32 s{sN}, 0\ns_mov_b32 s{sA}, 16384")
        A(f"s_and_b32 s{sT}, s{sWv}, 1\ns_add_u32 s{sT}, s{sT}, 2\ns_sub_u32 s{sT}, s{sT}, s{sTT}\ns_lshl_b32 s{sB}, s{sT}, 14")
        A(f"s_lshl_b32 s{sT}, s{sH}, 12\ns_add_u32 s{sT}, s{sT}, {WS_CTX}")
        A(f"s_lshl_b32 s{sCtxA}, s{sRbA}, 18\ns_add_u32 s{sCtxA}, s{sCtxA}, s{sT}")
        A(f"s_lshl_b32 s{sCtxB}, s{sRbB}, 18\ns_add_u32 s{sCtxB}, s{sCtxB}, s{sT}")
        A(f"s_mov_b64 s[{sBad}:{sBad+1}], 0\ns_mov_b64 s[{sBad+2}:{sBad+3}], 0")
        A(f"s_lshl_b32 s11, s{sWv}, 12")
    Sc.at(-900, "fn", consts)
    read_c(-800, 0, 1)
    Sc.at(-700, "wlg", tag=[("c", 1, 3)])
    dma_c(-600, 3, 1)
    FB = 40
    for f in range(128):
        fb = FB + (f % NB)*4
        hs = f >> 3; b, t = wslot(hs); ks, dt = f >> 3, f & 7
        if f % 8 == 0:
            gb = 4*f - L - 1
            Sc.at(gb, "wvm", tag=[("W", hs)])
            Sc.at(gb, "s", "s_barrier")
            if hs + 6 < 16: dma_w(gb + 3, hs + 6, 4)
        for pp in range(2):
            Sc.at(4*f - L + pp, "lds", f"ds_read_b64_tr_b16 v[{fb+2*pp}:{fb+2*pp+1}], v{aW[dt]} offset:{(b-3)*32768 + t*2048 + pp*1024}", ("w", f))
        for tg in range(4):
            d = O(dt, tg); c = vr(d) if ks else "0"
            Sc.mfma(f"{MF} {vr(d)}, {vr(fb)}, {ar(creg(ks,tg))}, {c}", [("w", f), ("c", ks, tg)])
    for s in range(1, 8):
        read_c(64*(s-1) + 6, s, 4)
        Sc.at(64*(s-1) + 46, "wlg", tag=[("c", 2*s+1, 3)])
        if s + 3 < 8: dma_c(64*(s-1) + 46, s + 3, 2)
    def dma_kv(gap, u, spread=2):
        Sc.at(gap, "s", f"s_add_u32 m0, s11, {u*16384}")
        Sc.at(gap, "s", f"s_add_u32 s{sTmp}, s{sG}, {u*8192}")
        for j in range(4):
            Sc.at(gap + 1 + j*spread, "vm", f"buffer_load_dwordx4 v{vSt}, s[{sKV}:{sKV+3}], s{sTmp} offen offset:{j*1024} lds", ("KV", u))
    gb = lambda ks: 32*ks - L - 1
    assert gb(10) > 64*4 + 46 and gb(12) > 64*5 + 46 and gb(14) > 64*6 + 46
    dma_kv(gb(10) + 2, 0); dma_kv(gb(10) + 12, 1)
    dma_kv(gb(12) + 2, 2); dma_kv(gb(12) + 12, 3)
    dma_kv(gb(14) + 2, 4); dma_kv(gb(14) + 12, 5); dma_kv(gb(14) + 22, 6)
    for ds in range(4):
        g = 480 + 8*ds + 8 + 3
        for tg in range(4):
            a0, a1 = O(2*ds, tg), O(2*ds+1, tg)
            Sc.at(g, "v", f"v_cvt_pk_bf16_f32 v{a0}, v{a0}, v{a0+1}")
            Sc.at(g, "v", f"v_cvt_pk_bf16_f32 v{a0+1}, v{a0+2}, v{a0+3}")
            Sc.at(g, "v", f"v_cvt_pk_bf16_f32 v{a0+2}, v{a1}, v{a1+1}")
            Sc.at(g, "v", f"v_cvt_pk_bf16_f32 v{a0+3}, v{a1+2}, v{a1+3}")
            for r in range(4): Sc.at(g+1, "v", f"v_accvgpr_write_b32 a{Q(tg,ds)+r}, v{a0+r}")
            g += 2
    Sc.at(512, "s", "s_nop 4")
    if stampk is not None:
        Sc.at(-901, "fn", lambda: stamp(A, 1))
        Sc.at(0, "fn", lambda: stamp(A, 2))
        Sc.at(511, "fn", lambda: stamp(A, 3))
    Sc.at(507, "wlg", tag=[("w", 127)])
    Sc.at(507, "wvm", tag=[("KV", 1)])
    Sc.at(507, "s", "s_barrier")
    Sc.at(508, "v", f"v_mov_b32 v{vA[0]}, v{vSt}")
    Sc.at(508, "v", f"v_add_u32 v{vA[1]}, 0x4000, v{vSt}")
    for f in range(8): Sc.at(509 + (f >> 2), "lds", f"ds_read_b128 {ar(Kf(f))}, v{vSt} offset:{f*1024}", ("k", f))
    Sc.emit()
    A(f"s_add_u32 s{sT}, s{sW8}, 0x20000")
    A(f"v_add_u32 v{vPark}, s{sT}, v{vSt}")
    for q in range(2):
        for ds in range(4):
            A.lds(f"ds_write_b128 v{vPark}, {vr(O(2*ds, 2+q))} offset:{(q*4+ds)*1024}", "pk")
            if len(A.lg) >= 14: A.wait_lg([("k", 7)])
    A(f"v_xor_b32 v{vPark}, 0x2000, v{vPark}")
    A(f"v_mov_b32 v{vNEG}, {NEGV}")
    A(f"v_mov_b32 v{vT[0]}, 0x3f803f80")
    for r in range(4): A(f"v_accvgpr_write_b32 a{ONES+r}, v{vT[0]}")
    A("s_waitcnt lgkmcnt(0)"); A.lg = []
    z = [f"v_mov_b64 v[{128+2*k}:{129+2*k}], 0" for k in range(64)] + [f"v_accvgpr_write_b32 a{Lr(0)+k}, 0" for k in range(16)]
    m = 0
    for kt in range(2):
        for ds in range(4):
            for qg in range(4):
                cc = "0" if ds == 0 else vr(S(kt, qg))
                A(f"{MF} {vr(S(kt,qg))}, {ar(Kf(kt*4+ds))}, {ar(Q(qg,ds))}, {cc}")
                for _ in range(2): A(z.pop(0))
                if m >= 20 and (m & 1) == 0 and False: pass
                m += 1
    for f in range(8): A(f"ds_read_b128 {ar(Kf(f))}, v{vA[1]} offset:{f*1024}")
    while z: A(z.pop(0))
    A(f"s_cmp_lg_u32 s{sRbA}, 0\ns_cbranch_scc1 L_nd0_{name}")
    for r in range(4):
        A(f"v_cndmask_b32 v{S(0,0)+r}, v{vNEG}, v{S(0,0)+r}, s[{sTri[r]}:{sTri[r]+1}]")
        A(f"v_mov_b32 v{S(1,0)+r}, v{vNEG}")
        A(f"v_cndmask_b32 v{S(1,1)+r}, v{vNEG}, v{S(1,1)+r}, s[{sTri[r]}:{sTri[r]+1}]")
    A(f"L_nd0_{name}:")
    for qg in range(4):
        a, b = S(0, qg), S(1, qg); d = vNM[qg]
        A(f"v_max3_f32 v{d}, v{a}, v{a+1}, v{a+2}")
        A(f"v_max3_f32 v{d}, v{d}, v{a+3}, v{b}")
        A(f"v_max3_f32 v{d}, v{d}, v{b+1}, v{b+2}")
        A(f"v_max_f32 v{d}, v{d}, v{b+3}")
    for sw in ("v_permlane16_swap_b32", "v_permlane32_swap_b32"):
        for qg in range(4): A(f"v_mov_b32 v{vT[qg]}, v{vNM[qg]}")
        for qg in range(4): A(f"{sw} v{vNM[qg]}, v{vT[qg]}")
        for qg in range(4): A(f"v_max_f32 v{vNM[qg]}, v{vNM[qg]}, v{vT[qg]}")
    for qg in range(4): A(f"v_xor_b32 v{vNM[qg]}, 0x80000000, v{vNM[qg]}")
    A(f"s_lshl_b32 s{sT}, s{sWv}, 9\ns_add_u32 s{sT}, s{sT}, {7*16384}")
    A(f"v_lshlrev_b32 v{vT[0]}, 3, v0")
    A(f"v_add_u32 v{vT[0]}, s{sT}, v{vT[0]}")
    A(f"ds_write_b64 v{vT[0]}, v[{vNM[2]}:{vNM[3]}]")
    A(f"v_xor_b32 v{vT[0]}, 512, v{vT[0]}")
    for kt in range(2):
        for qg in range(4):
            for r in range(4): A(f"v_add_f32 v{S(kt,qg)+r}, v{S(kt,qg)+r}, v{vNM[qg]}")
    A("s_waitcnt lgkmcnt(0)\ns_barrier")
    A(f"ds_read_b64 v[{vNMP[0]}:{vNMP[1]}], v{vT[0]}")
    for kt in range(2):
        for qg in range(4):
            for r in range(4): A(f"v_mov_b32 v{C(kt,qg)+r}, v{vNM[qg]}")
    A("s_waitcnt lgkmcnt(0)\ns_barrier")
    A(f"s_add_u32 m0, s11, {7*16384}")
    A(f"s_add_u32 s{sG}, s{sG}, {7*8192}")
    for j in range(4): A(f"buffer_load_dwordx4 v{vSt}, s[{sKV}:{sKV+3}], s{sG} offen offset:{j*1024} lds")
    tl = [(0, 0), (0, 1), (0, 2), (0, 3), (1, 0), (1, 1)]
    for (kt, qg) in tl:
        for r in range(4): A(f"v_exp_f32 v{S(kt,qg)+r}, v{S(kt,qg)+r}")
    for (kt, qg) in tl:
        for r in (0, 2): A(f"v_cvt_pk_bf16_f32 v{P(0,qg)+2*kt+(r>>1)}, v{S(kt,qg)+r}, v{S(kt,qg)+r+1}")
    if stampk is not None: stamp(A, 4)
    A(f".p2align 6\nL_l1_{name}:")
    hook_site(A, 0, name); interval(A, 0, "L1", name, opt)
    hook_site(A, 1, name); interval(A, 1, "L1", name, opt)
    A(f"s_cmp_lt_u32 s{sN}, s{sSw}\ns_cbranch_scc1 L_l1_{name}")
    A(f"s_cmp_ge_u32 s{sN}, 32\ns_cbranch_scc1 L_tail_{name}")
    A(f".p2align 6\nL_l2_{name}:")
    hook_site(A, 2, name); interval(A, 0, "L2", name, opt)
    hook_site(A, 3, name); interval(A, 1, "L2", name, opt)
    A(f"s_cmp_lt_u32 s{sN}, 32\ns_cbranch_scc1 L_l2_{name}")
    A(f"L_tail_{name}:")
    hook_site(A, 4, name); interval(A, 0, "T32", name, opt)
    interval(A, 1, "T33", name, opt)
    if stampk is not None: stamp(A, 5)
    A("s_waitcnt vmcnt(0)\ns_barrier")
    A(f"s_lshl_b32 s{sT}, s{sWv}, 14")
    A(f"v_add_u32 v{vT[0]}, s{sT}, v{vSt}")
    A(f"s_lshl_b32 s{sT}, s{sWv}, 9\ns_add_u32 s{sT}, s{sT}, 65536")
    A(f"v_lshlrev_b32 v{vT[1]}, 2, v0")
    A(f"v_add_u32 v{vT[1]}, s{sT}, v{vT[1]}")
    for dt in range(8):
        for q in range(2):
            A(f"ds_write_b128 v{vT[0]}, {vr(O(dt,q))} offset:{(dt*2+q)*1024}")
        if dt == 5: A("s_waitcnt lgkmcnt(8)")
    for q in range(2): A(f"ds_write_b32 v{vT[1]}, a{Lr(q)} offset:{q*256}")
    A(f"v_xor_b32 v{vT[0]}, 0x4000, v{vT[0]}")
    A(f"v_xor_b32 v{vT[1]}, 512, v{vT[1]}")
    A(f"v_accvgpr_read_b32 v{vNM[0]}, a{Lr(2)}")
    A(f"v_accvgpr_read_b32 v{vNM[2]}, a{Lr(3)}")
    A(f"v_mov_b32 v{vT[4]}, 0x5d800000")
    A("s_waitcnt lgkmcnt(0)\ns_barrier")
    for q in range(2): A.lds(f"ds_read_b32 v{vNMP[q]}, v{vT[1]} offset:{q*256}", "l")
    def rd(k):
        q, dt = k >> 3, k & 7
        A.lds(f"ds_read_b128 {vr(32 + k*4)}, v{vT[0]} offset:{(dt*2+q)*1024}", ("o", k))
    for k in range(12): rd(k)
    A.wait_lg("l")
    A(f"v_add_f32 v{vNM[0]}, v{vNM[0]}, v{vNMP[0]}")
    A(f"v_add_f32 v{vNM[2]}, v{vNM[2]}, v{vNMP[1]}")
    for k in range(16):
        q, dt = k >> 3, k & 7
        A.wait_lg(("o", k),) if False else A.wait_lg([("o", k)])
        if k + 12 < 16: rd(k + 12)
        o = O(dt, 2+q)
        A(f"v_pk_add_f32 v[{o}:{o+1}], v[{o}:{o+1}], v[{32+k*4}:{33+k*4}]")
        A(f"v_pk_add_f32 v[{o+2}:{o+3}], v[{o+2}:{o+3}], v[{34+k*4}:{35+k*4}]")
    flush(A, 2, [vNM[0], vNM[2]], sCtxB, sBad+2, st_flags)
    A(f"s_or_b64 s[12:13], s[{sBad}:{sBad+1}], s[{sBad+2}:{sBad+3}]")
    A(f"s_cbranch_scc1 L_slow_{name}")
    A(f"L_fin_{name}:")
    if stampk is not None: stamp_end(A, stampk, sWS, sWv)
    A(f"L_end_{name}:\ns_endpgm")
    for k in range(5):
        A(f"L_stub{k}_{name}:\ns_call_b64 s[{sRet}:{sRet+1}], L_hook_{name}\ns_branch L_back{k}_{name}")
    gen_hook(A, name, st_flags)
    gen_slow(A, name, st_flags)
    return A.text() + kdesc(name, 512, 256)
```

```python
from asmlib import *
from k1 import Sched, MF

NF = 56
LDSB = 81920
def launch(name): return f"; @launch kernel={name} grid=({256+NF},1,1) block=(256,1,1) lds={LDSB}\n"

sX, sWo, sWS, sOut, sY, sDbg = 20, 24, 36, 28, 32, 44
sWv = 42; sK = [48, 49]; sT = 50; sT2 = 51

def top2(A, K0, t, sK=sK):
    m1, m2, a1, a2, tt = t[:5]
    A(f"v_max_u32 v{m1}, v{K0}, v{K0+1}")
    A(f"v_min_u32 v{m2}, v{K0}, v{K0+1}")
    for k in range(2, 32):
        A(f"v_med3_u32 v{m2}, v{m1}, v{m2}, v{K0+k}")
        A(f"v_max_u32 v{m1}, v{m1}, v{K0+k}")
    def merge():
        A(f"v_min_u32 v{tt}, v{m1}, v{a1}")
        A(f"v_max_u32 v{m1}, v{m1}, v{a1}")
        A(f"v_max3_u32 v{m2}, v{tt}, v{m2}, v{a2}")
    for dpp in ("quad_perm:[1,0,3,2]", "quad_perm:[2,3,0,1]", "row_half_mirror", "row_mirror"):
        A("s_nop 1")
        A(f"v_mov_b32_dpp v{a1}, v{m1} {dpp} row_mask:0xf bank_mask:0xf")
        A(f"v_mov_b32_dpp v{a2}, v{m2} {dpp} row_mask:0xf bank_mask:0xf")
        merge()
    for sw in ("v_permlane16_swap_b32", "v_permlane32_swap_b32"):
        A(f"v_mov_b32 v{a1}, v{m1}")
        A(f"v_mov_b32 v{a2}, v{m2}")
        A("s_nop 0")
        A(f"{sw} v{m1}, v{a1}")
        A(f"{sw} v{m2}, v{a2}")
        A("s_nop 0")
        merge()
    A("s_nop 0")
    A(f"v_readfirstlane_b32 s{sK[0]}, v{m1}")
    A(f"v_readfirstlane_b32 s{sK[1]}, v{m2}")

def rnd(A, v, t=None):
    A(f"v_cvt_pk_bf16_f32 v{v}, v{v}, v{v}")
    A(f"v_and_b32 v{v}, 0xffff0000, v{v}")

def gen_ffn(A, name):
    A(f"L_ffn_{name}:")
    sG, sU, sD = 52, 56, 60
    A("s_load_dwordx4 s[8:11], s[0:1], 64")
    A("s_load_dwordx2 s[12:13], s[0:1], 80")
    A("s_sub_u32 s40, s2, 256")
    vL16, vD, vK = 2, 3, 4
    KEY = 64; WD = 96; XF = 128; ACC = 144; WF = 160; T = list(range(8, 24))
    A(f"v_lshlrev_b32 v{vL16}, 4, v0")
    A.vm = []
    for j in range(8):
        A(f"s_mov_b32 s{sT}, {WS_R + (j>>2)*4096}")
        A.vmem(f"buffer_load_dwordx4 {vr(KEY+4*j)}, v{vL16}, s[{sWS}:{sWS+3}], s{sT} offen offset:{(j&3)*1024}", "key")
    A(f"v_lshrrev_b32 v{T[0]}, 2, v0")
    A(f"v_mul_u32_u24 v{vD}, 3584, v{T[0]}")
    A(f"v_lshrrev_b32 v{T[0]}, 5, v0")
    A(f"v_lshlrev_b32 v{T[0]}, 1, v{T[0]}")
    A(f"v_and_b32 v{T[1]}, 3, v0")
    A(f"v_xor_b32 v{T[0]}, v{T[0]}, v{T[1]}")
    A(f"v_lshl_add_u32 v{vD}, v{T[0]}, 4, v{vD}")
    A(f"v_lshlrev_b32 v{vK}, 2, v0")
    A("s_waitcnt lgkmcnt(0)")
    srd(A, sG, 8, 512*3584); srd(A, sU, 10, 512*3584); srd(A, sD, 12, 1792*1024)
    A(f"s_mul_i32 s41, s{sWv}, {128*3584}\ns_lshl_b32 s{sT}, s40, 6\ns_add_u32 s41, s41, s{sT}")
    A(f"s_lshl_b32 s43, s{sWv}, 14")
    for mat in range(2):
        for p in range(8):
            A(f"s_add_u32 m0, s43, {mat*8192 + p*1024}")
            A(f"s_add_u32 s{sT}, s41, {p*16*3584}")
            A.vmem(f"buffer_load_dwordx4 v{vD}, s[{(sG,sU)[mat]}:{(sG,sU)[mat]+3}], s{sT} offen lds", "w")
    A(f"s_lshl_b32 s41, s40, 15\ns_lshl_b32 s{sT}, s{sWv}, 8\ns_add_u32 s41, s41, s{sT}")
    for f in range(32):
        if f % 4 == 0: A(f"s_add_u32 s{sT}, s41, {f*1024}")
        A.vmem(f"buffer_load_dword v{WD+f}, v{vK}, s[{sD}:{sD+3}], s{sT} offen offset:{(f&3)*1024}", "wd")
    A.wait_vm("key")
    top2(A, KEY, T)
    for j in range(2):
        A(f"s_and_b32 s{sT}, s{sK[j]}, 0xffff\ns_sub_u32 s{sT}, 2047, s{sT}\ns_lshl_b32 s{sT}, s{sT}, 10")
        A(f"v_mov_b32 v{T[j]}, s{sT}")
    A(f"v_and_b32 v{T[2]}, 1, v0")
    A(f"v_cmp_eq_u32 vcc, 1, v{T[2]}")
    A(f"v_lshrrev_b32 v{T[3]}, 4, v0")
    A("s_nop 0")
    A(f"v_cndmask_b32 v{T[0]}, v{T[0]}, v{T[1]}, vcc")
    A(f"v_lshl_add_u32 v{T[0]}, v{T[3]}, 4, v{T[0]}")
    A(f"s_lshl_b32 s{sT}, s{sWv}, 8")
    for ks in range(4):
        A.vmem(f"buffer_load_dwordx4 {vr(XF+4*ks)}, v{T[0]}, s[{sX}:{sX+3}], s{sT} offen offset:{ks*64}", "xf")
    A(f"v_bfe_u32 v{T[4]}, v0, 2, 2")
    A(f"v_lshl_add_u32 v{T[4]}, v{T[3]}, 3, v{T[4]}")
    A(f"v_lshlrev_b32 v{T[4]}, 6, v{T[4]}")
    A(f"v_and_b32 v{T[5]}, 1, v{T[3]}")
    A(f"v_lshl_or_b32 v{T[4]}, v{T[5]}, 5, v{T[4]}")
    A(f"v_and_b32 v{T[5]}, 3, v0")
    A(f"v_lshl_or_b32 v{T[4]}, v{T[5]}, 3, v{T[4]}")
    A(f"v_add_u32 v{T[4]}, s43, v{T[4]}")
    A(f"v_xor_b32 v{T[5]}, 32, v{T[4]}")
    A.wait_vm("w")
    for ks in range(4):
        for mat in range(2):
            for ft in range(2):
                w = WF + ((ks*2+mat)*2+ft)*4
                for p in range(2):
                    A(f"ds_read_b64_tr_b16 v[{w+2*p}:{w+2*p+1}], v{T[4+ft]} offset:{mat*8192 + ks*2048 + p*256}")
        A("s_waitcnt lgkmcnt(0)")
    A.wait_vm("xf")
    for ks in range(4):
        for mat in range(2):
            for ft in range(2):
                w = WF + ((ks*2+mat)*2+ft)*4; d = ACC + (mat*2+ft)*4
                A(f"{MF} {vr(d)}, {vr(w)}, {vr(XF+4*ks)}, {vr(d) if ks else 0}")
    A(f"s_lshl_b32 s{sT}, s{sWv}, 12\ns_add_u32 s{sT}, s{sT}, 65536")
    A(f"v_add_u32 v{T[0]}, s{sT}, v{vL16}")
    A(f"v_add_u32 v{T[1]}, 65536, v{vL16}")
    A("s_nop 7")
    for t in range(4): A(f"ds_write_b128 v{T[0]}, {vr(ACC+4*t)} offset:{t*1024}")
    A("s_waitcnt lgkmcnt(0)\ns_barrier")
    for k in range(16):
        A(f"ds_read_b128 {vr(WF+4*k)}, v{T[1]} offset:{k*1024}")
        if k == 7: A("s_waitcnt lgkmcnt(0)")
    A("s_waitcnt lgkmcnt(0)")
    for r in range(16):
        A(f"v_add_f32 v{ACC+r}, v{WF+r}, v{WF+16+r}")
        A(f"v_add_f32 v{WF+32+r}, v{WF+32+r}, v{WF+48+r}")
        A(f"v_add_f32 v{ACC+r}, v{ACC+r}, v{WF+32+r}")
        rnd(A, ACC+r)
    for r in range(8):
        gt, up = ACC+r, ACC+8+r
        A(f"v_mul_f32 v{T[2]}, 0xbfb8aa3b, v{gt}")
        A(f"v_exp_f32 v{T[2]}, v{T[2]}")
        A("s_nop 0")
        A(f"v_add_f32 v{T[2]}, 1.0, v{T[2]}")
        A(f"v_rcp_f32 v{T[2]}, v{T[2]}")
        A("s_nop 0")
        A(f"v_mul_f32 v{gt}, v{gt}, v{T[2]}")
        rnd(A, gt)
        A(f"v_mul_f32 v{gt}, v{gt}, v{up}")
        rnd(A, gt)
    A.wait_vm("wd")
    Y = T[8:12]
    for j in range(4): A(f"v_mov_b32 v{Y[j]}, 0")
    for f in range(32):
        ft, g, r = f >> 4, (f >> 2) & 3, f & 3
        A(f"v_readlane_b32 s{64+0}, v{ACC+ft*4+r}, {16*g}")
        A(f"v_readlane_b32 s{64+1}, v{ACC+ft*4+r}, {16*g+1}")
        A(f"v_lshlrev_b32 v{T[2]}, 16, v{WD+f}")
        A(f"v_and_b32 v{T[3]}, 0xffff0000, v{WD+f}")
        A(f"v_fmac_f32 v{Y[0]}, s64, v{T[2]}")
        A(f"v_fmac_f32 v{Y[1]}, s64, v{T[3]}")
        A(f"v_fmac_f32 v{Y[2]}, s65, v{T[2]}")
        A(f"v_fmac_f32 v{Y[3]}, s65, v{T[3]}")
    A(f"v_lshlrev_b32 v{T[0]}, 3, v0")
    A(f"s_lshl_b32 s41, s40, 12\ns_lshl_b32 s{sT}, s{sWv}, 9\ns_add_u32 s41, s41, s{sT}\ns_add_u32 s41, s41, {WS_Y}")
    A(f"buffer_store_dwordx2 v[{Y[0]}:{Y[1]}], v{T[0]}, s[{sWS}:{sWS+3}], s41 offen sc1")
    A(f"buffer_store_dwordx2 v[{Y[2]}:{Y[3]}], v{T[0]}, s[{sWS}:{sWS+3}], s41 offen offset:2048 sc1")
    A("s_waitcnt vmcnt(0)\ns_barrier")
    A(f"s_cmp_lg_u32 s{sWv}, 0\ns_cbranch_scc1 L_end_{name}")
    A(f"v_mov_b32 v{T[0]}, 0\nv_mov_b32 v{T[1]}, 1")
    A("s_mov_b64 exec, 1")
    A(f"buffer_atomic_add v{T[1]}, v{T[0]}, s[{sDbg}:{sDbg+3}], 0 offen sc1")
    A("s_endpgm")

def gen_k3(name, NS=5, NC=6, stampk=None, ld_flags="", opt={}):
    A = Asm()
    A(khead(name))
    A(f"s_cmp_ge_u32 s2, {256+NF}\ns_cbranch_scc1 L_end_{name}")
    if stampk is not None: stamp_begin(A)
    A("s_load_dwordx2 s[4:5], s[0:1], 0")
    A("s_load_dwordx2 s[6:7], s[0:1], 40")
    A("s_load_dwordx4 s[12:15], s[0:1], 96")
    A("s_load_dwordx2 s[16:17], s[0:1], 112")
    A("v_lshrrev_b32 v1, 6, v0")
    A("v_and_b32 v0, 63, v0")
    A(f"v_readfirstlane_b32 s{sWv}, v1")
    vC = [2, 3, 4, 5]; dW = 6; aW = [8, 9, 10, 11]; T = list(range(12, 24)); vRow = 7
    XR = 24; GV = 32
    ACC = 64; CB = 128; WFB = 224 - 0
    WFB = CB + NC*16
    assert WFB + 32 <= 256
    A(f"v_lshlrev_b32 v{vC[0]}, 4, v0")
    for j in range(1, 4): A(f"v_add_u32 v{vC[j]}, {j*131072}, v{vC[0]}")
    A(f"v_lshrrev_b32 v{T[0]}, 4, v0")
    A(f"v_lshrrev_b32 v{T[1]}, 3, v0")
    A(f"v_and_b32 v{T[2]}, 7, v0")
    A(f"v_lshlrev_b32 v{T[3]}, 1, v{T[0]}")
    A(f"v_xor_b32 v{T[2]}, v{T[2]}, v{T[3]}")
    A(f"v_lshlrev_b32 v{dW}, 10, v{T[1]}")
    A(f"v_lshl_or_b32 v{dW}, v{T[2]}, 4, v{dW}")
    A("s_and_b32 s40, s2, 7\ns_lshl_b32 s40, s40, 2\ns_bfe_u32 s41, s2, 0x20003\ns_add_u32 s40, s40, s41\ns_lshr_b32 s41, s2, 5")
    A(f"s_lshl_b32 s52, s40, 19\ns_lshl_b32 s{sT}, s{sWv}, 15\ns_add_u32 s52, s52, s{sT}\ns_add_u32 s52, s52, {WS_CTX}")
    A(f"s_lshl_b32 s53, s{sWv}, 20\ns_lshl_b32 s{sT}, s41, 7\ns_add_u32 s53, s53, s{sT}")
    A(f"s_mul_i32 s43, s{sWv}, {NS*4096}")
    A("s_waitcnt lgkmcnt(0)")
    srd(A, sWS, 16, WS_BYTES); srd(A, sWo, 6, 4096*1024); srd(A, sX, 4, 2048*1024)
    srd(A, sDbg, 14, 256)
    A(f"s_cmp_ge_u32 s2, 256\ns_cbranch_scc1 L_ffn_{name}")
    S = Sched(A)
    def dma_w(gap, kk, spread):
        for j in range(4):
            g = gap + j*spread
            S.at(g, "s", f"s_add_u32 m0, s43, {(kk % NS)*4096 + j*1024}")
            S.at(g, "s", f"s_add_u32 s{sT}, s53, {(kk*32 + j*8)*1024}")
            S.at(g, "vm", f"buffer_load_dwordx4 v{dW}, s[{sWo}:{sWo+3}], s{sT} offen lds", ("W", kk))
    def ld_c(gap, kk, spread):
        if kk % 4 == 0: S.at(gap, "s", f"s_add_u32 s{sT2}, s52, {kk*1024}")
        for j in range(4):
            S.at(gap + j*spread, "vm", f"buffer_load_dwordx4 {vr(CB + (kk % NC)*16 + 4*j)}, v{vC[j]}, s[{sWS}:{sWS+3}], s{sT2} offen offset:{(kk&3)*1024} {ld_flags}", ("C", kk))
    def rd_w(gap, kk, spread):
        S.at(gap, "wvm", tag=[("W", kk)])
        n = 0
        for mt in range(4):
            for p in range(2):
                w = WFB + (kk & 1)*16 + mt*4 + 2*p
                S.at(gap + n*spread, "lds", f"ds_read_b64_tr_b16 v[{w}:{w+1}], v{aW[mt]} offset:{(kk % NS)*4096 + p*2048}", ("w", kk, mt))
                n += 1
    g = -1000
    for kk in range(max(NS, NC)):
        if kk < NS: dma_w(g, kk, 1); g += 4
        if kk < NC - 1: ld_c(g, kk, 1); g += 4
        if kk == 0:
            def keys():
                for j in range(8):
                    if j % 4 == 0: A(f"s_mov_b32 s{sT}, {WS_R + (j>>2)*4096}")
                    A.vmem(f"buffer_load_dwordx4 {vr(ACC+4*j)}, v{vC[0]}, s[{sWS}:{sWS+3}], s{sT} offen offset:{(j&3)*1024}", "key")
            S.at(g, "fn", keys); g += 1
    def pro():
        A(f"v_bfe_u32 v{T[1]}, v0, 2, 2")
        A(f"v_lshl_add_u32 v{T[2]}, v{T[0]}, 2, v{T[1]}")
        A(f"v_bfe_u32 v{T[3]}, v{T[2]}, 1, 2")
        A(f"v_lshlrev_b32 v{aW[0]}, 7, v{T[2]}")
        A(f"v_lshl_or_b32 v{aW[0]}, v{T[3]}, 5, v{aW[0]}")
        A(f"v_and_b32 v{T[3]}, 3, v0")
        A(f"v_lshl_or_b32 v{aW[0]}, v{T[3]}, 3, v{aW[0]}")
        A(f"v_add_u32 v{aW[0]}, s43, v{aW[0]}")
        for mt in range(1, 4): A(f"v_xor_b32 v{aW[mt]}, {mt<<5}, v{aW[0]}")
        srd(A, sOut, 12, 2048*1024)
        A(f"s_lshl_b32 s54, s40, 2\ns_add_u32 s54, s54, s{sWv}")
        A(f"v_and_b32 v{T[1]}, 15, v0")
        A(f"v_lshlrev_b32 v{vRow}, 10, v{T[1]}")
        A(f"v_lshl_or_b32 v{vRow}, v{T[0]}, 3, v{vRow}")
        A(f"s_lshl_b32 s55, s54, 14\ns_lshl_b32 s{sT}, s41, 7\ns_add_u32 s55, s55, s{sT}")
        for mt in range(4):
            A.vmem(f"buffer_load_dwordx2 v[{XR+2*mt}:{XR+2*mt+1}], v{vRow}, s[{sX}:{sX+3}], s55 offen offset:{mt*32}", "x")
        A(f"v_lshlrev_b32 v{T[1]}, 2, v{T[1]}")
        A(f"s_lshl_b32 s{sT}, s54, 6\ns_add_u32 s{sT}, s{sT}, {WS_G}")
        A.vmem(f"buffer_load_dword v{GV}, v{T[1]}, s[{sWS}:{sWS+3}], s{sT} offen", "x")
        A.wait_vm("key")
        top2(A, ACC, T[4:10])
    S.at(-500, "fn", pro)
    rd_w(-400, 0, 1)
    for kk in range(32):
        b = 16*kk
        if kk + 1 < 32: rd_w(b + 1, kk + 1, 1)
        S.at(b - 1, "wvm", tag=[("C", kk)])
        if kk + NC - 1 < 32: ld_c(b + 2, kk + NC - 1, 3)
        S.at(b + 12, "wlg", tag=[("w", kk, 3)])
        if kk + NS < 32: dma_w(b + 12, kk + NS, 1)
        for mt in range(4):
            for j in range(4):
                d = ACC + (mt*4 + j)*4
                S.mfma(f"{MF} {vr(d)}, {vr(WFB + (kk&1)*16 + mt*4)}, {vr(CB + (kk % NC)*16 + 4*j)}, {vr(d) if kk else 0}", [("w", kk, mt)])
    if stampk is not None:
        S.at(-501, "fn", lambda: stamp(A, 1))
        S.at(-401, "fn", lambda: stamp(A, 2))
        S.at(0, "fn", lambda: stamp(A, 3))
        S.at(256, "fn", lambda: stamp(A, 4))
        S.at(511, "fn", lambda: stamp(A, 5))
    S.emit()
    A(f"v_add_u32 v{T[1]}, s43, v{vC[0]}")
    A(f"s_lshl_b32 s{sT}, s{sWv}, 12")
    A(f"v_add_u32 v{T[2]}, s{sT}, v{vC[0]}")
    A("s_nop 5")
    for j in range(4):
        for mt in range(4):
            A(f"ds_write_b128 v{T[1]}, {vr(ACC + (mt*4+j)*4)} offset:{j*4096 + mt*1024}")
        if j == 2: A("s_waitcnt lgkmcnt(4)")
    A("s_waitcnt lgkmcnt(0)\ns_barrier")
    R = CB
    for ww in range(4):
        for mt in range(4):
            A(f"ds_read_b128 {vr(R + (ww*4+mt)*4)}, v{T[2]} offset:{ww*NS*4096 + mt*1024}")
        if ww == 2: A("s_waitcnt lgkmcnt(4)")
    B = ACC
    A.wait_vm("x")
    for k in range(8):
        A(f"v_lshlrev_b32 v{B+2*k}, 16, v{XR+k}")
        A(f"v_and_b32 v{B+2*k+1}, 0xffff0000, v{XR+k}")
    for j in range(2):
        A(f"s_and_b32 s{sT}, s{sK[j]}, 0xffff\ns_sub_u32 s{56+j}, 2047, s{sT}\ns_lshr_b32 s{sT}, s{56+j}, 4")
        A(f"s_cmp_eq_u32 s{sT}, s54\ns_cbranch_scc1 L_own{j}_{name}")
        A(f"L_ownr{j}_{name}:")
    A("s_waitcnt lgkmcnt(0)")
    G1 = GV + 2
    A(f"v_sub_f32 v{G1}, 1.0, v{GV}")
    rnd(A, G1)
    for k in range(8):
        a = R + 2*k
        A(f"v_pk_add_f32 v[{a}:{a+1}], v[{a}:{a+1}], v[{a+16}:{a+17}]")
        A(f"v_pk_add_f32 v[{a+32}:{a+33}], v[{a+32}:{a+33}], v[{a+48}:{a+49}]")
        A(f"v_pk_mul_f32 v[{B+2*k}:{B+2*k+1}], v[{B+2*k}:{B+2*k+1}], v[{G1}:{G1+1}] op_sel_hi:[1,0]")
        A(f"v_pk_add_f32 v[{a}:{a+1}], v[{a}:{a+1}], v[{a+32}:{a+33}]")
        A(f"v_cvt_pk_bf16_f32 v{B+2*k+1}, v{B+2*k}, v{B+2*k+1}")
        A(f"v_cvt_pk_bf16_f32 v{a+1}, v{a}, v{a+1}")
        A(f"v_lshlrev_b32 v{B+2*k}, 16, v{B+2*k+1}")
        A(f"v_lshlrev_b32 v{a}, 16, v{a+1}")
        A(f"v_and_b32 v{a+1}, 0xffff0000, v{a+1}")
        A(f"v_and_b32 v{B+2*k+1}, 0xffff0000, v{B+2*k+1}")
        A(f"v_pk_mul_f32 v[{a}:{a+1}], v[{a}:{a+1}], v[{GV}:{GV+1}] op_sel_hi:[1,0]")
        A(f"v_cvt_pk_bf16_f32 v{a+1}, v{a}, v{a+1}")
        A(f"v_lshlrev_b32 v{a}, 16, v{a+1}")
        A(f"v_and_b32 v{a+1}, 0xffff0000, v{a+1}")
        A(f"v_pk_add_f32 v[{a}:{a+1}], v[{a}:{a+1}], v[{B+2*k}:{B+2*k+1}]")
        A(f"v_cvt_pk_bf16_f32 v{XR+k}, v{a}, v{a+1}")
        if k & 1:
            mt = k >> 1
            A(f"buffer_store_dwordx2 v[{XR+2*mt}:{XR+2*mt+1}], v{vRow}, s[{sOut}:{sOut+3}], s55 offen offset:{mt*32}")
    if stampk is not None: stamp_end(A, stampk, sWS, sWv)
    A(f"L_end_{name}:\ns_endpgm")
    YA = ACC + 16; YL = 192
    for j in range(2):
        A(f"L_own{j}_{name}:")
        A(f"v_mov_b32 v{T[4]}, 0")
        A(f"s_mov_b32 s58, 0")
        A(f"L_spin{j}_{name}:")
        A(f"buffer_load_dword v{T[5]}, v{T[4]}, s[{sDbg}:{sDbg+3}], 0 offen sc0 sc1")
        A("s_waitcnt vmcnt(0)")
        A(f"v_readfirstlane_b32 s{sT}, v{T[5]}")
        A(f"s_cmp_ge_u32 s{sT}, {NF}\ns_cbranch_scc1 L_go{j}_{name}")
        A("s_sleep 8")
        A(f"s_add_u32 s58, s58, 1\ns_cmp_lt_u32 s58, 0x100000\ns_cbranch_scc1 L_spin{j}_{name}")
        A(f"L_go{j}_{name}:")
        A(f"s_mov_b32 s{sY}, s16\ns_and_b32 s{sY+1}, s17, 0xffff\ns_mov_b32 s{sY+2}, {WS_Y + NF*4096}\ns_mov_b32 s{sY+3}, 0x20000")
        A(f"v_and_b32 v{T[4]}, 15, v0")
        A(f"v_lshlrev_b32 v{T[5]}, 12, v{T[4]}")
        A(f"v_lshl_or_b32 v{T[5]}, v{T[0]}, 4, v{T[5]}")
        A(f"s_lshl_b32 s{sT}, s41, 8\ns_add_u32 s{sT}, s{sT}, {WS_Y + j*2048}")
        for q in range(4):
            for mt in range(4):
                A(f"buffer_load_dwordx4 {vr(YL + (q*4+mt)*4)}, v{T[5]}, s[{sY}:{sY+3}], s{sT} offen offset:{mt*64} sc0 sc1")
            A(f"s_add_u32 s{sT}, s{sT}, 65536")
        A(f"s_and_b32 s{sT}, s{sK[j]}, 0xffff0000")
        A(f"s_xor_b32 s59, s{sT}, 0x80000000\ns_xor_b32 s60, s{sT}, 0xffff0000")
        A(f"s_bitcmp1_b32 s{sT}, 31\ns_cselect_b32 s59, s59, s60")
        A(f"v_mov_b32 v{T[6]}, s59")
        A(f"v_mul_f32 v{T[6]}, 0xbfb8aa3b, v{T[6]}")
        A(f"v_exp_f32 v{T[6]}, v{T[6]}")
        A("s_nop 0")
        A(f"v_add_f32 v{T[6]}, 1.0, v{T[6]}")
        A(f"v_rcp_f32 v{T[6]}, v{T[6]}")
        A("s_nop 0")
        rnd(A, T[6])
        A(f"s_and_b32 s{sT}, s{56+j}, 15")
        A(f"v_cmp_eq_u32 vcc, s{sT}, v{T[4]}")
        A("s_waitcnt vmcnt(0)")
        for k in range(16):
            A(f"v_add_f32 v{YA+k}, v{YL+k}, v{YL+16+k}")
            A(f"v_add_f32 v{YL+32+k}, v{YL+32+k}, v{YL+48+k}")
        for k in range(16): A(f"v_add_f32 v{YA+k}, v{YA+k}, v{YL+32+k}")
        for dpp in ("quad_perm:[1,0,3,2]", "quad_perm:[2,3,0,1]", "row_half_mirror", "row_mirror"):
            for k in range(16): A(f"v_add_f32_dpp v{YA+k}, v{YA+k}, v{YA+k} {dpp} row_mask:0xf bank_mask:0xf")
        for k in range(16):
            rnd(A, YA+k)
            A(f"v_mul_f32 v{YA+k}, v{YA+k}, v{T[6]}")
            rnd(A, YA+k)
            A(f"v_add_f32 v{YA+k}, v{YA+k}, v{B+k}")
            rnd(A, YA+k)
            A(f"v_cndmask_b32 v{B+k}, v{B+k}, v{YA+k}, vcc")
        A(f"s_branch L_ownr{j}_{name}")
    gen_ffn(A, name)
    return A.text() + kdesc(name, 256, 256)
```

```python
import sys, json
sys.path.insert(0, "dev")
import hazard, k1, k2
def build(kw, stamps=True):
    ks = []
    hdr = ""
    body = ""
    hdr += "; @launch kernel=k1_kernel grid=(256,1,1) block=(256,1,1) lds=163840\n"
    body += k1.gen_k1("k1_kernel", stampk=0 if stamps else None, **kw.get("k1", {"st_flags": "sc1"}))
    hdr += "; @launch kernel=k2_kernel grid=(256,1,1) block=(256,1,1) lds=163840\n"
    body += k2.gen_k2("k2_kernel", stampk=1 if stamps else None, **kw.get("k2", {}))
    if kw.get("k3") is not None:
        import k3
        hdr += k3.launch("k3_kernel")
        body += k3.gen_k3("k3_kernel", stampk=2 if stamps else None, **kw["k3"])
    else:
        hdr += "; @launch kernel=nul_kernel grid=(256,1,1) block=(256,1,1) lds=0\n"
        body += k1.gen_nul("nul_kernel", 2)
    return hdr + '.amdgcn_target "amdgcn-amd-amdhsa--gfx950"\n.text\n' + body
if __name__ == "__main__":
    kw = json.loads(sys.argv[1])
    out = build(kw, stamps=not kw.get("nostamp"))
    open(sys.argv[2], "w").write(out)
    r = hazard.check(out)
    for x in r[:30]: print(x)
    print(len(r), "hazards", len(out), "bytes")
```

```python
class Asm:
    def __init__(self):
        self.L = []
        self.vm = []
        self.lg = []
    def __call__(self, s):
        for ln in s.split("\n"):
            self.L.append(ln)
    def text(self): return "\n".join(self.L) + "\n"
    def vmem(self, s, tag=None):
        if len(self.vm) >= 63 and getattr(self, 'auto', 0):
            self('s_waitcnt vmcnt(62)'); self.vm.pop(0); self.auto += 1
        self(s); self.vm.append(tag)
        assert len(self.vm) <= 63, "vmcnt overflow"
    def vm_wait_n(self, tags):
        last = -1
        for i, t in enumerate(self.vm):
            if t in tags: last = i
        if last < 0: return None
        return len(self.vm) - 1 - last
    def wait_vm(self, tags, emit=True):
        if not isinstance(tags, (set, list, tuple)): tags = [tags]
        n = self.vm_wait_n(set(tags))
        if n is None: return None
        self.vm = self.vm[len(self.vm) - n:] if n else []
        s = f"s_waitcnt vmcnt({n})"
        if emit: self(s)
        return s
    def lds(self, s, tag=None):
        self(s); self.lg.append(tag)
        assert len(self.lg) <= 15, "lgkmcnt overflow"
    def wait_lg(self, tags, emit=True):
        if not isinstance(tags, (set, list, tuple)): tags = [tags]
        tags = set(tags)
        last = -1
        for i, t in enumerate(self.lg):
            if t in tags: last = i
        if last < 0: return None
        n = len(self.lg) - 1 - last
        self.lg = self.lg[len(self.lg) - n:] if n else []
        s = f"s_waitcnt lgkmcnt({n})"
        if emit: self(s)
        return s

def kdesc(name, vgpr, accum, sgpr=102):
    return f""".section .rodata,"a"
.p2align 6
.amdhsa_kernel {name}
  .amdhsa_next_free_vgpr {vgpr}
  .amdhsa_next_free_sgpr {sgpr}
  .amdhsa_accum_offset {accum}
  .amdhsa_group_segment_fixed_size 0
  .amdhsa_kernarg_size 120
  .amdhsa_user_sgpr_count 2
  .amdhsa_user_sgpr_kernarg_segment_ptr 1
  .amdhsa_system_sgpr_workgroup_id_x 1
  .amdhsa_float_denorm_mode_32 3
.end_amdhsa_kernel
.text
"""

def khead(name):
    return f".p2align 8\n.globl {name}\n.type {name},@function\n{name}:"

def srd(A, d, ptr, nbytes):
    A(f"s_mov_b32 s{d}, s{ptr}")
    A(f"s_and_b32 s{d+1}, s{ptr+1}, 0xffff")
    A(f"s_mov_b32 s{d+2}, {nbytes}")
    A(f"s_mov_b32 s{d+3}, 0x20000")

def vr(b, n=4): return f"v[{b}:{b+n-1}]"
def ar(b, n=4): return f"a[{b}:{b+n-1}]"

KA = dict(x=0, ckv=8, wq=16, wuk=24, wuv=32, wo=40, bx=48, wr=56, wgate=64, wup=72, wdown=80, gatew=88, out=96, dbg=104, ws=112)
WS_K = 0
WS_V = 16 << 20
WS_CTX = 32 << 20
WS_R = 48 << 20
WS_G = WS_R + 8192
WS_Y = WS_R + 16384
WS_BYTES = 268435456

WS_STAMP = 49 << 20
WS_WO = 50 << 20
import os
CYC = int(os.environ.get('CYC', '0'))
SB = 68
def stamp(A, n, wait=True):
    A(f"{'s_memtime' if (CYC and n not in (0, 13)) else 's_memrealtime'} s[{SB+2*n}:{SB+2*n+1}]")
    if wait:
        A("s_waitcnt lgkmcnt(0)")
        A.lg = []
def stamp_begin(A):
    A(f"s_memrealtime s[{SB}:{SB+1}]")
    A(f"s_memtime s[{SB+28}:{SB+29}]")
    for i in range(SB+2, SB+28, 2): A(f"s_mov_b32 s{i}, 0")
def stamp_end(A, kidx, sWS, swave, drain=True):
    if drain: A("s_waitcnt vmcnt(0)")
    A(f"s_memtime s[{SB+30}:{SB+31}]")
    stamp(A, 13)
    A(f"s_lshl_b32 s100, s2, 2\ns_add_u32 s100, s100, s{swave}\ns_lshl_b32 s100, s100, 6")
    A(f"s_add_u32 s100, s100, {WS_STAMP + kidx*131072}")
    for n in range(16):
        A(f"v_mov_b32 v{n}, s{SB+2*n}")
    A("v_mov_b32 v16, 0")
    A("s_mov_b64 exec, 1")
    for q in range(4):
        A(f"buffer_store_dwordx4 v[{4*q}:{4*q+3}], v16, s[{sWS}:{sWS+3}], s100 offen offset:{16*q}")
```

```python
from asmlib import *
from collections import defaultdict

MF = "v_mfma_f32_16x16x32_bf16"

class Sched:
    def __init__(s, A):
        s.A = A; s.mf = []; s.fill = defaultdict(list)
    def mfma(s, text, need=()): s.mf.append((text, need))
    def at(s, gap, kind, text=None, tag=None): s.fill[gap].append((kind, text, tag))
    def emit_op(s, op):
        A = s.A; kind, text, tag = op
        if kind == "lds": A.lds(text, tag)
        elif kind == "vm": A.vmem(text, tag)
        elif kind == "wvm": A.wait_vm(tag)
        elif kind == "wlg": A.wait_lg(tag)
        elif kind == "fn": text()
        else: A(text)
    def emit(s):
        A = s.A
        for g in sorted(k for k in s.fill if k < 0):
            for op in s.fill[g]: s.emit_op(op)
        for m, (text, need) in enumerate(s.mf):
            if need: A.wait_lg(need)
            A(text)
            for op in s.fill.get(m, []): s.emit_op(op)
        for g in sorted(k for k in s.fill if k >= len(s.mf)):
            for op in s.fill[g]: s.emit_op(op)

def wave_reduce_add(A, v, t):
    for dpp in ("quad_perm:[1,0,3,2]", "quad_perm:[2,3,0,1]", "row_half_mirror", "row_mirror"):
        A("s_nop 1")
        A(f"v_add_f32_dpp v{v}, v{v}, v{v} {dpp} row_mask:0xf bank_mask:0xf")
    for sw in ("v_permlane16_swap_b32", "v_permlane32_swap_b32"):
        A(f"v_mov_b32 v{t}, v{v}")
        A("s_nop 1")
        A(f"{sw} v{v}, v{t}")
        A("s_nop 1")
        A(f"v_add_f32 v{v}, v{v}, v{t}")

def gen_k1(name, L=16, NB=6, st_flags="sc1", extra_start=6*64, store_start=9*64-32, store_step=10, stampk=None, pf="", pf2=None):
    A = Asm()
    A(khead(name))
    A(f"s_cmp_ge_u32 s2, 256\ns_cbranch_scc1 L_end_{name}")
    if "I" in pf:
        A("s_getpc_b64 s[62:63]")
        A("v_lshlrev_b32 v1, 6, v0")
        A("global_load_dword v35, v1, s[62:63]")
        if "J" in pf:
            A("v_add_u32 v1, 0x4000, v1")
            A("global_load_dword v36, v1, s[62:63]")
    if stampk is not None: stamp_begin(A)
    A("s_load_dwordx4 s[4:7], s[0:1], 0")
    A("s_load_dwordx4 s[8:11], s[0:1], 24")
    A("s_load_dwordx2 s[12:13], s[0:1], 56")
    A("s_load_dwordx2 s[14:15], s[0:1], 88")
    A("s_load_dwordx2 s[16:17], s[0:1], 112")
    A("v_lshrrev_b32 v1, 6, v0")
    A("v_and_b32 v0, 63, v0")
    A("v_readfirstlane_b32 s42, v1")
    A("s_and_b32 s40, s2, 31")
    A("s_lshr_b32 s41, s2, 5")
    vL = 0
    aW = list(range(2, 10))
    aV = list(range(10, 14))
    aC = [14, 15, 26, 27]
    dW = 16; dV = [17, 18]; dC = [19, 20]; vSt = 21
    t0, t1, t2, t3 = 22, 23, 24, 25
    A(f"v_lshrrev_b32 v{t0}, 4, v0")
    A(f"v_bfe_u32 v{t1}, v0, 2, 2")
    A(f"v_and_b32 v{t2}, 3, v0")
    A(f"v_and_b32 v{t3}, 1, v{t0}")
    A(f"v_lshl_or_b32 v{t3}, v{t3}, 2, v{t1}")
    A(f"v_lshlrev_b32 v{aW[0]}, 13, v{t0}")
    A(f"v_lshl_or_b32 v{aW[0]}, v{t1}, 8, v{aW[0]}")
    A(f"v_lshl_or_b32 v{aW[0]}, v{t3}, 5, v{aW[0]}")
    A(f"v_lshl_or_b32 v{aW[0]}, v{t2}, 3, v{aW[0]}")
    for d in range(1, 8): A(f"v_xor_b32 v{aW[d]}, {d<<5}, v{aW[0]}")
    A(f"v_lshrrev_b32 v{aV[0]}, 1, v{t0}")
    A(f"v_lshlrev_b32 v{aV[0]}, 13, v{aV[0]}")
    A(f"v_and_b32 v{t3}, 1, v{t0}")
    A(f"v_lshl_or_b32 v{aV[0]}, v{t3}, 10, v{aV[0]}")
    A(f"v_lshl_or_b32 v{aV[0]}, v{t1}, 7, v{aV[0]}")
    A(f"v_lshl_or_b32 v{aV[0]}, v{t3}, 6, v{aV[0]}")
    A(f"v_lshrrev_b32 v{t3}, 1, v{t1}")
    A(f"v_lshl_or_b32 v{aV[0]}, v{t3}, 5, v{aV[0]}")
    A(f"v_lshl_or_b32 v{aV[0]}, v{t2}, 3, v{aV[0]}")
    for d in range(1, 4): A(f"v_xor_b32 v{aV[d]}, {d<<5}, v{aV[0]}")
    A(f"v_and_b32 v{t1}, 15, v0")
    A(f"v_lshrrev_b32 v{t2}, 1, v{t1}")
    A(f"v_xor_b32 v{t2}, v{t2}, v{t0}")
    A(f"v_lshlrev_b32 v{aC[0]}, 7, v{t1}")
    A(f"v_lshl_or_b32 v{aC[0]}, v{t2}, 4, v{aC[0]}")
    A("s_lshl_b32 s43, s42, 13")
    A(f"v_add_u32 v{aC[0]}, s43, v{aC[0]}")
    A(f"v_add_u32 v{aC[0]}, 0x10000, v{aC[0]}")
    A(f"v_xor_b32 v{aC[1]}, 64, v{aC[0]}")
    A(f"v_add_u32 v{aC[2]}, 0x10000, v{aC[0]}")
    A(f"v_add_u32 v{aC[3]}, 0x10000, v{aC[1]}")
    A("s_and_b32 s44, s42, 1")
    A("s_lshl_b32 s44, s44, 3")
    A(f"v_lshlrev_b32 v{t2}, 1, v{t0}")
    A(f"v_xor_b32 v{t2}, v{t2}, v{t1}")
    A(f"v_xor_b32 v{t2}, s44, v{t2}")
    A(f"v_lshlrev_b32 v{dW}, 13, v{t0}")
    A(f"v_lshl_or_b32 v{dW}, v{t2}, 4, v{dW}")
    A(f"v_lshrrev_b32 v{t1}, 3, v0")
    A(f"v_and_b32 v{t2}, 7, v0")
    A(f"v_and_b32 v{t3}, 1, v{t0}")
    A(f"v_lshlrev_b32 v{t3}, 1, v{t3}")
    A(f"v_xor_b32 v{t3}, v{t3}, v{t2}")
    A(f"v_lshlrev_b32 v{dV[0]}, 13, v{t1}")
    A(f"v_lshl_or_b32 v{dV[0]}, v{t3}, 4, v{dV[0]}")
    A(f"v_xor_b32 v{dV[1]}, 64, v{dV[0]}")
    A(f"v_xor_b32 v{t3}, v{t2}, v{t0}")
    A(f"v_lshlrev_b32 v{dC[0]}, 10, v{t1}")
    A(f"v_lshl_or_b32 v{dC[0]}, v{t3}, 4, v{dC[0]}")
    A(f"v_xor_b32 v{dC[1]}, 64, v{dC[0]}")
    A(f"v_lshlrev_b32 v{vSt}, 4, v0")
    A("s_waitcnt lgkmcnt(0)")
    sX, sC, sK, sV, sWS, sR, sG = 20, 24, 28, 32, 36, 48, 52
    srd(A, sX, 4, 2048*1024); srd(A, sC, 6, 2048*1024)
    srd(A, sK, 8, 4096*1024); srd(A, sV, 10, 4096*1024)
    srd(A, sWS, 16, WS_BYTES); srd(A, sR, 12, 1024); srd(A, sG, 14, 1024)
    A("s_lshl_b32 s45, s41, 2\ns_add_u32 s45, s45, s42")
    A("s_lshl_b32 s46, s45, 16")
    A("s_lshl_b32 s47, s40, 8")
    A("s_lshl_b32 s56, s42, 16\ns_add_u32 s56, s56, s47")
    A("s_lshl_b32 s57, s42, 17\ns_add_u32 s57, s57, s47")
    A("s_lshl_b32 s58, s40, 6\ns_lshl_b32 s59, s45, 1\ns_add_u32 s58, s58, s59\ns_lshl_b32 s58, s58, 13")
    A("s_mov_b32 s64, 0x3e0293ee\ns_mov_b32 s65, 0x3e0293ee")
    A("s_lshl_b32 s60, s2, 2\ns_add_u32 s60, s60, s42\ns_lshl_b32 s61, s60, 11")
    RG = 64
    A.vmem(f"buffer_load_dwordx4 {vr(RG)}, v{vSt}, s[{sX}:{sX+3}], s61 offen", "rg")
    A.vmem(f"buffer_load_dwordx4 {vr(RG+4)}, v{vSt}, s[{sX}:{sX+3}], s61 offen offset:1024", "rg")
    A.vmem(f"buffer_load_dwordx4 {vr(RG+8)}, v{vSt}, s[{sR}:{sR+3}], 0 offen", "rg")
    A.vmem(f"buffer_load_dwordx4 {vr(RG+12)}, v{vSt}, s[{sG}:{sG+3}], 0 offen", "rg")

    S = Sched(A)
    def wslot(hs):
        if hs < 22: return ((hs % 8) >> 2, hs & 3)
        k = hs - 22
        return (2 + (k >> 2), k & 3)
    def dma_w(gap, hs, spread=1):
        b, t = wslot(hs)
        for j in range(2):
            lds = b*32768 + t*2048 + j*1024
            if hs < 16:
                goff = (hs*32 + 4*j) * 8192; base, vo, sr = 56, dW, sK
            else:
                c2, q = (hs-16) >> 3, (hs-16) & 7
                goff = (q*64 + 8*j) * 8192 + c2*128; base, vo, sr = 57, dV[j], sV
            g = gap + j*spread
            S.at(g, "s", f"s_add_u32 m0, s43, {lds}")
            S.at(g, "s", f"s_add_u32 s62, s{base}, {goff}")
            S.at(g, "vm", f"buffer_load_dwordx4 v{vo}, s[{sr}:{sr+3}], s62 offen lds", ("W", hs))
    def cblock(s): return 2 + ((s+1) % 3)
    def dma_c(gap, s, spread=2):
        for j in range(8):
            g = gap + j*spread
            S.at(g, "s", f"s_add_u32 m0, s43, {cblock(s)*32768 + j*1024}")
            S.at(g, "s", f"s_add_u32 s62, s46, {j*8192 + s*128}")
            S.at(g, "vm", f"buffer_load_dwordx4 v{dC[j&1]}, s[{sC}:{sC+3}], s62 offen lds", ("C", s))
    def creg(ks, tg): return (ks*4 + tg) * 4
    def read_c(gap, s, spread=4):
        S.at(gap, "wvm", tag=[("C", s)])
        n = 0
        for k2 in range(2):
            for tg in range(4):
                off = ((cblock(s)-2)&1)*32768 + tg*2048
                S.at(gap + n*spread, "lds", f"ds_read_b128 {ar(creg(2*s+k2, tg))}, v{aC[k2 + 2*((cblock(s)-2)>>1)]} offset:{off}", ("c", 2*s+k2, tg))
                n += 1
    g = -1000
    for (kind, idx) in [("C",0),("W",0),("W",1),("C",1),("W",2),("W",3),("C",2),("W",4),("W",5)]:
        if kind == "C": dma_c(g, idx, 1); g += 8
        else: dma_w(g, idx); g += 2
    def rg():
        A.wait_vm("rg")
        for tk in range(2):
            xr = RG + 4*tk; acc_r, acc_g = RG+16+2*tk, RG+17+2*tk
            tx, tw, tp = RG+24, RG+25, RG+26
            first = True
            for j in range(4):
                for hi in range(2):
                    if hi: A(f"v_and_b32 v{tx}, 0xffff0000, v{xr+j}")
                    else: A(f"v_lshlrev_b32 v{tx}, 16, v{xr+j}")
                    if hi: A(f"v_and_b32 v{tw}, 0xffff0000, v{RG+8+j}")
                    else: A(f"v_lshlrev_b32 v{tw}, 16, v{RG+8+j}")
                    if first: A(f"v_mul_f32 v{acc_r}, v{tx}, v{tw}")
                    else: A(f"v_fmac_f32 v{acc_r}, v{tx}, v{tw}")
                    if hi: A(f"v_and_b32 v{tw}, 0xffff0000, v{RG+12+j}")
                    else: A(f"v_lshlrev_b32 v{tw}, 16, v{RG+12+j}")
                    A(f"v_mul_f32 v{tp}, v{tx}, v{tw}")
                    A(f"v_cvt_pk_bf16_f32 v{tp}, v{tp}, v{tp}")
                    A(f"v_and_b32 v{tp}, 0xffff0000, v{tp}")
                    if first: A(f"v_mov_b32 v{acc_g}, v{tp}")
                    else: A(f"v_add_f32 v{acc_g}, v{acc_g}, v{tp}")
                    first = False
            wave_reduce_add(A, acc_r, tx)
            wave_reduce_add(A, acc_g, tx)
            A(f"v_cvt_pk_bf16_f32 v{acc_r}, v{acc_r}, v{acc_r}")
            A(f"v_ashrrev_i32 v{tx}, 31, v{acc_r}")
            A(f"v_or_b32 v{tx}, 0x80000000, v{tx}")
            A(f"v_xor_b32 v{acc_r}, v{acc_r}, v{tx}")
            A(f"v_and_b32 v{acc_r}, 0xffff0000, v{acc_r}")
            A(f"s_lshl_b32 s62, s60, 1\ns_sub_u32 s62, {2047 - tk}, s62")
            A(f"v_or_b32 v{acc_r}, s62, v{acc_r}")
            A(f"v_cvt_pk_bf16_f32 v{acc_g}, v{acc_g}, v{acc_g}")
            A(f"v_and_b32 v{acc_g}, 0xffff0000, v{acc_g}")
            A(f"v_mul_f32 v{acc_g}, 0xbfb8aa3b, v{acc_g}")
            A(f"v_exp_f32 v{acc_g}, v{acc_g}")
            A("s_nop 0")
            A(f"v_add_f32 v{acc_g}, 1.0, v{acc_g}")
            A(f"v_rcp_f32 v{acc_g}, v{acc_g}")
            A("s_nop 0")
            A(f"v_cvt_pk_bf16_f32 v{acc_g}, v{acc_g}, v{acc_g}")
            A(f"v_and_b32 v{acc_g}, 0xffff0000, v{acc_g}")
        A(f"v_mov_b32 v{RG+28}, v{RG+16}\nv_mov_b32 v{RG+29}, v{RG+18}")
        A(f"v_mov_b32 v{RG+30}, v{RG+17}\nv_mov_b32 v{RG+31}, v{RG+19}")
        A(f"v_mov_b32 v{RG+24}, 0")
        A("s_lshl_b32 s62, s60, 3")
        A(f"s_add_u32 s62, s62, {WS_R}")
        A("s_mov_b64 exec, 1")
        A.vmem(f"buffer_store_dwordx2 v[{RG+28}:{RG+29}], v{RG+24}, s[{sWS}:{sWS+3}], s62 offen", "rgs")
        A(f"s_add_u32 s62, s62, {WS_G-WS_R}")
        A.vmem(f"buffer_store_dwordx2 v[{RG+30}:{RG+31}], v{RG+24}, s[{sWS}:{sWS+3}], s62 offen", "rgs")
        A("s_mov_b64 exec, -1")
    def prefetch():
        d = 28
        if "w" in pf:
            A(f"v_lshrrev_b32 v{t1}, 2, v0")
            A(f"v_and_b32 v{t2}, 3, v0")
            A(f"v_lshlrev_b32 v{t1}, 13, v{t1}")
            A(f"v_lshl_or_b32 v{t1}, v{t2}, 6, v{t1}")
            A("s_lshl_b32 s62, s45, 17\ns_add_u32 s62, s62, s47")
            A.vmem(f"buffer_load_dword v{d}, v{t1}, s[{sK}:{sK+3}], s62 offen", "pf")
            A.vmem(f"buffer_load_dword v{d+1}, v{t1}, s[{sV}:{sV+3}], s62 offen", "pf")
        if "c" in pf:
            A(f"v_lshrrev_b32 v{t1}, 3, v0")
            A(f"v_and_b32 v{t2}, 7, v0")
            A(f"v_lshlrev_b32 v{t1}, 10, v{t1}")
            A(f"v_lshl_or_b32 v{t1}, v{t2}, 6, v{t1}")
            A("s_lshr_b32 s62, s40, 3\ns_lshl_b32 s63, s41, 2\ns_add_u32 s62, s62, s63\ns_lshl_b32 s62, s62, 2\ns_add_u32 s62, s62, s42\ns_lshl_b32 s62, s62, 14")
            A.vmem(f"buffer_load_dword v{d+2}, v{t1}, s[{sC}:{sC+3}], s62 offen offset:512", "pf")
            A("s_add_u32 s62, s62, 8192")
            A.vmem(f"buffer_load_dword v{d+3}, v{t1}, s[{sC}:{sC+3}], s62 offen offset:512", "pf")
        if "t" in pf:
            A(f"v_mov_b32 v{t1}, 0")
            A.vmem(f"buffer_load_dword v{d+4}, v{t1}, s[{sWS}:{sWS+3}], s58 offen", "pf")
            A(f"s_add_u32 s62, s58, {WS_V}")
            A.vmem(f"buffer_load_dword v{d+5}, v{t1}, s[{sWS}:{sWS+3}], s62 offen", "pf")
        if "i" in pf:
            A("s_getpc_b64 s[62:63]")
            A(f"L_pc_{name}:")
            A(f"s_sub_u32 s62, s62, L_pc_{name}-{name}")
            A("s_subb_u32 s63, s63, 0")
            A("s_bfe_u32 s66, s2, 0x10003\ns_lshl_b32 s66, s66, 2\ns_add_u32 s66, s66, s42\ns_lshl_b32 s66, s66, 12")
            A(f"v_lshlrev_b32 v{t1}, 6, v0")
            A(f"v_add_u32 v{t1}, s66, v{t1}")
            A.vmem(f"global_load_dword v{d+6}, v{t1}, s[62:63]", "pf")
    S.at(-950, "fn", prefetch)
    S.at(-900, "fn", rg)
    read_c(-800, 0, 1)
    S.at(-700, "wlg", tag=[("c", 1, 3)])
    dma_c(-600, 3, 1)
    FB = 40
    ACC1, ACC2 = 64, 192
    def acc(p, dt, tg):
        if p == 0: return ACC1 + (dt*4 + tg)*4
        if p == 1: return ACC2 + (dt*4 + tg)*4
        return ACC1 + (dt*4 + tg)*4
    win = 0
    for f in range(256):
        fb = FB + (f % NB)*4
        hs = f >> 3
        b, t = wslot(hs)
        if f < 128:
            p, ks, dt = 0, f >> 3, f & 7
            offs = [(b*32768 + t*2048 + pp*1024, aW[dt]) for pp in range(2)]
        else:
            f2 = f - 128
            p, ks, dt = 1 + (f2 >> 6), (f2 >> 2) & 15, f2 & 3
            w2 = b >> 1
            if w2 != win:
                for d in range(4): S.at(4*f - L - 1, "v", f"v_add_u32 v{aV[d]}, 0x10000, v{aV[d]}")
                win = w2
            offs = [((b&1)*32768 + (ks&1)*16384 + t*2048 + pp*512, aV[dt]) for pp in range(2)]
        if f % 8 == 0:
            gb = 4*f - L - 1
            S.at(gb, "wvm", tag=[("W", hs)])
            S.at(gb, "s", "s_barrier")
            if hs + 6 < 22: dma_w(gb + 3, hs + 6, 4)
        for pp in range(2):
            S.at(4*f - L + pp, "lds", f"ds_read_b64_tr_b16 v[{fb+2*pp}:{fb+2*pp+1}], v{offs[pp][1]} offset:{offs[pp][0]}", ("w", f))
        for tg in range(4):
            d = acc(p, dt, tg); c = vr(d) if ks else "0"
            need = [("w", f)] + ([("c", ks, tg)] if p == 0 else [])
            if p == 0: S.mfma(f"{MF} {vr(d)}, {vr(fb)}, {ar(creg(ks,tg))}, {c}", need)
            else: S.mfma(f"{MF} {vr(d)}, {ar(creg(ks,tg))}, {vr(fb)}, {c}", need)
    for s in range(1, 8):
        read_c(64*(s-1) + 6, s, 4)
        if s + 3 < 8:
            S.at(64*(s-1) + 46, "wlg", tag=[("c", 2*s+1, 3)])
            dma_c(64*(s-1) + 46, s + 3, 2)
    g = extra_start + 2
    for hs in range(22, 32):
        blk = wslot(hs)[0]
        g = max(g, 64*(blk + 3) + 2)
        dma_w(g, hs, 4); g += 12
    last_dma = g
    def drain(gap0, step, p):
        g = gap0
        items = []
        if p == 0:
            for ds in range(4):
                for tg in range(4):
                    items.append((acc(0, 2*ds, tg), acc(0, 2*ds+1, tg), WS_K + (tg >> 1)*8192 + ((tg & 1)*4 + ds)*1024))
        else:
            for dt in range(4):
                for u in range(2):
                    items.append((acc(p, dt, 2*u), acc(p, dt, 2*u+1), WS_V + u*8192 + ((p-1)*4 + dt)*1024))
        for (a0, a1, off) in items:
            if p == 0:
                for k, a in enumerate((a0, a0+2, a1, a1+2)):
                    S.at(g - 2 + (k >> 1), "v", f"v_pk_mul_f32 v[{a}:{a+1}], v[{a}:{a+1}], s[64:65]")
            S.at(g, "v", f"v_cvt_pk_bf16_f32 v{a0}, v{a0}, v{a0+1}")
            S.at(g, "v", f"v_cvt_pk_bf16_f32 v{a0+1}, v{a0+2}, v{a0+3}")
            S.at(g+1, "v", f"v_cvt_pk_bf16_f32 v{a0+2}, v{a1}, v{a1+1}")
            S.at(g+1, "v", f"v_cvt_pk_bf16_f32 v{a0+3}, v{a1+2}, v{a1+3}")
            S.at(g+2, "s", f"s_add_u32 s62, s58, {off}")
            S.at(g+2, "vm", f"buffer_store_dwordx4 {vr(a0)}, v{vSt}, s[{sWS}:{sWS+3}], s62 offen {st_flags}", "st")
            g += step
        return g
    e = drain(max(store_start, last_dma) + 2, store_step, 0)
    assert e <= 768 + 8, e
    drain(768 + 10, 12, 1)
    S.at(1024, "s", "s_nop 7")
    drain(1025, 3, 2)
    if stampk is not None:
        S.at(-901, "fn", lambda: stamp(A, 1))
        S.at(-899, "fn", lambda: stamp(A, 2))
        S.at(0, "fn", lambda: stamp(A, 3))
        S.at(512, "fn", lambda: stamp(A, 4))
        S.at(768, "fn", lambda: stamp(A, 5))
        S.at(1023, "fn", lambda: stamp(A, 6))
    S.emit()
    if stampk is not None: stamp_end(A, stampk, sWS, 42)
    A(f"L_end_{name}:\ns_endpgm")
    return A.text() + kdesc(name, 512, 256)

def gen_nul(name, kidx):
    A = Asm()
    A(khead(name))
    A(f"s_cmp_ge_u32 s2, 256\ns_cbranch_scc1 L_end_{name}")
    stamp_begin(A)
    A("s_load_dwordx2 s[16:17], s[0:1], 112")
    A("v_lshrrev_b32 v1, 6, v0\ns_nop 0\nv_readfirstlane_b32 s42, v1")
    A("s_waitcnt lgkmcnt(0)")
    srd(A, 36, 16, WS_BYTES)
    stamp_end(A, kidx, 36, 42)
    A(f"L_end_{name}:\ns_endpgm")
    return A.text() + kdesc(name, 64, 64)

if __name__ == "__main__":
    import hazard
    n = "k1_kernel"
    out = f"; @launch kernel={n} grid=(256,1,1) block=(256,1,1) lds=163840\n"
    out += '.amdgcn_target "amdgcn-amd-amdhsa--gfx950"\n.text\n'
    import sys, json
    kw = json.loads(sys.argv[1]) if len(sys.argv) > 1 else {}
    out = out.replace(".amdgcn", "; @launch kernel=nul_kernel grid=(256,1,1) block=(256,1,1) lds=0\n.amdgcn")
    out += gen_k1(n, stampk=0, **kw) + gen_nul("nul_kernel", 1)
    open(sys.argv[2] if len(sys.argv) > 2 else "k1.s", "w").write(out)
    r = hazard.check(out)
    for x in r[:20]: print(x)
    print(len(r), "hazards")
```

```python
from asmlib import *
from k1 import Sched, MF, wave_reduce_add
import k2
from k2 import S as S_, P, C, O, Kf, Vf, Q, Lr, ONES, NEGV, vSt, vA, vNM, vNMP, vNEG, vT, vPark
from k2 import sX, sW, sWS, sKV, sH, sI, sWv, sW8, sN, sSw, sA, sB, sT, sG, sEv, sTT, sRbA, sRbB, sRbP, sTri, sRet, sCtxA, sCtxB, sBad, sTmp, sRbS
from k2 import interval, hook_site, flush, gen_hook, gen_slow

sDbg = 4
sPO, sNW0, sM1, sM2, sCnt = 3, 14, 15, 16, 17
vPa, vPd = 28, 29

def srd2(A, d, nbytes):
    A(f"s_mov_b32 s{d+2}, {nbytes}")
    A(f"s_mov_b32 s{d+3}, 0x20000")
def srd3(A, d): A(f"s_and_b32 s{d+1}, s{d+1}, 0xffff")

def gen(name, L=16, NB=6, st_flags="sc1", extra_start=6*64, store_start=9*64-32, store_step=10, stampk=None, opt={},
        sig_hs=6, poll1=330, chk_hs=13, code_kb=64, pfk3=None, hmap=0, kv_flags=None, rot=1, dbg=''):
    A = Asm()
    ST = stampk is not None
    A(khead(name))
    A(f"s_cmp_ge_u32 s2, 256\ns_cbranch_scc1 L_end_{name}")
    sC, sK, sV, sR, sGw = 24, 28, 32, 48, 52
    A(f"s_load_dwordx2 s[{sC}:{sC+1}], s[0:1], 8")
    A(f"s_load_dwordx2 s[{sK}:{sK+1}], s[0:1], 24")
    A(f"s_load_dwordx2 s[{sX}:{sX+1}], s[0:1], 0")
    A(f"s_load_dwordx2 s[{sV}:{sV+1}], s[0:1], 32")
    A(f"s_load_dwordx2 s[{sR}:{sR+1}], s[0:1], 56")
    A(f"s_load_dwordx2 s[{sGw}:{sGw+1}], s[0:1], 88")
    A(f"s_load_dwordx2 s[{sWS}:{sWS+1}], s[0:1], 112")
    A(f"s_load_dwordx2 s[{sDbg}:{sDbg+1}], s[0:1], 104")
    A("s_load_dwordx2 s[12:13], s[0:1], 16")
    A("s_getpc_b64 s[62:63]")
    A("v_lshlrev_b32 v1, 6, v0")
    A.vmem("global_load_dword v30, v1, s[62:63]", "pf")
    A("s_bfe_u32 s44, s2, 0x20003")
    A(f"s_min_u32 s44, s44, {code_kb//16 - 2}\ns_add_u32 s44, s44, 1\ns_lshl_b32 s44, s44, 14")
    A("v_add_u32 v1, s44, v1")
    A.vmem("global_load_dword v31, v1, s[62:63]", "pf")
    if ST: stamp_begin(A)
    A("v_lshrrev_b32 v1, 6, v0")
    A("v_and_b32 v0, 63, v0")
    A(f"v_readfirstlane_b32 s{sWv}, v1")
    if hmap:
        A(f"s_and_b32 s{sH}, s2, 7\ns_lshl_b32 s{sH}, s{sH}, 2\ns_bfe_u32 s{sI}, s2, 0x20003\ns_or_b32 s{sH}, s{sH}, s{sI}")
    else:
        A(f"s_and_b32 s{sH}, s2, 31")
    A(f"s_lshr_b32 s{sI}, s2, 5")
    if kv_flags is None: kv_flags = st_flags
    aW = list(range(2, 10)); aV = list(range(10, 14)); aC = [14, 15, 26, 27]
    dW = 16; dV = [17, 18]; dC = [19, 20]
    t0, t1, t2, t3 = 22, 23, 24, 25
    A(f"v_lshrrev_b32 v{t0}, 4, v0")
    A(f"v_and_b32 v{t1}, 15, v0")
    A(f"s_lshl_b32 s{sW8}, s{sWv}, 13")
    A(f"s_and_b32 s44, s{sWv}, 1")
    A("s_lshl_b32 s44, s44, 3")
    A(f"v_lshlrev_b32 v{t2}, 1, v{t0}")
    A(f"v_xor_b32 v{t2}, v{t2}, v{t1}")
    A(f"v_xor_b32 v{t2}, s44, v{t2}")
    A(f"v_lshlrev_b32 v{dW}, 13, v{t0}")
    A(f"v_lshl_or_b32 v{dW}, v{t2}, 4, v{dW}")
    A(f"v_lshrrev_b32 v{t1}, 3, v0")
    A(f"v_and_b32 v{t2}, 7, v0")
    A(f"v_xor_b32 v{t3}, v{t2}, v{t0}")
    A(f"v_lshlrev_b32 v{dC[0]}, 10, v{t1}")
    A(f"v_lshl_or_b32 v{dC[0]}, v{t3}, 4, v{dC[0]}")
    A(f"v_xor_b32 v{dC[1]}, 64, v{dC[0]}")
    A(f"v_lshlrev_b32 v{vSt}, 4, v0")
    srd2(A, sC, 2048*1024); srd2(A, sK, 4096*1024); srd2(A, sX, 2048*1024); srd2(A, sV, 4096*1024)
    srd2(A, sWS, WS_BYTES); srd2(A, sR, 1024); srd2(A, sGw, 1024); srd2(A, sDbg, 256)
    A(f"s_lshl_b32 s45, s{sI}, 2\ns_add_u32 s45, s45, s{sWv}")
    A("s_lshl_b32 s46, s45, 16")
    A(f"s_lshl_b32 s47, s{sH}, 8")
    A(f"s_lshl_b32 s56, s{sWv}, 16\ns_add_u32 s56, s56, s47")
    A(f"s_lshl_b32 s57, s{sWv}, 17\ns_add_u32 s57, s57, s47")
    A(f"s_lshl_b32 s60, s2, 2\ns_add_u32 s60, s60, s{sWv}\ns_lshl_b32 s61, s60, 11")
    sRot, sCb, sWc = 101, 100, sTmp
    if rot == 1:
        A(f"s_lshr_b32 s{sRot}, s2, 2\ns_and_b32 s{sRot}, s{sRot}, 6\ns_add_u32 s{sRot}, s{sRot}, s2\ns_add_u32 s{sRot}, s{sRot}, s{sI}")
    elif rot == 2:
        A(f"s_lshr_b32 s{sRot}, s2, 2\ns_and_b32 s{sRot}, s{sRot}, 6\ns_add_u32 s{sRot}, s{sRot}, s{sI}")
    else: A(f"s_mov_b32 s{sRot}, 0")
    A(f"s_and_b32 s{sRot}, s{sRot}, 7\ns_lshl_b32 s{sRot}, s{sRot}, 7")
    A("s_waitcnt lgkmcnt(0)")
    for d in (sC, sK, sX, sV, sR, sGw, sWS, sDbg): srd3(A, d)
    RG = 64
    S = Sched(A)
    def weave(g, lines, per=2, kind="v"):
        n = 0
        for ln in lines:
            for x in ln.split("\n"):
                S.at(g + n // per, kind, x); n += 1
        return g + (n + per - 1) // per
    Q0 = 1024
    def wslot(hs):
        if hs < 22: return ((hs % 8) >> 2, hs & 3)
        if hs < 24: return (2, hs - 22)
        return (3 + ((hs >> 2) & 1 ^ 0 if False else (((hs - 24) >> 2) & 1)), hs & 3)
    sXs, sXl, sWb = 8, 9, 10
    busy = []
    def claim(reg, g0, g1):
        for (r, a, b) in busy: assert r != reg or g1 < a or g0 > b, (reg, g0, g1, a, b)
        busy.append((reg, g0, g1))
    def dma_w(gap, hs, spread=1):
        b, t = wslot(hs)
        sWc = 59 if 22 <= hs < 32 else sTmp
        claim(sWc, gap, gap + spread)
        if hs < 16: k0, ex, base, sr = hs*64, 0, 56, sK
        elif hs < 32: k0, ex, base, sr = ((hs-16) & 7)*128, ((hs-16) >> 3)*128, 57, sV
        else: k0, ex, base, sr = (hs-32)*64, 0, sWb, sW
        S.at(gap, "s", f"s_add_u32 s{sWc}, s{sRot}, {k0}")
        S.at(gap, "s", f"s_and_b32 s{sWc}, s{sWc}, 1023")
        S.at(gap, "s", f"s_lshl_b32 s{sWc}, s{sWc}, 12")
        S.at(gap, "s", f"s_add_u32 s{sWc}, s{sWc}, s{base}")
        if ex: S.at(gap, "s", f"s_add_u32 s{sWc}, s{sWc}, {ex}")
        for j in range(2):
            lds = b*32768 + t*2048 + j*1024
            vo = dV[j] if 16 <= hs < 32 else dW
            g = gap + j*spread
            S.at(g, "s", f"s_add_u32 m0, s{sW8}, {lds}")
            if j: S.at(g, "s", f"s_add_u32 s{sWc}, s{sWc}, {(8 if 16 <= hs < 32 else 4)*8192}")
            else: S.at(g, "s", "s_nop 0")
            S.at(g, "vm", f"buffer_load_dwordx4 v{vo}, s[{sr}:{sr+3}], s{sWc} offen lds", ("W", hs))
    def cblock(s): return 2 + ((s+1) % 3) if s < 8 else (s - 8 + 1) % 3
    def dma_c(gap, s, spread=2):
        claim(sCb, gap, gap + 7*spread)
        S.at(gap, "s", f"s_add_u32 s{sCb}, s{sRot}, {(s & 7)*128}")
        S.at(gap, "s", f"s_and_b32 s{sCb}, s{sCb}, 1023")
        for j in range(8):
            g = gap + j*spread
            S.at(g, "s", f"s_add_u32 m0, s{sW8}, {cblock(s)*32768 + j*1024}")
            if j == 0: S.at(g, "s", f"s_add_u32 s{sCb}, s{sCb}, s{46 if s < 8 else sXs}")
            elif j == 4 and s >= 8: S.at(g, "s", f"s_add_u32 s{sCb}, s{sCb}, s{sXl}")
            else: S.at(g, "s", f"s_add_u32 s{sCb}, s{sCb}, 8192")
            sr = sC if s < 8 else sX
            S.at(g, "vm", f"buffer_load_dwordx4 v{dC[j&1]}, s[{sr}:{sr+3}], s{sCb} offen lds", ("C", s))
    def creg(ks, tg): return ((ks & 15)*4 + tg) * 4
    def read_c(gap, s, spread=4):
        S.at(gap, "wvm", tag=[("C", s)])
        n = 0
        cb = cblock(s) - (2 if s < 8 else 0)
        for k2_ in range(2):
            for tg in range(4):
                off = (cb & 1)*32768 + tg*2048
                S.at(gap + n*spread, "lds", f"ds_read_b128 {ar(creg(2*s+k2_, tg))}, v{aC[k2_ + 2*(cb>>1)]} offset:{off}", ("c", 2*s+k2_, tg))
                n += 1
    g = -1000
    for (kind, idx) in [("C",0),("W",0),("W",1),("R",0),("C",1),("W",2),("W",3),("C",2),("W",4),("W",5)]:
        if kind == "C": dma_c(g, idx, 1); g += 8
        elif kind == "W": dma_w(g, idx); g += 2
        else:
            S.at(g, "vm", f"buffer_load_dwordx4 {vr(RG)}, v{vSt}, s[{sX}:{sX+3}], s61 offen", "rg")
            S.at(g, "vm", f"buffer_load_dwordx4 {vr(RG+4)}, v{vSt}, s[{sX}:{sX+3}], s61 offen offset:1024", "rg")
            S.at(g, "vm", f"buffer_load_dwordx4 {vr(RG+8)}, v{vSt}, s[{sR}:{sR+3}], 0 offen", "rg")
            S.at(g, "vm", f"buffer_load_dwordx4 {vr(RG+12)}, v{vSt}, s[{sGw}:{sGw+3}], 0 offen", "rg")
            g += 1
    def consts_a():
        A(f"v_bfe_u32 v{t1}, v0, 2, 2")
        A(f"v_and_b32 v{t2}, 3, v0")
        A(f"v_and_b32 v{t3}, 1, v{t0}")
        A(f"v_lshl_or_b32 v{t3}, v{t3}, 2, v{t1}")
        A(f"v_lshlrev_b32 v{aW[0]}, 13, v{t0}")
        A(f"v_lshl_or_b32 v{aW[0]}, v{t1}, 8, v{aW[0]}")
        A(f"v_lshl_or_b32 v{aW[0]}, v{t3}, 5, v{aW[0]}")
        A(f"v_lshl_or_b32 v{aW[0]}, v{t2}, 3, v{aW[0]}")
        for d in range(1, 8): A(f"v_xor_b32 v{aW[d]}, {d<<5}, v{aW[0]}")
        A(f"v_lshrrev_b32 v{aV[0]}, 1, v{t0}")
        A(f"v_lshlrev_b32 v{aV[0]}, 13, v{aV[0]}")
        A(f"v_and_b32 v{t3}, 1, v{t0}")
        A(f"v_lshl_or_b32 v{aV[0]}, v{t3}, 10, v{aV[0]}")
        A(f"v_lshl_or_b32 v{aV[0]}, v{t1}, 7, v{aV[0]}")
        A(f"v_lshl_or_b32 v{aV[0]}, v{t3}, 6, v{aV[0]}")
        A(f"v_lshrrev_b32 v{t3}, 1, v{t1}")
        A(f"v_lshl_or_b32 v{aV[0]}, v{t3}, 5, v{aV[0]}")
        A(f"v_lshl_or_b32 v{aV[0]}, v{t2}, 3, v{aV[0]}")
        for d in range(1, 4): A(f"v_xor_b32 v{aV[d]}, {d<<5}, v{aV[0]}")
        A(f"v_and_b32 v{t1}, 15, v0")
        A(f"v_lshrrev_b32 v{t2}, 1, v{t1}")
        A(f"v_xor_b32 v{t2}, v{t2}, v{t0}")
        A(f"v_lshlrev_b32 v{aC[0]}, 7, v{t1}")
        A(f"v_lshl_or_b32 v{aC[0]}, v{t2}, 4, v{aC[0]}")
        A(f"v_add_u32 v{aC[0]}, s{sW8}, v{aC[0]}")
        A(f"v_add_u32 v{aC[0]}, 0x10000, v{aC[0]}")
        A(f"v_xor_b32 v{aC[1]}, 64, v{aC[0]}")
        A(f"v_add_u32 v{aC[2]}, 0x10000, v{aC[0]}")
        A(f"v_add_u32 v{aC[3]}, 0x10000, v{aC[1]}")
        A(f"v_lshrrev_b32 v{t1}, 3, v0")
        A(f"v_and_b32 v{t2}, 7, v0")
        A(f"v_and_b32 v{t3}, 1, v{t0}")
        A(f"v_lshlrev_b32 v{t3}, 1, v{t3}")
        A(f"v_xor_b32 v{t3}, v{t3}, v{t2}")
        A(f"v_lshlrev_b32 v{dV[0]}, 13, v{t1}")
        A(f"v_lshl_or_b32 v{dV[0]}, v{t3}, 4, v{dV[0]}")
        A(f"v_xor_b32 v{dV[1]}, 64, v{dV[0]}")
        A(f"s_lshl_b32 s58, s{sH}, 6\ns_lshl_b32 s63, s45, 1\ns_add_u32 s58, s58, s63\ns_lshl_b32 s58, s58, 13")
        A("s_mov_b32 s64, 0x3e0293ee\ns_mov_b32 s65, 0x3e0293ee")
        A(f"s_lshl_b32 s{sXs}, s{sI}, 17")
        A(f"s_lshl_b32 s44, s{sWv}, 15")
        A(f"s_lshl_b32 s{sXl}, s{sI}, 18")
        A(f"s_sub_u32 s{sXl}, {(15<<17) - 3*8192}, s{sXl}")
        A(f"s_add_u32 s{sXs}, s{sXs}, s44")
        A(f"s_mov_b32 s{sWb}, s56")
        A(f"s_lshl_b32 s11, s{sWv}, 12")
        A(f"s_cmp_eq_u32 s{sWv}, 0")
        A(f"s_cselect_b32 s{sPO}, 0, 0x1000")
        A(f"s_cselect_b32 s{sNW0}, 0, -1")
        A(f"s_and_b32 s44, s{sH}, 24")
        A(f"s_lshl_b32 s{sM1}, 1, s44")
        A(f"s_lshr_b32 s63, s{sI}, 1\ns_lshr_b32 s{sM2}, 255, s63\ns_lshl_b32 s{sM2}, s{sM2}, s44")
        A(f"s_and_b32 s44, s{sH}, 7\ns_lshl_b32 s44, s44, 4\ns_add_u32 s44, s44, 8")
        A(f"v_mov_b32 v{vPa}, s44")
    def rg():
        A.wait_vm("rg")
        for tk in range(2):
            xr = RG + 4*tk; acc_r, acc_g = RG+16+2*tk, RG+17+2*tk
            tx, tw, tp = RG+24, RG+25, RG+26
            first = True
            for j in range(4):
                for hi in range(2):
                    if hi: A(f"v_and_b32 v{tx}, 0xffff0000, v{xr+j}")
                    else: A(f"v_lshlrev_b32 v{tx}, 16, v{xr+j}")
                    if hi: A(f"v_and_b32 v{tw}, 0xffff0000, v{RG+8+j}")
                    else: A(f"v_lshlrev_b32 v{tw}, 16, v{RG+8+j}")
                    if first: A(f"v_mul_f32 v{acc_r}, v{tx}, v{tw}")
                    else: A(f"v_fmac_f32 v{acc_r}, v{tx}, v{tw}")
                    if hi: A(f"v_and_b32 v{tw}, 0xffff0000, v{RG+12+j}")
                    else: A(f"v_lshlrev_b32 v{tw}, 16, v{RG+12+j}")
                    A(f"v_mul_f32 v{tp}, v{tx}, v{tw}")
                    A(f"v_cvt_pk_bf16_f32 v{tp}, v{tp}, v{tp}")
                    A(f"v_and_b32 v{tp}, 0xffff0000, v{tp}")
                    if first: A(f"v_mov_b32 v{acc_g}, v{tp}")
                    else: A(f"v_add_f32 v{acc_g}, v{acc_g}, v{tp}")
                    first = False
            wave_reduce_add(A, acc_r, tx)
            wave_reduce_add(A, acc_g, tx)
            A(f"v_cvt_pk_bf16_f32 v{acc_r}, v{acc_r}, v{acc_r}")
            A(f"v_ashrrev_i32 v{tx}, 31, v{acc_r}")
            A(f"v_or_b32 v{tx}, 0x80000000, v{tx}")
            A(f"v_xor_b32 v{acc_r}, v{acc_r}, v{tx}")
            A(f"v_and_b32 v{acc_r}, 0xffff0000, v{acc_r}")
            A(f"s_lshl_b32 s62, s60, 1\ns_sub_u32 s62, {2047 - tk}, s62")
            A(f"v_or_b32 v{acc_r}, s62, v{acc_r}")
            A(f"v_cvt_pk_bf16_f32 v{acc_g}, v{acc_g}, v{acc_g}")
            A(f"v_and_b32 v{acc_g}, 0xffff0000, v{acc_g}")
            A(f"v_mul_f32 v{acc_g}, 0xbfb8aa3b, v{acc_g}")
            A(f"v_exp_f32 v{acc_g}, v{acc_g}")
            A("s_nop 0")
            A(f"v_add_f32 v{acc_g}, 1.0, v{acc_g}")
            A(f"v_rcp_f32 v{acc_g}, v{acc_g}")
            A("s_nop 0")
            A(f"v_cvt_pk_bf16_f32 v{acc_g}, v{acc_g}, v{acc_g}")
            A(f"v_and_b32 v{acc_g}, 0xffff0000, v{acc_g}")
        A(f"v_mov_b32 v{RG+28}, v{RG+16}\nv_mov_b32 v{RG+29}, v{RG+18}")
        A(f"v_mov_b32 v{RG+30}, v{RG+17}\nv_mov_b32 v{RG+31}, v{RG+19}")
        A(f"v_mov_b32 v{RG+24}, 0")
        A("s_lshl_b32 s62, s60, 3")
        A(f"s_add_u32 s62, s62, {WS_R}")
        A("s_mov_b64 exec, 1")
        A.vmem(f"buffer_store_dwordx2 v[{RG+28}:{RG+29}], v{RG+24}, s[{sWS}:{sWS+3}], s62 offen", "rgs")
        A(f"s_add_u32 s62, s62, {WS_G-WS_R}")
        A.vmem(f"buffer_store_dwordx2 v[{RG+30}:{RG+31}], v{RG+24}, s[{sWS}:{sWS+3}], s62 offen", "rgs")
        A("s_mov_b64 exec, -1")
    S.at(-950, "fn", consts_a)
    S.at(-900, "fn", rg)
    read_c(-800, 0, 1)
    S.at(-700, "wlg", tag=[("c", 1, 3)])
    dma_c(-600, 3, 1)
    FB = 40
    ACC1, ACC2 = 64, 192
    def acc(p, dt, tg):
        if p == 0: return ACC1 + (dt*4 + tg)*4
        if p == 1: return ACC2 + (dt*4 + tg)*4
        if p == 2: return ACC1 + (dt*4 + tg)*4
        return O(dt, tg)
    win = 0
    gb = lambda hs: 32*hs - L - 1
    for f in range(384):
        fb = FB + (f % NB)*4
        hs = f >> 3
        b, t = wslot(hs)
        if f < 128:
            p, ks, dt = 0, f >> 3, f & 7
            offs = [(b*32768 + t*2048 + pp*1024, aW[dt]) for pp in range(2)]
        elif f < 256:
            f2 = f - 128
            p, ks, dt = 1 + (f2 >> 6), (f2 >> 2) & 15, f2 & 3
            w2 = b >> 1
            if w2 != win:
                for d in range(4): S.at(4*f - L - 1, "v", f"v_add_u32 v{aV[d]}, 0x10000, v{aV[d]}")
                win = w2
            offs = [((b&1)*32768 + (ks&1)*16384 + t*2048 + pp*512, aV[dt]) for pp in range(2)]
        else:
            p, ks, dt = 3, 16 + ((f - 256) >> 3), f & 7
            offs = [((b-3)*32768 + t*2048 + pp*1024, aW[dt]) for pp in range(2)]
        if f % 8 == 0:
            S.at(gb(hs), "wvm", tag=[("W", hs)])
            if hs == 32 + sig_hs: S.at(gb(hs), "wvm", tag=["st"])
            if hs == 32 + chk_hs: S.at(gb(hs), "fn", lambda: check(0, sM1))
            if not ('b' in dbg and 17 <= hs < 32): S.at(gb(hs), "s", "s_barrier")
            if hs + 6 < 22 or 32 <= hs + 6 < 48: dma_w(gb(hs) + 3, hs + 6, 4)
        for pp in range(2):
            if 'r' in dbg and 128 <= f < 256 and (f & 3): continue
            S.at(4*f - L + pp, "lds", f"ds_read_b64_tr_b16 v[{fb+2*pp}:{fb+2*pp+1}], v{offs[pp][1]} offset:{offs[pp][0]}", ("w", f))
        for tg in range(4):
            d = acc(p, dt, tg); c = vr(d) if (ks & 15) else "0"
            need = [("w", f)] + ([("c", ks, tg)] if p in (0, 3) else [])
            if p in (0, 3): S.mfma(f"{MF} {vr(d)}, {vr(fb)}, {ar(creg(ks,tg))}, {c}", need)
            else: S.mfma(f"{MF} {vr(d)}, {ar(creg(ks,tg))}, {vr(fb)}, {c}", need)
    for s in range(1, 8):
        read_c(64*(s-1) + 6, s, 4)
        if s + 3 < 8:
            S.at(64*(s-1) + 46, "wlg", tag=[("c", 2*s+1, 3)])
            dma_c(64*(s-1) + 46, s + 3, 2)
    g = extra_start + 2
    for hs in range(22, 32):
        blk = wslot(hs)[0]
        g = max(g, 64*(blk + 3) + 2)
        dma_w(g, hs, 4); g += 12
    last_dma = g
    def drain(gap0, step, p):
        g = gap0
        items = []
        if p == 0:
            for ds in range(4):
                for tg in range(4):
                    items.append((acc(0, 2*ds, tg), acc(0, 2*ds+1, tg), WS_K + (tg >> 1)*8192 + ((tg & 1)*4 + ds)*1024))
        else:
            for dt in range(4):
                for u in range(2):
                    items.append((acc(p, dt, 2*u), acc(p, dt, 2*u+1), WS_V + u*8192 + ((p-1)*4 + dt)*1024))
        for (a0, a1, off) in items:
            if p == 0:
                for k, a in enumerate((a0, a0+2, a1, a1+2)):
                    S.at(g - 2 + (k >> 1), "v", f"v_pk_mul_f32 v[{a}:{a+1}], v[{a}:{a+1}], s[64:65]")
            S.at(g, "v", f"v_cvt_pk_bf16_f32 v{a0}, v{a0}, v{a0+1}")
            S.at(g, "v", f"v_cvt_pk_bf16_f32 v{a0+1}, v{a0+2}, v{a0+3}")
            S.at(g+1, "v", f"v_cvt_pk_bf16_f32 v{a0+2}, v{a1}, v{a1+1}")
            S.at(g+1, "v", f"v_cvt_pk_bf16_f32 v{a0+3}, v{a1+2}, v{a1+3}")
            S.at(g+2, "s", f"s_add_u32 s62, s58, {off}")
            if not ('s' in dbg and p < 2): S.at(g+2, "vm", f"buffer_store_dwordx4 {vr(a0)}, v{vSt}, s[{sWS}:{sWS+3}], s62 offen {kv_flags}", "st")
            g += step
        return g
    e = drain(max(store_start, last_dma) + 2, store_step, 0)
    assert e <= 768 + 8, e
    drain(768 + 10, 12, 1)
    e2 = drain(Q0 + 2, 4, 2)
    weave(520, [f"s_mov_b32 s{sW}, s12", f"s_and_b32 s{sW+1}, s13, 0xffff", f"s_mov_b32 s{sW+2}, {4096*1024}"] +
          [f"v_add_u32 v{aW[d]}, 0x18000, v{aW[d]}" for d in range(8)] +
          [f"v_subrev_u32 v{aC[d]}, 0x10000, v{aC[d]}" for d in range(4)], 1)
    g = weave(last_dma + 20, [f"v_lshrrev_b32 v{t1}, 2, v0", f"v_and_b32 v{t2}, 3, v0", f"v_lshlrev_b32 v{t1}, 13, v{t1}",
                         f"v_lshl_or_b32 v{t1}, v{t2}, 6, v{t1}", "s_lshl_b32 s63, s45, 17", "s_add_u32 s63, s63, s47"], 1)
    S.at(g + 1, "vm", f"buffer_load_dword v30, v{t1}, s[{sW}:{sW+3}], s63 offen", "pf")
    dma_c(gb(23) + 2, 8, 3)
    dma_c(gb(25) + 2, 9, 3)
    dma_c(gb(27) + 10, 10, 3)
    for s in range(8, 16):
        b = Q0 + 64*(s-9)
        read_c(b + 6, s, 4)
        S.at(b + 46, "wlg", tag=[("c", 2*s+1, 3)])
        if s + 3 < 16: dma_c(b + 46, s + 3, 2)
    cq = []
    cq += [f"v_and_b32 v{t1}, 15, v0", f"v_lshlrev_b32 v{t2}, 2, v{t0}", f"v_sub_u32 v{t2}, v{t1}, v{t2}"]
    cq += [f"v_cmp_le_i32 s[{sTri[r]}:{sTri[r]+1}], {r}, v{t2}" for r in range(4)]
    cq += [f"s_lshr_b32 s{sT}, s{sWv}, 1\ns_lshl_b32 s{sT}, s{sT}, 24",
        f"s_lshl_b32 s{sG}, s{sH}, 19\ns_add_u32 s{sG}, s{sG}, s{sT}",
        f"s_lshl_b32 s{sT}, s{sI}, 15\ns_sub_u32 s{sT}, {64*8192}, s{sT}",
        f"s_mov_b32 s{sKV}, s{sWS}\ns_mov_b32 s{sKV+1}, s{sWS+1}\ns_add_u32 s{sKV+2}, s{sG}, s{sT}\ns_mov_b32 s{sKV+3}, 0x20000",
        f"s_and_b32 s{sT}, s{sWv}, 1\ns_lshl_b32 s{sT}, s{sT}, 12\ns_add_u32 s{sG}, s{sG}, s{sT}",
        f"s_lshl_b32 s{sTT}, s{sI}, 2\ns_add_u32 s{sRbA}, s{sTT}, s{sWv}",
        f"s_sub_u32 s{sRbB}, 60, s{sTT}\ns_xor_b32 s{sRbP}, s{sWv}, 1\ns_add_u32 s{sRbP}, s{sRbP}, s{sRbB}\ns_add_u32 s{sRbB}, s{sRbB}, s{sWv}",
        f"s_add_u32 s{sTT}, s{sTT}, 4\ns_mov_b32 s{sRbS}, s{sRbA}",
        f"s_and_b32 s{sT}, s{sWv}, 2\ns_add_u32 s{sSw}, s{sTT}, s{sT}\ns_sub_u32 s{sSw}, s{sSw}, 2",
        f"s_mov_b32 s{sEv}, 63\ns_mov_b32 s{sEv+1}, 0",
        f"s_lshl_b64 s[{sEv}:{sEv+1}], s[{sEv}:{sEv+1}], s{sTT}",
        f"s_lshr_b64 s[{sEv}:{sEv+1}], s[{sEv}:{sEv+1}], 5",
        f"s_or_b32 s{sEv}, s{sEv}, 0x80000000\ns_or_b32 s{sEv+1}, s{sEv+1}, 1",
        (f"s_mov_b64 s[{sEv}:{sEv+1}], 0\n" if 'h' in dbg else "") + f"s_mov_b32 s{sN}, 0\ns_mov_b32 s{sA}, 16384",
        f"s_and_b32 s{sT}, s{sWv}, 1\ns_add_u32 s{sT}, s{sT}, 2\ns_sub_u32 s{sT}, s{sT}, s{sTT}\ns_lshl_b32 s{sB}, s{sT}, 14",
        f"s_lshl_b32 s{sT}, s{sH}, 12\ns_add_u32 s{sT}, s{sT}, {WS_CTX}",
        f"s_lshl_b32 s{sCtxA}, s{sRbA}, 18\ns_add_u32 s{sCtxA}, s{sCtxA}, s{sT}",
        f"s_lshl_b32 s{sCtxB}, s{sRbB}, 18\ns_add_u32 s{sCtxB}, s{sCtxB}, s{sT}",
        f"s_mov_b64 s[{sBad}:{sBad+1}], 0\ns_mov_b64 s[{sBad+2}:{sBad+3}], 0",
        f"s_lshl_b32 s{sT}, s{sM1}, s{sI}", f"v_mov_b32 v31, s{sT}"]
    ge = weave(e2 + 4, cq, 1)
    assert ge < gb(32 + sig_hs) - 4, ge
    S.at(gb(32 + sig_hs) + 1, "s", "s_mov_b64 exec, 1")
    S.at(gb(32 + sig_hs) + 1, "vm", f"buffer_atomic_or v31, v{vPa}, s[{sDbg}:{sDbg+3}], s{sPO} offen sc1", "sig")
    S.at(gb(32 + sig_hs) + 1, "s", "s_mov_b64 exec, -1")
    def poll(): A.vmem(f"buffer_load_dword v{vPd}, v{vPa}, s[{sDbg}:{sDbg+3}], s{sPO} offen sc0 sc1", "poll")
    def check(k, sm):
        A.wait_vm("poll")
        A(f"v_readfirstlane_b32 s{sT}, v{vPd}")
        A(f"s_mov_b32 s{sCnt}, s{sm}")
        A(f"s_or_b32 s{sT}, s{sT}, s{sNW0}")
        A(f"s_and_b32 s{sT}, s{sT}, s{sm}")
        A(f"s_cmp_lg_u32 s{sT}, s{sm}")
        A(f"s_cbranch_scc1 L_pstub{k}_{name}")
        A(f"L_pback{k}_{name}:")
    S.at(Q0 + poll1, "fn", poll)
    def dma_kv(gap, u, spread=2):
        for r in (sTmp, sCb): claim(r, gap, gap + 1 + 3*spread)
        S.at(gap, "s", f"s_add_u32 m0, s11, {u*16384}")
        S.at(gap, "s", f"s_add_u32 s{sTmp}, s{sG}, {u*8192}")
        for j in range(4):
            S.at(gap + 1 + j*spread, "vm", f"buffer_load_dwordx4 v{vSt}, s[{sKV}:{sKV+3}], s{sTmp} offen offset:{j*1024} lds", ("KV", u))
    g = gb(32 + chk_hs) + 2
    free = {0: gb(42), 1: gb(42), 2: gb(44), 3: gb(44), 4: gb(46), 5: gb(46), 6: gb(46)}
    for u in range(7):
        g = max(g, free[u] + 2)
        dma_kv(g, u); g += 10
    S.at(g, "fn", poll)
    assert g < Q0 + 505
    for ds in range(4):
        g = Q0 + 480 + 8*ds + 8 + 3
        for tg in range(4):
            a0, a1 = O(2*ds, tg), O(2*ds+1, tg)
            S.at(g, "v", f"v_cvt_pk_bf16_f32 v{a0}, v{a0}, v{a0+1}")
            S.at(g, "v", f"v_cvt_pk_bf16_f32 v{a0+1}, v{a0+2}, v{a0+3}")
            S.at(g, "v", f"v_cvt_pk_bf16_f32 v{a0+2}, v{a1}, v{a1+1}")
            S.at(g, "v", f"v_cvt_pk_bf16_f32 v{a0+3}, v{a1+2}, v{a1+3}")
            for r in range(4): S.at(g+1, "v", f"v_accvgpr_write_b32 a{Q(tg,ds)+r}, v{a0+r}")
            g += 2
    S.at(Q0 + 512, "s", "s_nop 4")
    if ST:
        S.at(-901, "fn", lambda: stamp(A, 1))
        S.at(0, "fn", lambda: stamp(A, 2))
        S.at(512, "fn", lambda: stamp(A, 3))
        S.at(768, "fn", lambda: stamp(A, 4))
        S.at(Q0, "fn", lambda: stamp(A, 5))
        S.at(gb(32 + sig_hs) + 2, "fn", lambda: stamp(A, 6))
        S.at(gb(32 + chk_hs) + 1, "fn", lambda: stamp(A, 7))
        S.at(Q0 + 511, "fn", lambda: stamp(A, 8))
    S.at(Q0 + 507, "wlg", tag=[("w", 383)])
    S.at(Q0 + 507, "wvm", tag=[("KV", 1)])
    S.at(Q0 + 507, "s", "s_barrier")
    S.at(Q0 + 508, "v", f"v_mov_b32 v{vA[0]}, v{vSt}")
    S.at(Q0 + 508, "v", f"v_add_u32 v{vA[1]}, 0x4000, v{vSt}")
    for f in range(8): S.at(Q0 + 509 + (f >> 2), "lds", f"ds_read_b128 {ar(Kf(f))}, v{vSt} offset:{f*1024}", ("k", f))
    S.emit()
    S = S_
    A(f"s_add_u32 s{sT}, s{sW8}, 0x20000")
    A(f"v_add_u32 v{vPark}, s{sT}, v{vSt}")
    for q in range(2):
        for ds in range(4):
            A.lds(f"ds_write_b128 v{vPark}, {vr(O(2*ds, 2+q))} offset:{(q*4+ds)*1024}", "pk")
            if len(A.lg) >= 14: A.wait_lg([("k", 7)])
    A(f"v_xor_b32 v{vPark}, 0x2000, v{vPark}")
    A(f"v_mov_b32 v{vNEG}, {NEGV}")
    A(f"v_mov_b32 v{vT[0]}, 0x3f803f80")
    for r in range(4): A(f"v_accvgpr_write_b32 a{ONES+r}, v{vT[0]}")
    A("s_waitcnt lgkmcnt(0)"); A.lg = []
    z = [f"v_mov_b64 v[{128+2*k}:{129+2*k}], 0" for k in range(64)] + [f"v_accvgpr_write_b32 a{Lr(0)+k}, 0" for k in range(16)]
    for kt in range(2):
        for ds in range(4):
            for qg in range(4):
                cc = "0" if ds == 0 else vr(S(kt, qg))
                A(f"{MF} {vr(S(kt,qg))}, {ar(Kf(kt*4+ds))}, {ar(Q(qg,ds))}, {cc}")
                for _ in range(2): A(z.pop(0))
    for f in range(8): A(f"ds_read_b128 {ar(Kf(f))}, v{vA[1]} offset:{f*1024}")
    while z: A(z.pop(0))
    A(f"s_cmp_lg_u32 s{sRbA}, 0\ns_cbranch_scc1 L_nd0_{name}")
    for r in range(4):
        A(f"v_cndmask_b32 v{S(0,0)+r}, v{vNEG}, v{S(0,0)+r}, s[{sTri[r]}:{sTri[r]+1}]")
        A(f"v_mov_b32 v{S(1,0)+r}, v{vNEG}")
        A(f"v_cndmask_b32 v{S(1,1)+r}, v{vNEG}, v{S(1,1)+r}, s[{sTri[r]}:{sTri[r]+1}]")
    A(f"L_nd0_{name}:")
    for qg in range(4):
        a, b = S(0, qg), S(1, qg); d = vNM[qg]
        A(f"v_max3_f32 v{d}, v{a}, v{a+1}, v{a+2}")
        A(f"v_max3_f32 v{d}, v{d}, v{a+3}, v{b}")
        A(f"v_max3_f32 v{d}, v{d}, v{b+1}, v{b+2}")
        A(f"v_max_f32 v{d}, v{d}, v{b+3}")
    for sw in ("v_permlane16_swap_b32", "v_permlane32_swap_b32"):
        for qg in range(4): A(f"v_mov_b32 v{vT[qg]}, v{vNM[qg]}")
        for qg in range(4): A(f"{sw} v{vNM[qg]}, v{vT[qg]}")
        for qg in range(4): A(f"v_max_f32 v{vNM[qg]}, v{vNM[qg]}, v{vT[qg]}")
    for qg in range(4): A(f"v_xor_b32 v{vNM[qg]}, 0x80000000, v{vNM[qg]}")
    A(f"s_lshl_b32 s{sT}, s{sWv}, 9\ns_add_u32 s{sT}, s{sT}, {7*16384}")
    A(f"v_lshlrev_b32 v{vT[0]}, 3, v0")
    A(f"v_add_u32 v{vT[0]}, s{sT}, v{vT[0]}")
    A(f"ds_write_b64 v{vT[0]}, v[{vNM[2]}:{vNM[3]}]")
    A(f"v_xor_b32 v{vT[0]}, 512, v{vT[0]}")
    for kt in range(2):
        for qg in range(4):
            for r in range(4): A(f"v_add_f32 v{S(kt,qg)+r}, v{S(kt,qg)+r}, v{vNM[qg]}")
    A("s_waitcnt lgkmcnt(0)\ns_barrier")
    A(f"ds_read_b64 v[{vNMP[0]}:{vNMP[1]}], v{vT[0]}")
    for kt in range(2):
        for qg in range(4):
            for r in range(4): A(f"v_mov_b32 v{C(kt,qg)+r}, v{vNM[qg]}")
    check(1, sM2)
    A("s_waitcnt lgkmcnt(0)\ns_barrier")
    A(f"s_add_u32 m0, s11, {7*16384}")
    A(f"s_add_u32 s{sG}, s{sG}, {7*8192}")
    for j in range(4): A(f"buffer_load_dwordx4 v{vSt}, s[{sKV}:{sKV+3}], s{sG} offen offset:{j*1024} lds")
    if pfk3: pfk3(A)
    tl = [(0, 0), (0, 1), (0, 2), (0, 3), (1, 0), (1, 1)]
    for (kt, qg) in tl:
        for r in range(4): A(f"v_exp_f32 v{S(kt,qg)+r}, v{S(kt,qg)+r}")
    for (kt, qg) in tl:
        for r in (0, 2): A(f"v_cvt_pk_bf16_f32 v{P(0,qg)+2*kt+(r>>1)}, v{S(kt,qg)+r}, v{S(kt,qg)+r+1}")
    if ST: stamp(A, 9)
    A(f".p2align 6\nL_l1_{name}:")
    hook_site(A, 0, name); interval(A, 0, "L1", name, opt)
    hook_site(A, 1, name); interval(A, 1, "L1", name, opt)
    A(f"s_cmp_lt_u32 s{sN}, s{sSw}\ns_cbranch_scc1 L_l1_{name}")
    A(f"s_cmp_ge_u32 s{sN}, 32\ns_cbranch_scc1 L_tail_{name}")
    A(f".p2align 6\nL_l2_{name}:")
    hook_site(A, 2, name); interval(A, 0, "L2", name, opt)
    hook_site(A, 3, name); interval(A, 1, "L2", name, opt)
    A(f"s_cmp_lt_u32 s{sN}, 32\ns_cbranch_scc1 L_l2_{name}")
    A(f"L_tail_{name}:")
    hook_site(A, 4, name); interval(A, 0, "T32", name, opt)
    interval(A, 1, "T33", name, opt)
    if ST: stamp(A, 10)
    A("s_waitcnt vmcnt(0)\ns_barrier")
    A(f"s_lshl_b32 s{sT}, s{sWv}, 14")
    A(f"v_add_u32 v{vT[0]}, s{sT}, v{vSt}")
    A(f"s_lshl_b32 s{sT}, s{sWv}, 9\ns_add_u32 s{sT}, s{sT}, 65536")
    A(f"v_lshlrev_b32 v{vT[1]}, 2, v0")
    A(f"v_add_u32 v{vT[1]}, s{sT}, v{vT[1]}")
    for dt in range(8):
        for q in range(2):
            A(f"ds_write_b128 v{vT[0]}, {vr(O(dt,q))} offset:{(dt*2+q)*1024}")
        if dt == 5: A("s_waitcnt lgkmcnt(8)")
    for q in range(2): A(f"ds_write_b32 v{vT[1]}, a{Lr(q)} offset:{q*256}")
    A(f"v_xor_b32 v{vT[0]}, 0x4000, v{vT[0]}")
    A(f"v_xor_b32 v{vT[1]}, 512, v{vT[1]}")
    A(f"v_accvgpr_read_b32 v{vNM[0]}, a{Lr(2)}")
    A(f"v_accvgpr_read_b32 v{vNM[2]}, a{Lr(3)}")
    A(f"v_mov_b32 v{vT[4]}, 0x5d800000")
    A("s_waitcnt lgkmcnt(0)\ns_barrier")
    for q in range(2): A.lds(f"ds_read_b32 v{vNMP[q]}, v{vT[1]} offset:{q*256}", "l")
    def rd(k):
        q, dt = k >> 3, k & 7
        A.lds(f"ds_read_b128 {vr(32 + k*4)}, v{vT[0]} offset:{(dt*2+q)*1024}", ("o", k))
    for k in range(12): rd(k)
    A.wait_lg("l")
    A(f"v_add_f32 v{vNM[0]}, v{vNM[0]}, v{vNMP[0]}")
    A(f"v_add_f32 v{vNM[2]}, v{vNM[2]}, v{vNMP[1]}")
    for k in range(16):
        q, dt = k >> 3, k & 7
        A.wait_lg([("o", k)])
        if k + 12 < 16: rd(k + 12)
        o = O(dt, 2+q)
        A(f"v_pk_add_f32 v[{o}:{o+1}], v[{o}:{o+1}], v[{32+k*4}:{33+k*4}]")
        A(f"v_pk_add_f32 v[{o+2}:{o+3}], v[{o+2}:{o+3}], v[{34+k*4}:{35+k*4}]")
    flush(A, 2, [vNM[0], vNM[2]], sCtxB, sBad+2, st_flags)
    A(f"s_or_b64 s[12:13], s[{sBad}:{sBad+1}], s[{sBad+2}:{sBad+3}]")
    A(f"s_cbranch_scc1 L_slow_{name}")
    A(f"L_fin_{name}:")
    if ST: stamp_end(A, stampk, sWS, sWv)
    A(f"L_end_{name}:\ns_endpgm")
    for k in range(5):
        A(f"L_stub{k}_{name}:\ns_call_b64 s[{sRet}:{sRet+1}], L_hook_{name}\ns_branch L_back{k}_{name}")
    for k in range(2):
        A(f"L_pstub{k}_{name}:\ns_call_b64 s[{sRet}:{sRet+1}], L_spin_{name}\ns_branch L_pback{k}_{name}")
    A(f"L_spin_{name}:")
    A(f"s_mov_b32 s{sTmp}, 0")
    A(f"L_spinl_{name}:")
    A("s_sleep 4")
    A(f"buffer_load_dword v{vPd}, v{vPa}, s[{sDbg}:{sDbg+3}], 0 offen sc0 sc1")
    A("s_waitcnt vmcnt(0)")
    A(f"v_readfirstlane_b32 s{sT}, v{vPd}")
    A(f"s_add_u32 s{sTmp}, s{sTmp}, 1")
    A(f"s_and_b32 s{sT}, s{sT}, s{sCnt}")
    A(f"s_cmp_eq_u32 s{sT}, s{sCnt}\ns_cbranch_scc1 L_spinx_{name}")
    A(f"s_cmp_lt_u32 s{sTmp}, 0x20000\ns_cbranch_scc1 L_spinl_{name}")
    A(f"L_spinx_{name}:")
    A(f"s_setpc_b64 s[{sRet}:{sRet+1}]")
    gen_hook(A, name, st_flags)
    gen_slow(A, name, st_flags)
    return A.text() + kdesc(name, 512, 256)

def pf_k3(A):
    A("s_load_dwordx2 s[8:9], s[0:1], 40")
    A(f"s_lshl_b32 s12, s{sWv}, 3\ns_add_u32 s12, s12, 64\ns_min_u32 s12, s12, 80")
    A("s_load_dwordx2 s[12:13], s[0:1], s12")
    A("v_lshlrev_b32 v30, 6, v0")
    A(f"s_lshl_b32 s{sT}, s2, 2\ns_add_u32 s{sT}, s{sT}, s{sWv}\ns_lshl_b32 s{sT}, s{sT}, 12")
    A(f"s_mov_b32 s10, {4096*1024}\ns_mov_b32 s11, 0x20000")
    A(f"s_mov_b32 s14, {1792*1024}\ns_mov_b32 s15, 0x20000")
    A(f"s_mul_i32 s{sTmp}, s2, 7168")
    A("s_waitcnt lgkmcnt(0)")
    A("s_and_b32 s9, s9, 0xffff\ns_and_b32 s13, s13, 0xffff")
    A(f"buffer_load_dword v31, v30, s[8:11], s{sT} offen")
    A(f"buffer_load_dword v29, v30, s[12:15], s{sTmp} offen")
    A(f"buffer_load_dword v28, v30, s[12:15], s{sTmp} offen offset:3072")

if __name__ == "__main__":
    import sys, json, hazard, k3
    kw = json.loads(sys.argv[1])
    st = not kw.pop("nostamp", 0)
    k3kw = kw.pop("k3", {})
    if kw.pop("pf", 1): kw["pfk3"] = pf_k3
    hdr = "; @launch kernel=fz_kernel grid=(256,1,1) block=(256,1,1) lds=163840\n" + k3.launch("k3_kernel")
    body = gen("fz_kernel", stampk=0 if st else None, **kw) + k3.gen_k3("k3_kernel", stampk=1 if st else None, **k3kw)
    out = hdr + '.amdgcn_target "amdgcn-amd-amdhsa--gfx950"\n.text\n' + body
    open(sys.argv[2], "w").write(out)
    r = hazard.check(out)
    for x in r[:30]: print(x)
    print(len(r), "hazards", len(out), "bytes")
```

```python
import re, sys
TRANS = ("v_exp_f32", "v_log_f32", "v_rcp_f32", "v_rsq_f32", "v_sqrt_f32")
def regs(tok):
    tok = tok.strip()
    neg = tok.lstrip("-|").rstrip("|")
    m = re.fullmatch(r"(abs\()?([vas])(\d+)\)?", neg)
    if m: return {(m.group(2), int(m.group(3)))}
    m = re.fullmatch(r"([vas])\[(\d+):(\d+)\]", neg)
    if m: return {(m.group(1), i) for i in range(int(m.group(2)), int(m.group(3)) + 1)}
    if neg == "vcc": return {("s", 106), ("s", 107)}
    if neg == "vcc_lo": return {("s", 106)}
    if neg == "vcc_hi": return {("s", 107)}
    if neg == "m0": return {("s", 124)}
    if neg == "exec": return {("s", 126), ("s", 127)}
    return set()
class I:
    pass
def parse(line):
    s = line.split(";")[0].strip()
    if not s or s.startswith(".") or s.endswith(":"): return None
    p = s.split(None, 1)
    op = p[0]; rest = p[1] if len(p) > 1 else ""
    ops = [o.strip() for o in rest.split(",")] if rest else []
    mods = ""
    if ops:
        q = ops[-1].split()
        ops[-1] = q[0] if q else ""
        mods = " ".join(q[1:])
    i = I(); i.op = op; i.text = s; i.w = set(); i.r = set(); i.c = set(); i.ab = set(); i.kind = "other"; i.states = 1
    i.dpp = "row_" in mods or "quad_perm" in mods or "wave_" in mods or "_dpp" in op
    i.data = set()
    if op == "s_nop":
        i.states = int(ops[0], 0) + 1; i.kind = "salu"
    elif op.startswith("v_mfma"):
        i.kind = "mfma"; i.passes = 8 if "32x32" in op else 4
        i.w = regs(ops[0]); i.ab = regs(ops[1]) | regs(ops[2]); i.c = regs(ops[3]); i.r = i.ab | i.c
    elif op.startswith("v_cmp"):
        i.kind = "valu"; i.w = regs(ops[0]);
        for o in ops[1:]: i.r |= regs(o)
    elif op.startswith("v_permlane") and "swap" in op:
        i.kind = "valu"; i.w = regs(ops[0]) | regs(ops[1]); i.r = set(i.w)
    elif op.startswith("v_"):
        i.kind = "valu"; i.w = regs(ops[0])
        k = 1
        if "_co_" in op: i.w |= regs(ops[1]); k = 2
        for o in ops[k:]: i.r |= regs(o)
        if op.startswith("v_cndmask") and len(ops) == 3: i.r |= regs("vcc")
        if op.startswith(("v_fmac", "v_mac", "v_dot2c", "v_writelane")): i.r |= i.w
        if i.dpp: i.r |= i.w
    elif op.startswith(("buffer_load", "global_load")):
        i.kind = "vmem"
        lds = " lds" in (" " + mods) or "_lds_" in op
        i.lds = lds
        if lds:
            for o in ops: i.r |= regs(o)
            i.r |= regs("m0")
        else:
            i.w = regs(ops[0])
            for o in ops[1:]: i.r |= regs(o)
    elif op.startswith(("buffer_store", "buffer_atomic")):
        i.kind = "vmem"
        for o in ops: i.r |= regs(o)
        if "x4" in op or "x3" in op: i.data = regs(ops[0])
    elif op.startswith(("global_store", "global_atomic")):
        i.kind = "vmem"
        for o in ops: i.r |= regs(o)
        if "x4" in op or "x3" in op: i.data = regs(ops[1])
    elif op.startswith("ds_read") or op.startswith("ds_bpermute") or op.startswith("ds_swizzle"):
        i.kind = "ds"; i.w = regs(ops[0])
        for o in ops[1:]: i.r |= regs(o)
    elif op.startswith("ds_"):
        i.kind = "ds"
        for o in ops: i.r |= regs(o)
    elif op.startswith("s_"):
        i.kind = "salu"
        if op.startswith(("s_cmp", "s_cbranch", "s_branch", "s_waitcnt", "s_barrier", "s_endpgm", "s_sleep", "s_setprio", "s_bitcmp")):
            for o in ops: i.r |= regs(o)
        else:
            if ops: i.w = regs(ops[0])
            for o in ops[1:]: i.r |= regs(o)
    return i
def need(p, c):
    n = 0
    if p.kind == "valu":
        vw = {r for r in p.w if r[0] != "s"}; sw = {r for r in p.w if r[0] == "s"}
        if c.kind == "mfma" and vw & c.r: n = max(n, 2)
        if c.kind == "valu":
            if p.op.startswith(TRANS) and not c.op.startswith(TRANS) and vw & c.r: n = max(n, 1)
            if p.op.startswith(TRANS) and vw & c.r: n = max(n, 1)
            if sw & c.r: n = max(n, 4 if c.op.startswith(("v_readlane", "v_writelane")) else 2)
            if c.op.startswith(("v_readlane", "v_readfirstlane")) and vw & c.r: n = max(n, 1)
            if c.op.startswith("v_permlane") and vw & c.r: n = max(n, 2)
            if c.dpp and vw & c.r: n = max(n, 2)
        if c.kind == "vmem" and sw & c.r: n = max(n, 5)
        if ("s", 126) in p.w and c.kind in ("mfma", "valu"): n = max(n, 5)
    if p.kind == "mfma":
        big = p.passes == 8
        if c.kind == "mfma":
            if p.w & c.c and not (p.w == c.c and p.passes == c.passes): n = max(n, 10 if big else 6)
            if p.w & c.ab: n = max(n, 12 if big else 8)
            if p.w & c.w and not (p.w == c.c): n = max(n, 12 if big else 8) if p.w != c.w else n
        elif c.kind in ("valu", "vmem", "ds"):
            if p.w & (c.r | c.w): n = max(n, 12 if big else 8)
            if c.kind == "valu" and p.c & c.w: n = max(n, 7 if big else 3)
            if c.kind in ("ds", "vmem") and p.c & c.w: n = max(n, 7 if big else 3)
    if p.kind == "salu" and ("s", 124) in p.w and c.kind == "vmem" and getattr(c, "lds", False): n = max(n, 1)
    if p.kind == "vmem" and p.data and c.kind in ("valu", "mfma", "ds", "vmem") and p.data & c.w: n = max(n, 2)
    return n
def check_seq(seq, report, tag=""):
    for j, c in enumerate(seq):
        d = 0
        for k in range(j - 1, max(-1, j - 14), -1):
            p = seq[k]
            n = need(p, c)
            if n > d: report.add((tag, p.ln, c.ln, n, d, p.text, c.text))
            d += p.states
            if d >= 12: break
def check(text):
    lines = text.split("\n")
    ins = []; labels = {}
    for ln, l in enumerate(lines):
        s = l.split(";")[0].strip()
        if s.endswith(":") and not s.startswith("."): labels[s[:-1]] = len(ins)
        i = parse(l)
        if i: i.ln = ln + 1; ins.append(i)
    rep = set()
    seg = []
    for i in ins:
        seg.append(i)
        if i.op in ("s_endpgm", "s_branch", "s_setpc_b64"):
            check_seq(seg, rep); seg = []
    check_seq(seg, rep)
    for j, i in enumerate(ins):
        if i.op.startswith(("s_cbranch", "s_branch")):
            t = i.text.split()[1]
            if t in labels:
                k = labels[t]
                check_seq(ins[max(0, j - 14):j + 1] + ins[k:k + 14], rep, "br")
    return sorted(rep, key=lambda x: x[2])
if __name__ == "__main__":
    r = check(open(sys.argv[1]).read())
    for x in r[:40]: print(x)
    print(len(r), "hazards")

def fix(text, maxit=50):
    n_ins = 0
    for it in range(maxit):
        r = check(text)
        if not r: break
        lines = text.split("\n")
        need_at = {}
        for (tag, pl, cl, n, d, pt, ct) in r:
            need_at[cl] = max(need_at.get(cl, 0), n - d)
        last = -100; done = []
        for cl in sorted(need_at):
            if cl - last > 14: done.append(cl); last = cl
        for cl in sorted(done, reverse=True):
            lines.insert(cl - 1, f"s_nop {need_at[cl]-1}")
            n_ins += 1
        text = "\n".join(lines)
    return text, n_ins
```

```python
from asmlib import *
from k1 import Sched, MF
from collections import defaultdict

NEGV = "0xf149f2ca"
def S(kt, qg): return 32 + (kt*4 + qg)*4
def P(b, qg): return 64 + b*16 + qg*4
def C(kt, qg): return 96 + (kt*4 + qg)*4
def O(dt, qg): return 128 + (dt*4 + qg)*4
def Kf(f): return f*4
def Vf(dt): return 32 + dt*4
def Q(qg, ds): return 64 + (qg*4 + ds)*4
def Lr(qg): return 128 + qg*4
ONES = 144
vSt = 21; vA = [2, 3]; vNM = [4, 5, 6, 7]; vNMP = [8, 9]; vNEG = 10; vT = [11, 12, 13, 14, 15, 16]; vPark = 17
sX, sW, sWS, sKV = 20, 24, 36, 28
sH, sI, sWv, sW8 = 40, 41, 42, 43
sN, sSw, sA, sB, sT, sG = 44, 45, 46, 47, 48, 49
sEv = 50
sTT = 52
sRbA, sRbB, sRbP = 53, 54, 55
sTri = [56, 58, 60, 62]
sRet = 64
sCtxA, sCtxB = 66, 67
sBad = 32
sTmp = 18
sRbS = 19

class Placer:
    def __init__(s, n, cap=2):
        s.n = n; s.cap = cap; s.load = defaultdict(float); s.ops = defaultdict(list)
    def put(s, g, text, cost=1):
        s.load[g] += cost; s.ops[g].append(text); return g
    def place(s, gmin, text, cost=1, gmax=None):
        g = gmin
        while s.load[g] + cost > s.cap: g += 1
        assert gmax is None or g <= gmax, (text, g, gmax)
        return s.put(g, text, cost)

def quad_ops():
    return ["s_add_u32 m0, m0, 16384", "s_and_b32 m0, m0, 0x1ffff", f"s_add_u32 s{sG}, s{sG}, 8192"] + \
           [f"buffer_load_dwordx4 v{vSt}, s[{sKV}:{sKV+3}], s{sG} offen offset:{j*1024} lds" for j in range(4)]

def interval(A, c, mode, name, opt):
    mf = []
    if mode != "T33":
        for kt in range(2):
            for ds in range(4):
                for qg in range(4):
                    cc = vr(C(kt, qg)) if ds == 0 else vr(S(kt, qg))
                    mf.append(f"{MF} {vr(S(kt,qg))}, {ar(Kf(kt*4+ds))}, {ar(Q(qg,ds))}, {cc}")
    nq = len(mf)
    for qg in range(4):
        mf.append(f"{MF} {ar(Lr(qg))}, {ar(ONES)}, {vr(P(c,qg))}, {ar(Lr(qg))}")
    for dt in range(8):
        for qg in range(4):
            mf.append(f"{MF} {vr(O(dt,qg))}, {ar(Vf(dt))}, {vr(P(c,qg))}, {vr(O(dt,qg))}")
    pl = Placer(len(mf))
    EG = opt.get("eg", [0,2,4,6,8,10,12,14, 17,18,20,21,23,24,26,27,29,30,33,35,37,39,41,43, 45,47,49,51,53,55,57,59])
    eg = list(EG)
    def tile(kt, qg, pb, g0, gmax):
        s = S(kt, qg); p = P(pb, qg) + 2*kt
        for r in range(4):
            g = eg.pop(0); assert g0 <= g <= gmax, (kt, qg, g)
            pl.put(g, f"v_exp_f32 v{s+r}, v{s+r}", 0)
            if r & 1:
                pend.append((g + 1, f"v_cvt_pk_bf16_f32 v{p+(r>>1)}, v{s+r-1}, v{s+r}", gmax))
        return g0
    for g in EG: pl.load[g] += 2
    pend = []
    def flush_pend():
        for (g, t, gm) in pend: pl.place(g, t, 1, gm)
        pend.clear()
    if mode == "T33":
        for dt in range(8): A(f"ds_read_b128 {ar(Vf(dt))}, v{vA[c]} offset:{8192+dt*1024}")
        for qg in (2, 3):
            for r in range(4): A(f"v_exp_f32 v{S(1,qg)+r}, v{S(1,qg)+r}")
        for qg in (2, 3):
            for r in (0, 2): A(f"v_cvt_pk_bf16_f32 v{P(c,qg)+2+(r>>1)}, v{S(1,qg)+r}, v{S(1,qg)+r+1}")
        A("s_waitcnt lgkmcnt(0)")
        ex = opt.get("t33", {})
        for k, m in enumerate(mf):
            A(m)
            for o in ex.get(k, []): o() if callable(o) else A(o)
        return
    pl.put(31, "s_waitcnt vmcnt(%d) lgkmcnt(0)" % (16 if mode != "T32" else opt.get("t32w", 0)))
    pl.put(31, "s_barrier")
    pl.put(66, "s_waitcnt lgkmcnt(0)")
    pl.put(67, "", 2)
    g = 0
    for qg in (2, 3): g = tile(1, qg, c, g, 15 + qg)
    g = 1
    for dt in range(8):
        g = pl.place(g, f"ds_read_b128 {ar(Vf(dt))}, v{vA[c]} offset:{8192+dt*1024}", 1, 22)
        if dt & 1: g += 1
    flush_pend()
    if mode == "L1":
        g = pl.place(17, f"s_add_u32 s{sA}, s{sA}, 16384")
        g = pl.place(g, f"s_add_u32 s{sB}, s{sB}, 32768")
        g = pl.place(g+1, f"s_max_i32 s{sT}, s{sA}, s{sB}")
        g = pl.place(g, f"s_and_b32 s{sT}, s{sT}, 0x1ffff")
    else:
        g = pl.place(17, f"s_add_u32 s{sB}, s{sB}, 32768")
        g = pl.place(g, f"s_and_b32 s{sT}, s{sB}, 0x1ffff")
    ga = pl.place(max(g+1, 23), f"v_add_u32 v{vA[c]}, s{sT}, v{vSt}", 1, 31)
    pl.place(ga, f"s_add_u32 s{sN}, s{sN}, 1")
    g = 17
    for qg in range(4): tile(0, qg, 1-c, 15 + qg, 66)
    for qg in range(2): tile(1, qg, 1-c, 32 + qg, 66)
    flush_pend()
    if mode != "T32":
        ops = []
        q = quad_ops()
        ops += q
        kr = [f"ds_read_b128 {ar(Kf(f))}, v{vA[c]} offset:{f*1024}" for f in range(8)]
        seq = []
        if mode == "L2":
            q2 = quad_ops()
            seq = q[:3] + [kr[0], q[3], kr[1], q[4], kr[2], q[5], kr[3], q[6]] + q2[:2] + [kr[4], q2[2], kr[5], q2[3], kr[6], q2[4], kr[7], q2[5], q2[6]]
        else:
            seq = q[:3] + [kr[0], q[3], kr[1], q[4], kr[2], q[5], kr[3], q[6]] + kr[4:]
        g = 32
        for k, t in enumerate(seq):
            g = pl.place(g, t, 1, 64)
            pass
    else:
        g = 32
        for (t, cost) in opt.get("t32", []): g = pl.place(g, t, cost, 65)
    for m, t in enumerate(mf):
        A(t)
        for o in pl.ops.get(m, []):
            if o and not any(a in o for a in opt.get("abl", [])): A(o.replace("vmcnt(16)", opt.get("vmc", "vmcnt(16)")))

def hook_site(A, k, name):
    A(f"s_bitcmp1_b64 s[{sEv}:{sEv+1}], s{sN}")
    A(f"s_cbranch_scc1 L_stub{k}_{name}")
    A(f"L_back{k}_{name}:")

def flush(A, q0, lregs, sctx, sbad, st_flags, mid=None, tag=None):
    for j in range(2):
        A(f"v_cmp_nlt_f32 vcc, v{lregs[j]}, v{vT[4]}")
        A(f"v_rcp_f32 v{lregs[j]}, v{lregs[j]}")
        A(f"s_or_b64 s[{sbad}:{sbad+1}], s[{sbad}:{sbad+1}], vcc")
    for j in range(2):
        qg = q0 + j
        if j: A(f"s_add_u32 s{sTmp}, s{sctx}, {128*1024}")
        for ds in range(4):
            a0, a1 = O(2*ds, qg), O(2*ds+1, qg)
            for a in (a0, a0+2, a1, a1+2):
                A(f"v_pk_mul_f32 v[{a}:{a+1}], v[{a}:{a+1}], v[{lregs[j]}:{lregs[j]+1}] op_sel_hi:[1,0]")
            A(f"v_cvt_pk_bf16_f32 v{a0}, v{a0}, v{a0+1}")
            A(f"v_cvt_pk_bf16_f32 v{a0+1}, v{a0+2}, v{a0+3}")
            A(f"v_cvt_pk_bf16_f32 v{a0+2}, v{a1}, v{a1+1}")
            A(f"v_cvt_pk_bf16_f32 v{a0+3}, v{a1+2}, v{a1+3}")
            st = f"buffer_store_dwordx4 {vr(a0)}, v{vSt}, s[{sWS}:{sWS+3}], s{sTmp if j else sctx} offen offset:{ds*1024} {st_flags}"
            if tag: A.vmem(st, tag)
            else: A(st)
            if mid: mid(j*4 + ds)

def gen_hook(A, name, st_flags):
    A(f"L_hook_{name}:")
    A(f"s_max_i32 s{sT}, s{sA}, s{sB}")
    A(f"s_lshr_b32 s{sT}, s{sT}, 14")
    A(f"s_cmp_lg_u32 s{sN}, s{sTT}")
    A(f"s_cbranch_scc1 L_h1_{name}")
    A("s_nop 7")
    A(f"v_accvgpr_read_b32 v{vT[0]+1}, a{Lr(0)}")
    A(f"v_accvgpr_read_b32 v{vT[2]+1}, a{Lr(1)}")
    A(f"v_mov_b32 v{vT[4]}, 0x5d800000")
    flush(A, 0, [vT[0]+1, vT[2]+1], sCtxA, sBad, st_flags)
    for q in range(2):
        for r in range(4): A(f"v_accvgpr_write_b32 a{Lr(q)+r}, 0")
    for dt in range(8):
        for q in range(2):
            A(f"v_mov_b64 v[{O(dt,q)}:{O(dt,q)+1}], 0")
            A(f"v_mov_b64 v[{O(dt,q)+2}:{O(dt,q)+3}], 0")
    A(f"L_h1_{name}:")
    A(f"s_add_u32 s{sTmp}, s{sN}, 1")
    A(f"s_cmp_lg_u32 s{sTmp}, s{sTT}")
    A(f"s_cbranch_scc1 L_h2_{name}")
    for q in range(2):
        for ds in range(4):
            A(f"ds_read_b128 {ar(Q(q,ds))}, v{vPark} offset:{(q*4+ds)*1024}")
    for q in range(2):
        A(f"v_mov_b32 v{vNM[q]}, v{vNMP[q]}")
        for kt in range(2):
            for r in range(4): A(f"v_mov_b32 v{C(kt,q)+r}, v{vNMP[q]}")
    A(f"s_mov_b32 s{sRbA}, s{sRbP}")
    A("s_waitcnt lgkmcnt(0)")
    A(f"L_h2_{name}:")
    for hb, (q0, srb) in enumerate(((0, sRbA), (2, sRbB))):
        A(f"s_cmp_lt_u32 s{sT}, s{srb}")
        A(f"s_cbranch_scc1 L_hd{hb}_{name}")
        A(f"s_cmp_eq_u32 s{sT}, s{srb}")
        A(f"s_cbranch_scc1 L_hg{hb}_{name}")
        for kt in range(2):
            for q in (q0, q0+1):
                for r in range(4): A(f"v_mov_b32 v{C(kt,q)+r}, v{vNEG}")
        A(f"s_branch L_hd{hb}_{name}")
        A(f"L_hg{hb}_{name}:")
        for r in range(4):
            A(f"v_cndmask_b32 v{C(0,q0)+r}, v{vNEG}, v{vNM[q0]}, s[{sTri[r]}:{sTri[r]+1}]")
            A(f"v_mov_b32 v{C(1,q0)+r}, v{vNEG}")
            A(f"v_cndmask_b32 v{C(1,q0+1)+r}, v{vNEG}, v{vNM[q0+1]}, s[{sTri[r]}:{sTri[r]+1}]")
        A(f"L_hd{hb}_{name}:")
    A("s_nop 1")
    A(f"s_setpc_b64 s[{sRet}:{sRet+1}]")

def gen_slow(A, name, st_flags, sig=None):
    A(f"L_slow_{name}:")
    A("s_waitcnt vmcnt(0)")
    A(f"s_cmp_eq_u64 s[{sBad}:{sBad+1}], 0\ns_cbranch_scc1 L_slow1_{name}")
    A(f"s_mov_b32 s12, s{sRbS}\ns_mov_b32 s13, s{sCtxA}")
    A(f"s_call_b64 s[{sRet}:{sRet+1}], L_sub_{name}")
    if sig: sig(A)
    A(f"L_slow1_{name}:")
    A(f"s_cmp_eq_u64 s[{sBad+2}:{sBad+3}], 0\ns_cbranch_scc1 L_fin_{name}")
    A(f"s_mov_b32 s12, s{sRbB}\ns_mov_b32 s13, s{sCtxB}")
    A(f"s_call_b64 s[{sRet}:{sRet+1}], L_sub_{name}")
    A(f"s_branch L_fin_{name}")
    A(f"L_sub_{name}:")
    WF, XF, KF, VF, SS, PP, QQ = 32, 64, 32, 64, 96, 112, 24
    def o(dt, q): return O(dt, q)
    def qq(q, ds): return O(2*ds, 2+q)
    vX, vW, M, L, AL, t0, t1 = 2, 3, [4, 5], [6, 8], [12, 14], 16, 17
    A(f"v_and_b32 v{t0}, 15, v0")
    A(f"v_lshrrev_b32 v{t1}, 4, v0")
    A(f"v_lshlrev_b32 v{vX}, 10, v{t0}")
    A(f"v_lshl_or_b32 v{vX}, v{t1}, 4, v{vX}")
    A(f"v_lshlrev_b32 v{vW}, 16, v{t1}")
    A(f"v_lshl_or_b32 v{vW}, v{t0}, 1, v{vW}")
    for dt in range(8):
        for q in range(2):
            for r in range(4): A(f"v_mov_b32 v{o(dt,q)+r}, 0")
    A(f"s_lshl_b32 s14, s12, 15")
    A(f"s_lshl_b32 s15, s{sH}, 8")
    A(f"s_mov_b32 s{sN}, 0")
    A(f"L_sq_{name}:")
    A(f"buffer_load_dwordx4 {vr(XF)}, v{vX}, s[{sX}:{sX+3}], s14 offen")
    A(f"s_add_u32 s{sT}, s14, 16384")
    A(f"buffer_load_dwordx4 {vr(XF+4)}, v{vX}, s[{sX}:{sX+3}], s{sT} offen")
    for j in range(8):
        for dt in range(8):
            A(f"buffer_load_ushort v{(72+dt) if j & 1 else WF+dt*4+(j>>1)}, v{vW}, s[{sW}:{sW+3}], s15 offen offset:{dt*32}")
        A(f"s_add_u32 s15, s15, 8192")
        if j & 1:
            A("s_waitcnt vmcnt(0)")
            for dt in range(8): A(f"v_lshl_or_b32 v{WF+dt*4+(j>>1)}, v{72+dt}, 16, v{WF+dt*4+(j>>1)}")
    A("s_nop 1")
    for dt in range(8):
        for q in range(2):
            A(f"{MF} {vr(o(dt,q))}, {vr(WF+dt*4)}, {vr(XF+4*q)}, {vr(o(dt,q))}")
    A(f"s_add_u32 s15, s15, {24*8192}")
    A(f"s_add_u32 s14, s14, 64")
    A(f"s_add_u32 s{sN}, s{sN}, 1")
    A("s_nop 7")
    A(f"s_cmp_lt_u32 s{sN}, 16\ns_cbranch_scc1 L_sq_{name}")
    for q in range(2):
        for ds in range(4):
            a0, a1, d = o(2*ds, q), o(2*ds+1, q), qq(q, ds)
            A(f"v_cvt_pk_bf16_f32 v{d}, v{a0}, v{a0+1}")
            A(f"v_cvt_pk_bf16_f32 v{d+1}, v{a0+2}, v{a0+3}")
            A(f"v_cvt_pk_bf16_f32 v{d+2}, v{a1}, v{a1+1}")
            A(f"v_cvt_pk_bf16_f32 v{d+3}, v{a1+2}, v{a1+3}")
    for dt in range(8):
        for q in range(2):
            for r in range(4): A(f"v_mov_b32 v{o(dt,q)+r}, 0")
    for q in range(2):
        A(f"v_mov_b32 v{M[q]}, 0xff800000")
        A(f"v_mov_b32 v{L[q]}, 0")
    A(f"s_lshl_b32 s14, s{sH}, 19")
    A(f"s_mov_b32 s{sN}, 0")
    A(f"L_su_{name}:")
    for hf in range(2):
        A(f"s_add_u32 s{sT}, s14, {WS_K + hf*4096}")
        for j in range(4): A(f"buffer_load_dwordx4 {vr(KF+(hf*4+j)*4)}, v{vSt}, s[{sWS}:{sWS+3}], s{sT} offen offset:{j*1024}")
        A(f"s_add_u32 s{sT}, s14, {WS_V + hf*4096}")
        for j in range(4): A(f"buffer_load_dwordx4 {vr(VF+(hf*4+j)*4)}, v{vSt}, s[{sWS}:{sWS+3}], s{sT} offen offset:{j*1024}")
    A("s_waitcnt vmcnt(0)")
    def ss(kt, q): return SS + (kt*2+q)*4
    for ds in range(4):
        for kt in range(2):
            for q in range(2):
                A(f"{MF} {vr(ss(kt,q))}, {vr(KF+(kt*4+ds)*4)}, {vr(qq(q,ds))}, {vr(ss(kt,q)) if ds else 0}")
    A("s_nop 7")
    A(f"s_cmp_lg_u32 s{sN}, s12\ns_cbranch_scc1 L_snd_{name}")
    for r in range(4):
        A(f"v_cndmask_b32 v{ss(0,0)+r}, v{vNEG}, v{ss(0,0)+r}, s[{sTri[r]}:{sTri[r]+1}]")
        A(f"v_mov_b32 v{ss(1,0)+r}, v{vNEG}")
        A(f"v_cndmask_b32 v{ss(1,1)+r}, v{vNEG}, v{ss(1,1)+r}, s[{sTri[r]}:{sTri[r]+1}]")
    A(f"L_snd_{name}:")
    for q in range(2):
        a, b = ss(0, q), ss(1, q)
        A(f"v_max3_f32 v{t0}, v{a}, v{a+1}, v{a+2}")
        A(f"v_max3_f32 v{t0}, v{t0}, v{a+3}, v{b}")
        A(f"v_max3_f32 v{t0}, v{t0}, v{b+1}, v{b+2}")
        A(f"v_max3_f32 v{t0}, v{t0}, v{b+3}, v{M[q]}")
        for sw in ("v_permlane16_swap_b32", "v_permlane32_swap_b32"):
            A(f"v_mov_b32 v{t1}, v{t0}")
            A("s_nop 1")
            A(f"{sw} v{t0}, v{t1}")
            A("s_nop 1")
            A(f"v_max_f32 v{t0}, v{t0}, v{t1}")
        A(f"v_sub_f32 v{AL[q]}, v{M[q]}, v{t0}")
        A(f"v_exp_f32 v{AL[q]}, v{AL[q]}")
        A(f"v_mov_b32 v{M[q]}, v{t0}")
        A(f"v_mul_f32 v{L[q]}, v{L[q]}, v{AL[q]}")
        for x in (a, b):
            for r in range(4): A(f"v_sub_f32 v{x+r}, v{x+r}, v{t0}")
            for r in range(4): A(f"v_exp_f32 v{x+r}, v{x+r}")
            A("s_nop 0")
            for r in range(4): A(f"v_add_f32 v{L[q]}, v{L[q]}, v{x+r}")
        A(f"v_cvt_pk_bf16_f32 v{PP+4*q}, v{a}, v{a+1}")
        A(f"v_cvt_pk_bf16_f32 v{PP+4*q+1}, v{a+2}, v{a+3}")
        A(f"v_cvt_pk_bf16_f32 v{PP+4*q+2}, v{b}, v{b+1}")
        A(f"v_cvt_pk_bf16_f32 v{PP+4*q+3}, v{b+2}, v{b+3}")
        for dt in range(8):
            for r in range(4): A(f"v_mul_f32 v{o(dt,q)+r}, v{o(dt,q)+r}, v{AL[q]}")
    A("s_nop 1")
    for dt in range(8):
        for q in range(2):
            A(f"{MF} {vr(o(dt,q))}, {vr(VF+dt*4)}, {vr(PP+4*q)}, {vr(o(dt,q))}")
    A(f"s_add_u32 s14, s14, 8192")
    A(f"s_add_u32 s{sN}, s{sN}, 1")
    A("s_nop 7")
    A(f"s_cmp_le_u32 s{sN}, s12\ns_cbranch_scc1 L_su_{name}")
    for q in range(2):
        for sw in ("v_permlane16_swap_b32", "v_permlane32_swap_b32"):
            A(f"v_mov_b32 v{t1}, v{L[q]}")
            A("s_nop 1")
            A(f"{sw} v{L[q]}, v{t1}")
            A("s_nop 1")
            A(f"v_add_f32 v{L[q]}, v{L[q]}, v{t1}")
    flush(A, 0, L, 13, 14, st_flags)
    A("s_waitcnt vmcnt(0)")
    A(f"s_setpc_b64 s[{sRet}:{sRet+1}]")

def gen_k2(name, L=16, NB=6, st_flags="sc1", stampk=None, opt={}):
    A = Asm()
    A(khead(name))
    A(f"s_cmp_ge_u32 s2, 256\ns_cbranch_scc1 L_end_{name}")
    if stampk is not None: stamp_begin(A)
    A("s_load_dwordx2 s[4:5], s[0:1], 0")
    A("s_load_dwordx2 s[6:7], s[0:1], 16")
    A("s_load_dwordx2 s[16:17], s[0:1], 112")
    A("v_lshrrev_b32 v1, 6, v0")
    A("v_and_b32 v0, 63, v0")
    A(f"v_readfirstlane_b32 s{sWv}, v1")
    A(f"s_and_b32 s{sH}, s2, 31")
    A(f"s_lshr_b32 s{sI}, s2, 5")
    aW = list(range(2, 10)); aC = [10, 11, 12, 13]; dW = 16; dC = [19, 20]
    t0, t1, t2, t3 = 22, 23, 24, 25
    A(f"v_lshrrev_b32 v{t0}, 4, v0")
    A(f"v_lshrrev_b32 v{t1}, 3, v0")
    A(f"v_and_b32 v{t2}, 7, v0")
    A(f"v_xor_b32 v{t3}, v{t2}, v{t0}")
    A(f"v_lshlrev_b32 v{dC[0]}, 10, v{t1}")
    A(f"v_lshl_or_b32 v{dC[0]}, v{t3}, 4, v{dC[0]}")
    A(f"v_xor_b32 v{dC[1]}, 64, v{dC[0]}")
    A(f"v_and_b32 v{t1}, 15, v0")
    A(f"s_and_b32 s{sT}, s{sWv}, 1")
    A(f"s_lshl_b32 s{sT}, s{sT}, 3")
    A(f"v_lshlrev_b32 v{t2}, 1, v{t0}")
    A(f"v_xor_b32 v{t2}, v{t2}, v{t1}")
    A(f"v_xor_b32 v{t2}, s{sT}, v{t2}")
    A(f"v_lshlrev_b32 v{dW}, 13, v{t0}")
    A(f"v_lshl_or_b32 v{dW}, v{t2}, 4, v{dW}")
    A(f"s_lshl_b32 s{sW8}, s{sWv}, 13")
    sXs, sXl, sWb = 8, 9, 10
    A(f"s_lshl_b32 s{sXs}, s{sI}, 17")
    A(f"s_lshl_b32 s{sT}, s{sWv}, 15")
    A(f"s_sub_u32 s{sXl}, {15<<17}, s{sXs}")
    A(f"s_add_u32 s{sXs}, s{sXs}, s{sT}")
    A(f"s_add_u32 s{sXl}, s{sXl}, s{sT}")
    A(f"s_lshl_b32 s{sWb}, s{sWv}, 16")
    A(f"s_lshl_b32 s{sT}, s{sH}, 8")
    A(f"s_add_u32 s{sWb}, s{sWb}, s{sT}")
    A("s_waitcnt lgkmcnt(0)")
    srd(A, sX, 4, 2048*1024); srd(A, sW, 6, 4096*1024)

    Sc = Sched(A)
    def wslot(hs): return (3 + ((hs >> 2) & 1), hs & 3)
    def dma_w(gap, hs, spread=1):
        b, t = wslot(hs)
        for j in range(2):
            g = gap + j*spread
            Sc.at(g, "s", f"s_add_u32 m0, s{sW8}, {b*32768 + t*2048 + j*1024}")
            Sc.at(g, "s", f"s_add_u32 s{sTmp}, s{sWb}, {(hs*32 + 4*j) * 8192}")
            Sc.at(g, "vm", f"buffer_load_dwordx4 v{dW}, s[{sW}:{sW+3}], s{sTmp} offen lds", ("W", hs))
    def cblock(s): return (s+1) % 3
    def dma_c(gap, s, spread=2):
        for j in range(8):
            g = gap + j*spread
            Sc.at(g, "s", f"s_add_u32 m0, s{sW8}, {cblock(s)*32768 + j*1024}")
            Sc.at(g, "s", f"s_add_u32 s{sTmp}, s{sXs if j < 4 else sXl}, {(j&3)*8192 + s*128}")
            Sc.at(g, "vm", f"buffer_load_dwordx4 v{dC[j&1]}, s[{sX}:{sX+3}], s{sTmp} offen lds", ("C", s))
    def creg(ks, tg): return (ks*4 + tg) * 4
    def read_c(gap, s, spread=4):
        Sc.at(gap, "wvm", tag=[("C", s)])
        n = 0
        for k2 in range(2):
            for tg in range(4):
                off = (cblock(s)&1)*32768 + tg*2048
                Sc.at(gap + n*spread, "lds", f"ds_read_b128 {ar(creg(2*s+k2, tg))}, v{aC[k2 + 2*(cblock(s)>>1)]} offset:{off}", ("c", 2*s+k2, tg))
                n += 1
    g = -1000
    for (kind, idx) in [("C",0),("W",0),("W",1),("C",1),("W",2),("W",3),("C",2),("W",4),("W",5)]:
        if kind == "C": dma_c(g, idx, 1); g += 8
        else: dma_w(g, idx); g += 2
    def consts():
        A(f"v_bfe_u32 v{t1}, v0, 2, 2")
        A(f"v_and_b32 v{t2}, 3, v0")
        A(f"v_and_b32 v{t3}, 1, v{t0}")
        A(f"v_lshl_or_b32 v{t3}, v{t3}, 2, v{t1}")
        A(f"v_lshlrev_b32 v{aW[0]}, 13, v{t0}")
        A(f"v_lshl_or_b32 v{aW[0]}, v{t1}, 8, v{aW[0]}")
        A(f"v_lshl_or_b32 v{aW[0]}, v{t3}, 5, v{aW[0]}")
        A(f"v_lshl_or_b32 v{aW[0]}, v{t2}, 3, v{aW[0]}")
        A(f"v_add_u32 v{aW[0]}, 0x18000, v{aW[0]}")
        for d in range(1, 8): A(f"v_xor_b32 v{aW[d]}, {d<<5}, v{aW[0]}")
        A(f"v_and_b32 v{t1}, 15, v0")
        A(f"v_lshrrev_b32 v{t2}, 1, v{t1}")
        A(f"v_xor_b32 v{t2}, v{t2}, v{t0}")
        A(f"v_lshlrev_b32 v{aC[0]}, 7, v{t1}")
        A(f"v_lshl_or_b32 v{aC[0]}, v{t2}, 4, v{aC[0]}")
        A(f"v_add_u32 v{aC[0]}, s{sW8}, v{aC[0]}")
        A(f"v_xor_b32 v{aC[1]}, 64, v{aC[0]}")
        A(f"v_add_u32 v{aC[2]}, 0x10000, v{aC[0]}")
        A(f"v_add_u32 v{aC[3]}, 0x10000, v{aC[1]}")
        A(f"v_lshlrev_b32 v{vSt}, 4, v0")
        A(f"v_lshlrev_b32 v{t2}, 2, v{t0}")
        A(f"v_sub_u32 v{t2}, v{t1}, v{t2}")
        for r in range(4): A(f"v_cmp_le_i32 s[{sTri[r]}:{sTri[r]+1}], {r}, v{t2}")
        srd(A, sWS, 16, WS_BYTES)
        A(f"s_lshr_b32 s{sT}, s{sWv}, 1\ns_lshl_b32 s{sT}, s{sT}, 24")
        A(f"s_lshl_b32 s{sG}, s{sH}, 19\ns_add_u32 s{sG}, s{sG}, s{sT}")
        A(f"s_lshl_b32 s{sT}, s{sI}, 15\ns_sub_u32 s{sT}, {64*8192}, s{sT}")
        A(f"s_mov_b32 s{sKV}, s16\ns_and_b32 s{sKV+1}, s17, 0xffff\ns_add_u32 s{sKV+2}, s{sG}, s{sT}\ns_mov_b32 s{sKV+3}, 0x20000")
        A(f"s_and_b32 s{sT}, s{sWv}, 1\ns_lshl_b32 s{sT}, s{sT}, 12\ns_add_u32 s{sG}, s{sG}, s{sT}")
        A(f"s_lshl_b32 s{sTT}, s{sI}, 2\ns_add_u32 s{sRbA}, s{sTT}, s{sWv}")
        A(f"s_sub_u32 s{sRbB}, 60, s{sTT}\ns_xor_b32 s{sRbP}, s{sWv}, 1\ns_add_u32 s{sRbP}, s{sRbP}, s{sRbB}\ns_add_u32 s{sRbB}, s{sRbB}, s{sWv}")
        A(f"s_add_u32 s{sTT}, s{sTT}, 4\ns_mov_b32 s{sRbS}, s{sRbA}")
        A(f"s_and_b32 s{sT}, s{sWv}, 2\ns_add_u32 s{sSw}, s{sTT}, s{sT}\ns_sub_u32 s{sSw}, s{sSw}, 2")
        A(f"s_mov_b32 s{sEv}, 63\ns_mov_b32 s{sEv+1}, 0")
        A(f"s_lshl_b64 s[{sEv}:{sEv+1}], s[{sEv}:{sEv+1}], s{sTT}")
        A(f"s_lshr_b64 s[{sEv}:{sEv+1}], s[{sEv}:{sEv+1}], 5")
        A(f"s_or_b32 s{sEv}, s{sEv}, 0x80000000\ns_or_b32 s{sEv+1}, s{sEv+1}, 1")
        A(f"s_mov_b32 s{sN}, 0\ns_mov_b32 s{sA}, 16384")
        A(f"s_and_b32 s{sT}, s{sWv}, 1\ns_add_u32 s{sT}, s{sT}, 2\ns_sub_u32 s{sT}, s{sT}, s{sTT}\ns_lshl_b32 s{sB}, s{sT}, 14")
        A(f"s_lshl_b32 s{sT}, s{sH}, 12\ns_add_u32 s{sT}, s{sT}, {WS_CTX}")
        A(f"s_lshl_b32 s{sCtxA}, s{sRbA}, 18\ns_add_u32 s{sCtxA}, s{sCtxA}, s{sT}")
        A(f"s_lshl_b32 s{sCtxB}, s{sRbB}, 18\ns_add_u32 s{sCtxB}, s{sCtxB}, s{sT}")
        A(f"s_mov_b64 s[{sBad}:{sBad+1}], 0\ns_mov_b64 s[{sBad+2}:{sBad+3}], 0")
        A(f"s_lshl_b32 s11, s{sWv}, 12")
    Sc.at(-900, "fn", consts)
    read_c(-800, 0, 1)
    Sc.at(-700, "wlg", tag=[("c", 1, 3)])
    dma_c(-600, 3, 1)
    FB = 40
    for f in range(128):
        fb = FB + (f % NB)*4
        hs = f >> 3; b, t = wslot(hs); ks, dt = f >> 3, f & 7
        if f % 8 == 0:
            gb = 4*f - L - 1
            Sc.at(gb, "wvm", tag=[("W", hs)])
            Sc.at(gb, "s", "s_barrier")
            if hs + 6 < 16: dma_w(gb + 3, hs + 6, 4)
        for pp in range(2):
            Sc.at(4*f - L + pp, "lds", f"ds_read_b64_tr_b16 v[{fb+2*pp}:{fb+2*pp+1}], v{aW[dt]} offset:{(b-3)*32768 + t*2048 + pp*1024}", ("w", f))
        for tg in range(4):
            d = O(dt, tg); c = vr(d) if ks else "0"
            Sc.mfma(f"{MF} {vr(d)}, {vr(fb)}, {ar(creg(ks,tg))}, {c}", [("w", f), ("c", ks, tg)])
    for s in range(1, 8):
        read_c(64*(s-1) + 6, s, 4)
        Sc.at(64*(s-1) + 46, "wlg", tag=[("c", 2*s+1, 3)])
        if s + 3 < 8: dma_c(64*(s-1) + 46, s + 3, 2)
    def dma_kv(gap, u, spread=2):
        Sc.at(gap, "s", f"s_add_u32 m0, s11, {u*16384}")
        Sc.at(gap, "s", f"s_add_u32 s{sTmp}, s{sG}, {u*8192}")
        for j in range(4):
            Sc.at(gap + 1 + j*spread, "vm", f"buffer_load_dwordx4 v{vSt}, s[{sKV}:{sKV+3}], s{sTmp} offen offset:{j*1024} lds", ("KV", u))
    gb = lambda ks: 32*ks - L - 1
    assert gb(10) > 64*4 + 46 and gb(12) > 64*5 + 46 and gb(14) > 64*6 + 46
    dma_kv(gb(10) + 2, 0); dma_kv(gb(10) + 12, 1)
    dma_kv(gb(12) + 2, 2); dma_kv(gb(12) + 12, 3)
    dma_kv(gb(14) + 2, 4); dma_kv(gb(14) + 12, 5); dma_kv(gb(14) + 22, 6)
    for ds in range(4):
        g = 480 + 8*ds + 8 + 3
        for tg in range(4):
            a0, a1 = O(2*ds, tg), O(2*ds+1, tg)
            Sc.at(g, "v", f"v_cvt_pk_bf16_f32 v{a0}, v{a0}, v{a0+1}")
            Sc.at(g, "v", f"v_cvt_pk_bf16_f32 v{a0+1}, v{a0+2}, v{a0+3}")
            Sc.at(g, "v", f"v_cvt_pk_bf16_f32 v{a0+2}, v{a1}, v{a1+1}")
            Sc.at(g, "v", f"v_cvt_pk_bf16_f32 v{a0+3}, v{a1+2}, v{a1+3}")
            for r in range(4): Sc.at(g+1, "v", f"v_accvgpr_write_b32 a{Q(tg,ds)+r}, v{a0+r}")
            g += 2
    Sc.at(512, "s", "s_nop 4")
    if stampk is not None:
        Sc.at(-901, "fn", lambda: stamp(A, 1))
        Sc.at(0, "fn", lambda: stamp(A, 2))
        Sc.at(511, "fn", lambda: stamp(A, 3))
    Sc.at(507, "wlg", tag=[("w", 127)])
    Sc.at(507, "wvm", tag=[("KV", 1)])
    Sc.at(507, "s", "s_barrier")
    Sc.at(508, "v", f"v_mov_b32 v{vA[0]}, v{vSt}")
    Sc.at(508, "v", f"v_add_u32 v{vA[1]}, 0x4000, v{vSt}")
    for f in range(8): Sc.at(509 + (f >> 2), "lds", f"ds_read_b128 {ar(Kf(f))}, v{vSt} offset:{f*1024}", ("k", f))
    Sc.emit()
    A(f"s_add_u32 s{sT}, s{sW8}, 0x20000")
    A(f"v_add_u32 v{vPark}, s{sT}, v{vSt}")
    for q in range(2):
        for ds in range(4):
            A.lds(f"ds_write_b128 v{vPark}, {vr(O(2*ds, 2+q))} offset:{(q*4+ds)*1024}", "pk")
            if len(A.lg) >= 14: A.wait_lg([("k", 7)])
    A(f"v_xor_b32 v{vPark}, 0x2000, v{vPark}")
    A(f"v_mov_b32 v{vNEG}, {NEGV}")
    A(f"v_mov_b32 v{vT[0]}, 0x3f803f80")
    for r in range(4): A(f"v_accvgpr_write_b32 a{ONES+r}, v{vT[0]}")
    A("s_waitcnt lgkmcnt(0)"); A.lg = []
    z = [f"v_mov_b64 v[{128+2*k}:{129+2*k}], 0" for k in range(64)] + [f"v_accvgpr_write_b32 a{Lr(0)+k}, 0" for k in range(16)]
    m = 0
    for kt in range(2):
        for ds in range(4):
            for qg in range(4):
                cc = "0" if ds == 0 else vr(S(kt, qg))
                A(f"{MF} {vr(S(kt,qg))}, {ar(Kf(kt*4+ds))}, {ar(Q(qg,ds))}, {cc}")
                for _ in range(2): A(z.pop(0))
                if m >= 20 and (m & 1) == 0 and False: pass
                m += 1
    for f in range(8): A(f"ds_read_b128 {ar(Kf(f))}, v{vA[1]} offset:{f*1024}")
    while z: A(z.pop(0))
    A(f"s_cmp_lg_u32 s{sRbA}, 0\ns_cbranch_scc1 L_nd0_{name}")
    for r in range(4):
        A(f"v_cndmask_b32 v{S(0,0)+r}, v{vNEG}, v{S(0,0)+r}, s[{sTri[r]}:{sTri[r]+1}]")
        A(f"v_mov_b32 v{S(1,0)+r}, v{vNEG}")
        A(f"v_cndmask_b32 v{S(1,1)+r}, v{vNEG}, v{S(1,1)+r}, s[{sTri[r]}:{sTri[r]+1}]")
    A(f"L_nd0_{name}:")
    for qg in range(4):
        a, b = S(0, qg), S(1, qg); d = vNM[qg]
        A(f"v_max3_f32 v{d}, v{a}, v{a+1}, v{a+2}")
        A(f"v_max3_f32 v{d}, v{d}, v{a+3}, v{b}")
        A(f"v_max3_f32 v{d}, v{d}, v{b+1}, v{b+2}")
        A(f"v_max_f32 v{d}, v{d}, v{b+3}")
    for sw in ("v_permlane16_swap_b32", "v_permlane32_swap_b32"):
        for qg in range(4): A(f"v_mov_b32 v{vT[qg]}, v{vNM[qg]}")
        for qg in range(4): A(f"{sw} v{vNM[qg]}, v{vT[qg]}")
        for qg in range(4): A(f"v_max_f32 v{vNM[qg]}, v{vNM[qg]}, v{vT[qg]}")
    for qg in range(4): A(f"v_xor_b32 v{vNM[qg]}, 0x80000000, v{vNM[qg]}")
    A(f"s_lshl_b32 s{sT}, s{sWv}, 9\ns_add_u32 s{sT}, s{sT}, {7*16384}")
    A(f"v_lshlrev_b32 v{vT[0]}, 3, v0")
    A(f"v_add_u32 v{vT[0]}, s{sT}, v{vT[0]}")
    A(f"ds_write_b64 v{vT[0]}, v[{vNM[2]}:{vNM[3]}]")
    A(f"v_xor_b32 v{vT[0]}, 512, v{vT[0]}")
    for kt in range(2):
        for qg in range(4):
            for r in range(4): A(f"v_add_f32 v{S(kt,qg)+r}, v{S(kt,qg)+r}, v{vNM[qg]}")
    A("s_waitcnt lgkmcnt(0)\ns_barrier")
    A(f"ds_read_b64 v[{vNMP[0]}:{vNMP[1]}], v{vT[0]}")
    for kt in range(2):
        for qg in range(4):
            for r in range(4): A(f"v_mov_b32 v{C(kt,qg)+r}, v{vNM[qg]}")
    A("s_waitcnt lgkmcnt(0)\ns_barrier")
    A(f"s_add_u32 m0, s11, {7*16384}")
    A(f"s_add_u32 s{sG}, s{sG}, {7*8192}")
    for j in range(4): A(f"buffer_load_dwordx4 v{vSt}, s[{sKV}:{sKV+3}], s{sG} offen offset:{j*1024} lds")
    tl = [(0, 0), (0, 1), (0, 2), (0, 3), (1, 0), (1, 1)]
    for (kt, qg) in tl:
        for r in range(4): A(f"v_exp_f32 v{S(kt,qg)+r}, v{S(kt,qg)+r}")
    for (kt, qg) in tl:
        for r in (0, 2): A(f"v_cvt_pk_bf16_f32 v{P(0,qg)+2*kt+(r>>1)}, v{S(kt,qg)+r}, v{S(kt,qg)+r+1}")
    if stampk is not None: stamp(A, 4)
    A(f".p2align 6\nL_l1_{name}:")
    hook_site(A, 0, name); interval(A, 0, "L1", name, opt)
    hook_site(A, 1, name); interval(A, 1, "L1", name, opt)
    A(f"s_cmp_lt_u32 s{sN}, s{sSw}\ns_cbranch_scc1 L_l1_{name}")
    A(f"s_cmp_ge_u32 s{sN}, 32\ns_cbranch_scc1 L_tail_{name}")
    A(f".p2align 6\nL_l2_{name}:")
    hook_site(A, 2, name); interval(A, 0, "L2", name, opt)
    hook_site(A, 3, name); interval(A, 1, "L2", name, opt)
    A(f"s_cmp_lt_u32 s{sN}, 32\ns_cbranch_scc1 L_l2_{name}")
    A(f"L_tail_{name}:")
    hook_site(A, 4, name); interval(A, 0, "T32", name, opt)
    interval(A, 1, "T33", name, opt)
    if stampk is not None: stamp(A, 5)
    A("s_waitcnt vmcnt(0)\ns_barrier")
    A(f"s_lshl_b32 s{sT}, s{sWv}, 14")
    A(f"v_add_u32 v{vT[0]}, s{sT}, v{vSt}")
    A(f"s_lshl_b32 s{sT}, s{sWv}, 9\ns_add_u32 s{sT}, s{sT}, 65536")
    A(f"v_lshlrev_b32 v{vT[1]}, 2, v0")
    A(f"v_add_u32 v{vT[1]}, s{sT}, v{vT[1]}")
    for dt in range(8):
        for q in range(2):
            A(f"ds_write_b128 v{vT[0]}, {vr(O(dt,q))} offset:{(dt*2+q)*1024}")
        if dt == 5: A("s_waitcnt lgkmcnt(8)")
    for q in range(2): A(f"ds_write_b32 v{vT[1]}, a{Lr(q)} offset:{q*256}")
    A(f"v_xor_b32 v{vT[0]}, 0x4000, v{vT[0]}")
    A(f"v_xor_b32 v{vT[1]}, 512, v{vT[1]}")
    A(f"v_accvgpr_read_b32 v{vNM[0]}, a{Lr(2)}")
    A(f"v_accvgpr_read_b32 v{vNM[2]}, a{Lr(3)}")
    A(f"v_mov_b32 v{vT[4]}, 0x5d800000")
    A("s_waitcnt lgkmcnt(0)\ns_barrier")
    for q in range(2): A.lds(f"ds_read_b32 v{vNMP[q]}, v{vT[1]} offset:{q*256}", "l")
    def rd(k):
        q, dt = k >> 3, k & 7
        A.lds(f"ds_read_b128 {vr(32 + k*4)}, v{vT[0]} offset:{(dt*2+q)*1024}", ("o", k))
    for k in range(12): rd(k)
    A.wait_lg("l")
    A(f"v_add_f32 v{vNM[0]}, v{vNM[0]}, v{vNMP[0]}")
    A(f"v_add_f32 v{vNM[2]}, v{vNM[2]}, v{vNMP[1]}")
    for k in range(16):
        q, dt = k >> 3, k & 7
        A.wait_lg(("o", k),) if False else A.wait_lg([("o", k)])
        if k + 12 < 16: rd(k + 12)
        o = O(dt, 2+q)
        A(f"v_pk_add_f32 v[{o}:{o+1}], v[{o}:{o+1}], v[{32+k*4}:{33+k*4}]")
        A(f"v_pk_add_f32 v[{o+2}:{o+3}], v[{o+2}:{o+3}], v[{34+k*4}:{35+k*4}]")
    flush(A, 2, [vNM[0], vNM[2]], sCtxB, sBad+2, st_flags)
    A(f"s_or_b64 s[12:13], s[{sBad}:{sBad+1}], s[{sBad+2}:{sBad+3}]")
    A(f"s_cbranch_scc1 L_slow_{name}")
    A(f"L_fin_{name}:")
    if stampk is not None: stamp_end(A, stampk, sWS, sWv)
    A(f"L_end_{name}:\ns_endpgm")
    for k in range(5):
        A(f"L_stub{k}_{name}:\ns_call_b64 s[{sRet}:{sRet+1}], L_hook_{name}\ns_branch L_back{k}_{name}")
    gen_hook(A, name, st_flags)
    gen_slow(A, name, st_flags)
    return A.text() + kdesc(name, 512, 256)
```

```python
from asmlib import *
from k1 import Sched, MF
from k2 import S as S_, P, C, O, Lr, vSt, vNM, vNMP, vT
from k2 import sX, sW, sWS, sKV, sH, sI, sWv, sW8, sN, sT, sRet, sCtxB, sBad, sTmp
from k2 import flush
import k3

sDbg = 4; sPO = 3
sWo = 8
sWoB, sL0, sSigA = 16, 17, 101
dWo = [22, 23, 24, 25]
vL8, vOne = 26, 27
aE = [120, 121, 122, 123]
NFW = 224
WS_YA = WS_Y
BIG = 0x40000000

def get_ct(A, d, t, mp):
    if mp == 0: A(f"s_lshr_b32 s{d}, s2, 5")
    else: A(f"s_and_b32 s{d}, s2, 1\ns_lshl_b32 s{d}, s{d}, 2\ns_bfe_u32 s{t}, s2, 0x20003\ns_add_u32 s{d}, s{d}, s{t}")
def get_blk(A, d, t, mp):
    if mp == 0: A(f"s_bfe_u32 s{d}, s2, 0x10004\ns_lshl_b32 s{d}, s{d}, 3\ns_and_b32 s{t}, s2, 7\ns_add_u32 s{d}, s{d}, s{t}")
    else: A(f"s_lshr_b32 s{d}, s2, 6\ns_lshl_b32 s{d}, s{d}, 2\ns_bfe_u32 s{t}, s2, 0x20001\ns_add_u32 s{d}, s{d}, s{t}")
def pre_consts(A, o):
    get_ct(A, sT, sWoB, o.get("map", 0))
    A(f"s_lshl_b32 s{sWoB}, s{sWv}, 20\ns_lshl_b32 s{sT}, s{sT}, 7\ns_add_u32 s{sWoB}, s{sWoB}, s{sT}")
    A(f"s_and_b32 s{sT}, s{sI}, 1\ns_lshl_b32 s{sT}, s{sT}, 16\ns_lshl_b32 s{sL0}, s{sWv}, 14\ns_add_u32 s{sL0}, s{sL0}, s{sT}")
    A(f"s_lshl_b32 s{sSigA}, s{sI}, 2\ns_add_u32 s{sSigA}, s{sSigA}, 128")
    A(f"v_lshlrev_b32 v{vL8}, 8, v0\nv_mov_b32 v{vOne}, 1")

def t32_ops(name, oo):
    t = 18
    o = []
    if oo.get("wt"):
        nsh = 8 if oo.get("map", 0) else 4
        per = 1024 // nsh
        o += [(f"s_bfe_u32 s{sTmp}, s2, {0x30005 if nsh == 8 else 0x20003}\ns_mul_i32 s{sTmp}, s{sTmp}, {per*1024}", 1),
              (f"s_add_u32 s{sTmp}, s{sTmp}, s{sWoB}\nv_lshlrev_b32 v{t}, 2, v{vL8}", 1)]
        for k in range(per // 64):
            o += [(f"buffer_load_dword v29, v{t}, s[{sWo}:{sWo+3}], s{sTmp} offen\ns_add_u32 s{sTmp}, s{sTmp}, 65536", 1)]
    o += [(f"s_cmp_eq_u64 s[{sBad}:{sBad+1}], 0\ns_cselect_b32 s{sTmp}, s{sSigA}, 0x1000", 1)]
    o += [(f"buffer_atomic_add v{vOne}, v{vL8}, s[{sDbg}:{sDbg+3}], s{sTmp} offen sc1", 1)]
    o += [(x, 1) for x in [f"v_lshrrev_b32 v{t}, 3, v0", f"v_and_b32 v{t+1}, 7, v0", f"v_lshlrev_b32 v{t}, 12, v{t}",
          f"v_lshl_or_b32 v{dWo[0]}, v{t+1}, 4, v{t}"] + [f"v_xor_b32 v{dWo[j]}, {j<<5}, v{dWo[0]}" for j in range(1, 4)]]
    o += [(x, 1) for x in [f"v_bfe_u32 v{t}, v0, 2, 2", f"v_lshrrev_b32 v{t+1}, 4, v0", f"v_mul_u32_u24 v{t}, 0x420, v{t}",
          f"v_lshl_add_u32 v{t}, v{t+1}, 7, v{t}", f"v_and_b32 v{t+1}, 3, v0", f"v_lshl_add_u32 v{t}, v{t+1}, 3, v{t}",
          f"v_add_u32 v{aE[0]}, s{sL0}, v{t}"] + [f"v_xor_b32 v{aE[k]}, {k<<5}, v{aE[0]}" for k in range(1, 4)]]
    return o

def slow_sig(A):
    A(f"buffer_atomic_add v{vOne}, v{vL8}, s[{sDbg}:{sDbg+3}], s{sSigA} offen sc1")

class Tail:
    def __init__(s, A, name, st_flags, ST, stampk, o):
        s.A = A; s.name = name; s.st = st_flags; s.ST = ST; s.stampk = stampk; s.o = o
        s.slot = {}
        s.nxt = 0
        s.base = {0: aE}
    def slot_m0(s, sl):
        if sl < 4: return f"s_add_u32 m0, s{sL0}, {sl*4096}"
        if sl == 4: return f"s_add_u32 m0, s{sW8}, 0x20000"
        return f"s_add_u32 m0, s{s.sL1}, {(sl-5)*4096}"
    def dma_ops(s, sl, st=sTmp):
        kk = s.nxt; s.nxt += 1; s.slot[kk] = sl
        return [s.slot_m0(sl), f"s_add_u32 s{st}, s{sWoB}, {kk*32768}"] + \
               [(f"buffer_load_dwordx4 v{dWo[j]}, s[{sWo}:{sWo+3}], s{st} offen offset:{j*1024} {s.o.get('wfl', '')} lds", ("W", kk)) for j in range(4)]
    def dma(s, sl, st=sTmp):
        if s.nxt >= 32: return
        for x in s.dma_ops(sl, st):
            if isinstance(x, tuple): s.A.vmem(*x)
            else: s.A(x)
    def wreg(s, kk, mt):
        return ar(kk*16 + mt*4) if kk < 16 else vr(32 + (kk & 3)*16 + mt*4)
    def tr_ops(s, kk):
        sl = s.slot[kk]
        reg, off = (0, sl*4096) if sl < 4 else ((2, 0) if sl == 4 else (1, (sl-5)*4096))
        o = []
        for mt in range(4):
            for p in range(2):
                r = (kk*16 if kk < 16 else 32 + (kk & 3)*16) + mt*4 + 2*p
                o.append((f"ds_read_b64_tr_b16 {'a' if kk < 16 else 'v'}[{r}:{r+1}], v{s.base[reg][mt]} offset:{off + p*512}", ("w", kk, mt)))
        return o
    def t33(s):
        ex = {}
        g = s.o.get("t33g", 0)
        A = s.A
        for sl in range(5):
            ops = s.dma_ops(sl)
            ex[g] = ops[:2]
            for j in range(4): ex[g+1+j] = [(lambda x=ops[2+j]: A.vmem(*x))]
            g += 5
        ex[g] = [f"s_getpc_b64 s[44:45]", f"L_pc2_{s.name}:", f"s_lshl_b32 s46, s{sWv}, 12", f"v_lshlrev_b32 v18, 2, v{vSt}"]
        ex[g+1] = ["s_add_u32 s44, s44, s46", "s_addc_u32 s45, s45, 0"]
        ex[g+2] = [lambda: A.vmem("global_load_dword v29, v18, s[44:45] offset:1024", "pf")]
        ex[g+3] = ["s_load_dwordx4 s[28:31], s[0:1], 64", "s_load_dwordx2 s[50:51], s[0:1], 80", "s_load_dwordx2 s[52:53], s[0:1], 96"]
        return ex
    def rd(s, kk):
        A = s.A
        A.wait_vm([("W", kk)])
        for x in s.tr_ops(kk):
            if len(A.lg) >= 15: A.wait_lg([A.lg[0]])
            A.lds(*x)
    def refill(s, kk, st=sTmp):
        s.A.wait_lg([("w", kk, 3)])
        s.dma(s.slot[kk], st)

    def gen(s):
        A = s.A; name = s.name; o = s.o
        ST = s.ST
        T2 = ST and o.get("st")
        ab = o.get("ab", "")
        def st2(n):
            if T2: stamp(A, n)
        s.sL1 = 55
        A("s_barrier")
        A(f"s_xor_b32 s{s.sL1}, s{sL0}, 0x10000")
        A(f"v_add_u32 v{vT[0]}, s{s.sL1}, v{vSt}")
        A(f"s_add_u32 s{sT}, s{sW8}, 0x21000")
        A(f"v_lshlrev_b32 v{vT[1]}, 2, v0")
        A(f"v_add_u32 v{vT[1]}, s{sT}, v{vT[1]}")
        for dt in range(8):
            for q in range(2):
                A(f"ds_write_b128 v{vT[0]}, {vr(O(dt,q))} offset:{(dt*2+q)*1024}")
            if dt == 5: A("s_waitcnt lgkmcnt(8)")
        for q in range(2): A(f"ds_write_b32 v{vT[1]}, a{Lr(q)} offset:{q*256}")
        A(f"v_xor_b32 v{vT[0]}, 0x4000, v{vT[0]}")
        A(f"v_xor_b32 v{vT[1]}, 0x2000, v{vT[1]}")
        A(f"v_accvgpr_read_b32 v{vNM[0]}, a{Lr(2)}")
        A(f"v_accvgpr_read_b32 v{vNM[2]}, a{Lr(3)}")
        A(f"v_mov_b32 v{vT[4]}, 0x5d800000")
        A("s_waitcnt lgkmcnt(0)\ns_barrier"); A.lg = []
        st2(1)
        for q in range(2): A.lds(f"ds_read_b32 v{vNMP[q]}, v{vT[1]} offset:{q*256}", "l")
        def rdx(k):
            q, dt = k >> 3, k & 7
            A.lds(f"ds_read_b128 {vr(32 + k*4)}, v{vT[0]} offset:{(dt*2+q)*1024}", ("o", k))
        for k in range(12): rdx(k)
        A.wait_lg("l")
        A(f"v_add_f32 v{vNM[0]}, v{vNM[0]}, v{vNMP[0]}")
        A(f"v_add_f32 v{vNM[2]}, v{vNM[2]}, v{vNMP[1]}")
        for k in range(16):
            q, dt = k >> 3, k & 7
            A.wait_lg([("o", k)])
            if k + 12 < 16: rdx(k + 12)
            if k == 8: s.rd(0)
            oo = O(dt, 2+q)
            A(f"v_pk_add_f32 v[{oo}:{oo+1}], v[{oo}:{oo+1}], v[{32+k*4}:{33+k*4}]")
            A(f"v_pk_add_f32 v[{oo+2}:{oo+3}], v[{oo+2}:{oo+3}], v[{34+k*4}:{35+k*4}]")
        def mid(n):
            if n in (0, 2, 4):
                k = n >> 1
                s.refill(k, 49); s.rd(k + 1)
            if n == 6: s.refill(3, 49)
        flush(A, 2, [vNM[0], vNM[2]], sCtxB, sBad+2, s.st, mid=mid, tag="ctx")
        A(f"s_or_b64 s[12:13], s[{sBad}:{sBad+1}], s[{sBad+2}:{sBad+3}]")
        A(f"s_cbranch_scc1 L_slow_{name}")
        A(f"L_fin_{name}:")
        if ST: stamp(A, 11)
        aT = [[2, 3, 4, 5], [6, 7, 8, 9], [10, 11, 12, 13]]
        vRow, GV, G1, vY = 14, 15, 16, 17
        vC = [vSt, 18, 19, 20]
        vPa, vPd, SIG, t0, t1 = 28, 29, 30, 31, 1
        sGt, sUp, sDn, sOut = 56, 60, 44, 24
        sK = [66, 67]
        sE, sRt, sCt, sF, sRg, sCb, sXo, sOw = 12, 13, 14, 15, 32, 33, 34, 35
        A(f"v_and_b32 v{vPa}, 7, v0")
        A(f"v_lshlrev_b32 v{vPa}, 4, v{vPa}")
        A.vmem(f"buffer_load_dword v{vPd}, v{vPa}, s[{sDbg}:{sDbg+3}], 0 offen offset:8 sc0 sc1", "poll")
        srd(A, sGt, 28, 512*3584); srd(A, sUp, 30, 512*3584); srd(A, sDn, 50, 1792*1024); srd(A, sOut, 52, 2048*1024)
        for mt in range(4):
            A(f"v_mov_b32 v{aT[0][mt]}, v{aE[mt]}")
            A(f"v_xor_b32 v{aT[1][mt]}, 0x10000, v{aE[mt]}")
        A(f"s_add_u32 s{sT}, s{sW8}, 0x20000\ns_sub_u32 s{sT}, s{sT}, s{sL0}")
        for mt in range(4): A(f"v_add_u32 v{aT[2][mt]}, s{sT}, v{aE[mt]}")
        s.base = aT
        KEY = 96; G0, U0, WD, XS, PM, SM, T = 128, 136, 144, 152, 154, 160, list(range(192, 200))
        A(f"s_cmp_lt_u32 s2, {0 if 'f' in ab else NFW}\ns_cselect_b32 s{sF}, 0, {BIG}")
        A(f"v_mul_u32_u24 v{t0}, {2*3584}, v0")
        A(f"s_mul_i32 s{sT}, s{sWv}, {128*3584}\ns_lshl_b32 s{sE}, s2, 4\ns_add_u32 s{sT}, s{sT}, s{sE}\ns_add_u32 s{sT}, s{sT}, s{sF}")
        for (r, sr) in ((G0, sGt), (U0, sUp)):
            for e in range(2): A.vmem(f"buffer_load_dwordx4 {vr(r+4*e)}, v{t0}, s[{sr}:{sr+3}], s{sT} offen offset:{e*3584}", "fw")
        s.rd(4)
        A(f"v_lshlrev_b32 v{t1}, 2, v0")
        A(f"s_lshl_b32 s{sT}, s2, 13\ns_lshl_b32 s{sE}, s{sWv}, 8\ns_add_u32 s{sT}, s{sT}, s{sE}\ns_add_u32 s{sT}, s{sT}, s{sF}")
        for f in range(8):
            if f == 4: A(f"s_add_u32 s{sT}, s{sT}, 4096")
            A.vmem(f"buffer_load_dword v{WD+f}, v{t1}, s[{sDn}:{sDn+3}], s{sT} offen offset:{(f&3)*1024}", "fd")
        s.refill(4)
        mp = o.get("map", 0)
        get_blk(A, sRt, sT, mp)
        A(f"s_lshl_b32 s{sE}, s{sRt}, 2\ns_add_u32 s{sE}, s{sE}, 128\ns_add_u32 s54, s{sE}, s{sPO}")
        A(f"s_lshl_b32 s{sRt}, s{sRt}, 1\ns_bfe_u32 s{sT}, s2, {0x10005 if mp else 0x10003}\ns_add_u32 s{sRt}, s{sRt}, s{sT}")
        get_ct(A, sCt, sT, mp)
        A(f"s_lshl_b32 s{sRg}, s{sRt}, 2\ns_add_u32 s{sRg}, s{sRg}, s{sWv}")
        A(f"s_lshl_b32 s{sCb}, s{sRt}, 19\ns_lshl_b32 s{sT}, s{sWv}, 15\ns_add_u32 s{sCb}, s{sCb}, s{sT}\ns_add_u32 s{sCb}, s{sCb}, {WS_CTX}")
        A(f"s_lshl_b32 s{sXo}, s{sRg}, 14\ns_lshl_b32 s{sT}, s{sCt}, 7\ns_add_u32 s{sXo}, s{sXo}, s{sT}")
        for j in range(1, 4): A(f"v_add_u32 v{vC[j]}, {j*131072}, v{vSt}")
        nchk = [0]
        def check(sexp, off):
            k = nchk[0]; nchk[0] += 1
            A.wait_vm("poll")
            A(f"v_cmp_ne_u32 vcc, s{sexp}, v{vPd}")
            A(f"s_mov_b32 s{sE}, s{sexp}" if sexp != sE else "s_nop 0")
            A(f"s_mov_b32 s{sT}, {off}")
            A(f"s_cbranch_vccnz L_qstub{k}_{name}")
            A(f"L_qback{k}_{name}:")
        A(f"s_mov_b32 s{sE}, -1")
        check(sE, 8)
        st2(2)
        for j in range(8):
            if j % 4 == 0: A(f"s_mov_b32 s{sT}, {WS_R + (j>>2)*4096}")
            A.vmem(f"buffer_load_dwordx4 {vr(KEY+4*j)}, v{vSt}, s[{sWS}:{sWS+3}], s{sT} offen offset:{(j&3)*1024} {'' if 'k' in ab else 'sc0 sc1'}", "key")
        A(f"s_lshl_b32 s{sT}, s{sI}, 2\ns_sub_u32 s{sT}, {128 + 60}, s{sT}\ns_add_u32 s{sT}, s{sT}, s{sPO}")
        A(f"v_mov_b32 v{t0}, 4")
        A.wait_vm("ctx")
        A("s_barrier")
        A.vmem(f"buffer_atomic_add v{t0}, v{vL8}, s[{sDbg}:{sDbg+3}], s{sT} offen sc1", "sig")
        st2(3)
        for sl in range(5, 9): s.dma(sl)
        def c_top():
            A.wait_vm("key")
            k3.top2(A, KEY, T, sK)
            A(f"s_lshl_b32 s{sE}, s{sWv}, 8")
            for j in range(2):
                A(f"s_and_b32 s{sT}, s{sK[j]}, 0xffff\ns_sub_u32 s{50+j}, 2047, s{sT}\ns_lshl_b32 s{sT}, s{50+j}, 10\ns_add_u32 s{sT}, s{sT}, s{sE}")
                A.vmem(f"buffer_load_dword v{XS+j}, v{t1}, s[{sX}:{sX+3}], s{sT} offen", "xs")
        def c_own():
            A(f"v_and_b32 v{t0}, 15, v0")
            A(f"v_lshrrev_b32 v{vY}, 4, v0")
            A(f"v_lshlrev_b32 v{vRow}, 10, v{t0}")
            A(f"v_lshl_or_b32 v{vRow}, v{vY}, 3, v{vRow}")
            A(f"s_lshl_b32 s{sT}, s{sRg}, 4")
            A(f"v_add_u32 v{t0}, s{sT}, v{t0}")
            A(f"v_lshlrev_b32 v{vY}, 6, v{vY}")
            A(f"v_cmp_eq_u32 vcc, s50, v{t0}")
            A(f"v_cmp_eq_u32 s[52:53], s51, v{t0}")
            A(f"v_mov_b32 v{T[0]}, s{sK[0]}")
            A(f"v_mov_b32 v{T[1]}, s{sK[1]}")
            A(f"v_mov_b32 v{T[2]}, {BIG}")
            A(f"v_mov_b32 v{T[3]}, 2048")
            A(f"v_cndmask_b32 v{SIG}, v{T[1]}, v{T[0]}, vcc")
            A(f"v_cndmask_b32 v{T[2]}, v{T[2]}, v{T[3]}, s[52:53]")
            A(f"v_cndmask_b32 v{T[2]}, v{T[2]}, 0, vcc")
            A(f"v_add_u32 v{vY}, v{vY}, v{T[2]}")
            A(f"s_or_b64 s[52:53], s[52:53], vcc")
            A(f"s_cselect_b32 s{sOw}, 0, 0x1000")
            A(f"s_cselect_b32 s52, {0 if 'f' in ab else NFW*4//8}, 0")
            A(f"v_and_b32 v{SIG}, 0xffff0000, v{SIG}")
            A(f"v_ashrrev_i32 v{T[0]}, 31, v{SIG}")
            A(f"v_not_b32 v{T[0]}, v{T[0]}")
            A(f"v_or_b32 v{T[0]}, 0x80000000, v{T[0]}")
            A(f"v_and_b32 v{T[0]}, 0xffff0000, v{T[0]}")
            A(f"v_xor_b32 v{SIG}, v{SIG}, v{T[0]}")
            A(f"v_mul_f32 v{SIG}, 0xbfb8aa3b, v{SIG}")
            A(f"v_exp_f32 v{SIG}, v{SIG}")
            A(f"v_add_f32 v{SIG}, 1.0, v{SIG}")
            A(f"v_rcp_f32 v{SIG}, v{SIG}")
            k3.rnd(A, SIG)
        def c_dot():
            A.wait_vm(["xs", "fw"])
            A("s_mov_b32 s28, 0x05040100\ns_mov_b32 s29, 0x07060302")
            for mat, r in enumerate((G0, U0)):
                for c in range(8):
                    p = PM + (c & 3)
                    A(f"v_perm_b32 v{p}, v{r+4+(c>>1)}, v{r+(c>>1)}, s{28+(c&1)}")
                    for tk in range(2):
                        A(f"v_dot2_f32_bf16 v{SM + mat*16 + c*2 + tk}, v{p}, v{XS+tk}, 0")
        def c_red():
            for mat in range(2):
                b = SM + mat*16
                for k in range(8): A(f"v_permlane32_swap_b32 v{b+k}, v{b+8+k}")
                for k in range(8): A(f"v_add_f32 v{b+k}, v{b+k}, v{b+8+k}")
            for mat in range(2):
                b = SM + mat*16
                for k in range(4): A(f"v_permlane16_swap_b32 v{b+k}, v{b+4+k}")
                for k in range(4): A(f"v_add_f32 v{b+k}, v{b+k}, v{b+4+k}")
            for (n, dpp, m0, m1) in ((2, "row_ror:8", 0x3, 0xc), (1, "row_half_mirror", 0x5, 0xa)):
                for mat in range(2):
                    b = SM + mat*16
                    for k in range(n): A(f"v_add_f32_dpp v{b+k}, v{b+k}, v{b+k} {dpp} row_mask:0xf bank_mask:{m0}")
                for mat in range(2):
                    b = SM + mat*16
                    for k in range(n): A(f"v_add_f32_dpp v{b+k}, v{b+n+k}, v{b+n+k} {dpp} row_mask:0xf bank_mask:{m1}")
            for dpp in ("quad_perm:[1,0,3,2]", "quad_perm:[2,3,0,1]"):
                for mat in range(2):
                    b = SM + mat*16
                    A(f"v_add_f32_dpp v{b}, v{b}, v{b} {dpp} row_mask:0xf bank_mask:0xf")
            A(f"v_mov_b32 v{SM+1}, v{SM+16}")
            A(f"v_lshlrev_b32 v{t0}, 3, v0")
            A(f"s_add_u32 s{sT}, s{sW8}, 0x21800")
            A(f"v_add_u32 v{T[0]}, s{sT}, v{t0}")
            A(f"v_add_u32 v{t0}, 0x21800, v{t0}")
            A.lds(f"ds_write_b64 v{T[0]}, v[{SM}:{SM+1}]", "fx")
            A.wait_lg("fx")
            A("s_barrier")
            for w in range(4): A.lds(f"ds_read_b64 v[{SM+2*w}:{SM+2*w+1}], v{t0} offset:{w*8192}", "fx")
        def c_act():
            A.wait_lg("fx")
            A(f"v_pk_add_f32 v[{SM}:{SM+1}], v[{SM}:{SM+1}], v[{SM+2}:{SM+3}]")
            A(f"v_pk_add_f32 v[{SM+4}:{SM+5}], v[{SM+4}:{SM+5}], v[{SM+6}:{SM+7}]")
            A(f"v_pk_add_f32 v[{SM}:{SM+1}], v[{SM}:{SM+1}], v[{SM+4}:{SM+5}]")
            gt, up = SM, SM+1
            k3.rnd(A, gt); k3.rnd(A, up)
            A(f"v_mul_f32 v{T[2]}, 0xbfb8aa3b, v{gt}")
            A(f"v_exp_f32 v{T[2]}, v{T[2]}")
            A(f"v_add_f32 v{T[2]}, 1.0, v{T[2]}")
            A(f"v_rcp_f32 v{T[2]}, v{T[2]}")
            A(f"v_mul_f32 v{gt}, v{gt}, v{T[2]}")
            k3.rnd(A, gt)
            A(f"v_mul_f32 v{gt}, v{gt}, v{up}")
            k3.rnd(A, gt)
            A(f"v_bfe_u32 v{T[0]}, v0, 1, 2")
            A(f"v_bfe_u32 v{T[1]}, v0, 3, 2")
            A(f"v_and_b32 v{T[2]}, 1, v0")
            A(f"v_lshrrev_b32 v{T[3]}, 5, v0")
            A(f"v_lshlrev_b32 v{T[0]}, 6, v{T[0]}")
            A(f"v_lshl_or_b32 v{T[0]}, v{T[1]}, 4, v{T[0]}")
            A(f"v_lshl_or_b32 v{T[0]}, v{T[2]}, 3, v{T[0]}")
            A(f"v_lshl_or_b32 v{T[0]}, v{T[3]}, 8, v{T[0]}")
            A.wait_vm("fd")
            Y = [SM+4, SM+5, SM+6, SM+7]
            for f in range(8):
                for tk in range(2): A(f"v_readlane_b32 s{56+2*f+tk if f < 4 else 44 + ((2*f+tk) & 3) + (-16 if f >= 6 else 0)}, v{gt}, {(f*2+tk)*4}")
            for f in range(8):
                sh = [56+2*f+tk if f < 4 else 44 + ((2*f+tk) & 3) + (-16 if f >= 6 else 0) for tk in range(2)]
                A(f"v_lshlrev_b32 v{T[4]}, 16, v{WD+f}")
                A(f"v_and_b32 v{T[5]}, 0xffff0000, v{WD+f}")
                op = "v_fmac_f32" if f else "v_mul_f32"
                A(f"{op} v{Y[0]}, s{sh[0]}, v{T[4]}")
                A(f"{op} v{Y[1]}, s{sh[0]}, v{T[5]}")
                A(f"{op} v{Y[2]}, s{sh[1]}, v{T[4]}")
                A(f"{op} v{Y[3]}, s{sh[1]}, v{T[5]}")
            A(f"s_lshl_b32 s{sT}, s{sWv}, 9\ns_add_u32 s{sT}, s{sT}, {WS_YA}\ns_add_u32 s{sT}, s{sT}, s{sF}")
            if 'a' in ab: A(f"s_mov_b32 s{sT}, {BIG}")
            for k in range(4):
                A.vmem(f"buffer_atomic_add_f32 v{Y[k]}, v{T[0]}, s[{sWS}:{sWS+3}], s{sT} offen offset:{(k>>1)*2048 + (k&1)*4} sc1", "ya")
        def c_cnt():
            A(f"s_and_b32 s{sT}, s2, 7\ns_lshl_b32 s{sT}, s{sT}, 4\ns_add_u32 s{sT}, s{sT}, s{sF}")
            A.wait_vm("ya")
            A.vmem(f"buffer_atomic_add v{vOne}, v{vL8}, s[{sDbg}:{sDbg+3}], s{sT} offen offset:12 sc1", "sig")
        def c_poll():
            A(f"v_mov_b32 v{vPa}, 0")
            A.vmem(f"buffer_load_dword v{vPd}, v{vPa}, s[{sDbg}:{sDbg+3}], s54 offen sc0 sc1", "poll")
        chunks = {o.get("k_top", 6): c_top, o.get("k_own", 8): c_own, o.get("k_dot", 10): c_dot, o.get("k_red", 11): c_red,
                  o.get("k_act", 12): c_act, o.get("k_cnt", 18): c_cnt, o.get("k_poll", 16): c_poll}
        assert len(chunks) == 7
        for kk in range(5, 20):
            s.rd(kk)
            if kk in chunks:
                chunks[kk]()
                n = {c_top: 4, c_dot: 5, c_red: 6, c_act: 7, c_cnt: 8}.get(chunks[kk])
                if n: st2(n)
            s.refill(kk)
        A(f"s_cmp_eq_u32 s{sPO}, 0\ns_cselect_b32 s{sE}, 128, 0")
        check(sE, "s54")
        A("s_barrier")
        if ST: stamp(A, 12)
        NC = 6; CB = 96; ACC = 192
        order = list(range(16, 32)) + list(range(16))
        S = Sched(A)
        def ld_c(gap, n, spread):
            kk = order[n]
            S.at(gap - 1, "s", f"s_add_u32 s{sT}, s{sCb}, {kk*1024}")
            for j in range(4):
                S.at(gap + j*spread, "vm", f"buffer_load_dwordx4 {vr(CB + (n % NC)*16 + 4*j)}, v{vC[j]}, s[{sWS}:{sWS+3}], s{sT} offen", ("C", n))
        if o.get("ctt"):
            nsh = 4 if mp else 8
            A(f"v_lshlrev_b32 v{t0}, 3, v{vSt}")
            if nsh == 4: A(f"s_and_b32 s{sT}, s{sCt}, 3\ns_lshl_b32 s{sT}, s{sT}, 17")
            else: A(f"s_lshr_b32 s{sT}, s{sCt}, 1\ns_lshl_b32 s{sT}, s{sT}, 17\ns_and_b32 s{sE}, s{sCt}, 1\ns_lshl_b32 s{sE}, s{sE}, 13\ns_add_u32 s{sT}, s{sT}, s{sE}")
            A(f"s_add_u32 s{sT}, s{sT}, s{sCb}")
            for k in ((2, 3, 0, 1) if nsh == 4 else (2, 0)):
                A(f"s_add_u32 s{sE}, s{sT}, {k*8192}")
                A.vmem(f"buffer_load_dword v{vPd}, v{t0}, s[{sWS}:{sWS+3}], s{sE} offen", "pf")
        for n in range(NC - 1): ld_c(-100 + 5*n, n, 1)
        XR, YV, B = 32, 40, 56
        fill = []
        for n in range(32):
            kk = order[n]; b = 16*n
            S.at(b - 1, "wvm", tag=[("C", n)])
            if n + NC - 1 < 32: ld_c(b + 1, n + NC - 1, 2)
            kr = kk + 3
            if 1 <= n and 20 <= kr < 32 and kk >= 16:
                S.at(b + 8, "wvm", tag=[("W", kr)])
                def late(kr=kr, b=b):
                    for k, x in enumerate(s.tr_ops(kr)): S.at(b + 8 + (k >> 1), "lds", x[0], x[1])
                late()
                S.at(b + 15, "wlg", tag=[("w", kr, 3)])
                if s.nxt < 32:
                    ops = s.dma_ops(s.slot[kr])
                    S.at(b + 15, "s", ops[0]); S.at(b + 15, "s", ops[1])
                    for j in range(4): S.at(b + 16 + 2*j + 2, "vm", *ops[2+j])
            for mt in range(4):
                for j in range(4):
                    d = ACC + (mt*4 + j)*4
                    S.mfma(f"{MF} {vr(d)}, {s.wreg(kk, mt)}, {vr(CB + (n % NC)*16 + 4*j)}, {vr(d) if n else 0}", [("w", kk, mt)])
        b = 16*o.get("n_poll", 13) + 9
        S.at(b, "v", f"v_and_b32 v{vPa}, 7, v0"); S.at(b, "v", f"v_lshlrev_b32 v{vPa}, 4, v{vPa}")
        S.at(b + 2, "vm", f"buffer_load_dword v{vPd}, v{vPa}, s[{sDbg}:{sDbg+3}], s{sOw} offen offset:12 sc0 sc1", "poll")
        b = 16*17 + 9
        for mt in range(4):
            S.at(b + mt, "vm", f"buffer_load_dwordx2 v[{XR+2*mt}:{XR+2*mt+1}], v{vRow}, s[{sX}:{sX+3}], s{sXo} offen offset:{mt*32}", "x")
        S.at(b + 4, "s", f"s_lshl_b32 s{sTmp}, s{sRg}, 6"); S.at(b + 4, "s", f"s_add_u32 s{sTmp}, s{sTmp}, {WS_G}")
        S.at(b + 4, "v", f"v_lshrrev_b32 v{t0}, 8, v{vRow}")
        S.at(b + 5, "vm", f"buffer_load_dword v{GV}, v{t0}, s[{sWS}:{sWS+3}], s{sTmp} offen sc0 sc1", "x")
        b = 16*o.get("n_y", 19) + 9
        S.at(b, "fn", lambda: check(52, 12))
        S.at(b + 1, "s", f"s_lshl_b32 s{sTmp}, s{sCt}, 8"); S.at(b + 1, "s", f"s_add_u32 s{sTmp}, s{sTmp}, {WS_YA}")
        for mt in range(4):
            S.at(b + 2 + mt, "vm", f"buffer_load_dwordx4 {vr(YV+4*mt)}, v{vY}, s[{sWS}:{sWS+3}], s{sTmp} offen offset:{mt*16} sc0 sc1", "y")
        ops = []
        ops += [f"v_sub_f32 v{G1}, 1.0, v{GV}", f"v_cvt_pk_bf16_f32 v{G1}, v{G1}, v{G1}", f"v_and_b32 v{G1}, 0xffff0000, v{G1}"]
        def unpk(d, p): return [f"v_lshlrev_b32 v{d}, 16, v{p}", f"v_and_b32 v{d+1}, 0xffff0000, v{p}"]
        stages = []
        for k in range(8):
            y = YV + 2*k; bb = B + 2*k
            stages.append([f"v_cvt_pk_bf16_f32 v{y+1}, v{y}, v{y+1}"] + unpk(y, y+1) +
                   [f"v_mul_f32 v{y}, v{y}, v{SIG}", f"v_mul_f32 v{y+1}, v{y+1}, v{SIG}", f"v_cvt_pk_bf16_f32 v{y+1}, v{y}, v{y+1}"] + unpk(y, y+1) +
                   unpk(bb, XR+k) + [f"v_add_f32 v{bb}, v{bb}, v{y}", f"v_add_f32 v{bb+1}, v{bb+1}, v{y+1}", f"v_cvt_pk_bf16_f32 v{bb+1}, v{bb}, v{bb+1}"] + unpk(bb, bb+1) +
                   [f"v_mul_f32 v{bb}, v{bb}, v{G1}", f"v_mul_f32 v{bb+1}, v{bb+1}, v{G1}", f"v_cvt_pk_bf16_f32 v{bb+1}, v{bb}, v{bb+1}"] + unpk(bb, bb+1))
        for k in range(0, 8, 2):
            for a, c in zip(stages[k], stages[k+1]): ops += [a, c]
        g = 16*o.get("n_b", 25)
        S.at(g, "wvm", tag=["y", "x"])
        while ops:
            if not any(k == "vm" for (k, _, _) in S.fill.get(g, [])):
                S.at(g, "v", ops.pop(0))
                if ops: S.at(g, "v", ops.pop(0))
            g += 1
        assert g <= 512, g
        if T2: S.at(256, "fn", lambda: stamp(A, 9))
        S.at(508, "v", f"v_add_u32 v{t0}, s{sL0}, v{vSt}")
        S.at(509, "s", f"s_mul_i32 s{sT}, s{sWv}, {4096 - 16384}")
        S.at(509, "v", f"v_add_u32 v{t1}, s{sT}, v{t0}")
        S.emit()
        A("s_nop 3")
        for j in range(4):
            for mt in range(4):
                A(f"ds_write_b128 v{t0}, {vr(ACC + (mt*4+j)*4)} offset:{j*4096 + mt*1024}")
            if j == 2: A("s_waitcnt lgkmcnt(4)")
        A("s_waitcnt lgkmcnt(0)\ns_barrier"); A.lg = []
        R = CB
        for mt in range(4):
            for ww in range(4):
                if len(A.lg) >= 15: A.wait_lg([A.lg[0]])
                A.lds(f"ds_read_b128 {vr(R + (ww*4+mt)*4)}, v{t1} offset:{ww*16384 + mt*1024}", ("r", mt))
        for mt in range(4):
            A.wait_lg([("r", mt)])
            seq = []
            for k in (2*mt, 2*mt+1):
                a = R + 2*k
                seq.append([f"v_pk_add_f32 v[{a}:{a+1}], v[{a}:{a+1}], v[{a+16}:{a+17}]",
                    f"v_pk_add_f32 v[{a+32}:{a+33}], v[{a+32}:{a+33}], v[{a+48}:{a+49}]",
                    f"v_pk_add_f32 v[{a}:{a+1}], v[{a}:{a+1}], v[{a+32}:{a+33}]",
                    f"v_cvt_pk_bf16_f32 v{a+1}, v{a}, v{a+1}"] + unpk(a, a+1) +
                    [f"v_mul_f32 v{a}, v{a}, v{GV}", f"v_mul_f32 v{a+1}, v{a+1}, v{GV}",
                    f"v_cvt_pk_bf16_f32 v{a+1}, v{a}, v{a+1}"] + unpk(a, a+1) +
                    [f"v_pk_add_f32 v[{a}:{a+1}], v[{a}:{a+1}], v[{B+2*k}:{B+2*k+1}]",
                    f"v_cvt_pk_bf16_f32 v{XR+k}, v{a}, v{a+1}"])
            for x, y in zip(*seq): A(x); A(y)
            A(f"buffer_store_dwordx2 v[{XR+2*mt}:{XR+2*mt+1}], v{vRow}, s[{sOut}:{sOut+3}], s{sXo} offen offset:{mt*32}")
        if ST: stamp_end(A, s.stampk, sWS, sWv)
        A(f"L_end_{name}:\ns_endpgm")
        for k in range(nchk[0]):
            A(f"L_qstub{k}_{name}:\ns_call_b64 s[{sRet}:{sRet+1}], L_qspin_{name}\ns_branch L_qback{k}_{name}")
        A(f"L_qspin_{name}:")
        A(f"s_mov_b32 s53, 0")
        A(f"L_qspinl_{name}:")
        A(f"s_sleep {o.get('slp', 4)}")
        A(f"buffer_load_dword v{vPd}, v{vPa}, s[{sDbg}:{sDbg+3}], s{sT} offen sc0 sc1")
        A("s_waitcnt vmcnt(0)")
        A(f"v_cmp_ne_u32 vcc, s{sE}, v{vPd}")
        A(f"s_add_u32 s53, s53, 1")
        A(f"s_cbranch_vccz L_qspinx_{name}")
        A(f"s_cmp_lt_u32 s53, 0x20000\ns_cbranch_scc1 L_qspinl_{name}")
        A(f"L_qspinx_{name}:")
        A(f"s_setpc_b64 s[{sRet}:{sRet+1}]")
```

```python
import re
from k1 import Sched
import hazard
SCC_W = ("s_add", "s_sub", "s_and", "s_or", "s_xor", "s_lshl", "s_lshr", "s_ashr", "s_cmp", "s_bfe", "s_min", "s_max", "s_not", "s_bitcmp", "s_andn2", "s_orn2")
SCC_R = ("s_cselect", "s_addc", "s_subb", "s_cbranch", "s_cmov")
class Op: pass
def ccls(t):
    op = t.split()[0]
    if re.match(r"v_(exp|rcp|log|rsq|sqrt)_", op): return "T"
    if op.startswith(("v_", "ds_")): return "V"
    if op.startswith(("buffer_", "global_")): return "G"
    return "S"
class Sched2(Sched):
    def emit(s, D=10, DS=40, LA=5, AGE=9, verbose=False):
        A = s.A
        for g in sorted(k for k in s.fill if k < 0):
            for op in s.fill[g]: s.emit_op(op)
        n = len(s.mf)
        ops = []
        for g in sorted(k for k in s.fill if 0 <= k < n):
            for (kind, text, tag) in s.fill[g]:
                soft = kind.endswith("~"); kind = kind.rstrip("~")
                for t in (text.split("\n") if kind in ("s", "v") else [text]):
                    o = Op(); o.soft = soft; o.g = g; o.kind = kind; o.text = t; o.tag = tag; o.i = None
                    if kind in ("wvm", "wlg"): o.c = "S"; o.ty = "wait"
                    elif kind == "fn": o.c = "F"; o.ty = "fence"
                    else:
                        o.i = hazard.parse(t); o.c = ccls(t)
                        o.ty = "fence" if (t.startswith(("s_barrier", "s_waitcnt", "s_load", "ds_write")) or "exec" in t) else {"lds": "lds", "vm": "vm"}.get(kind, "alu")
                        assert (o.c == "G") == (kind == "vm"), t
                    o.sw = o.i is not None and o.i.op.startswith(SCC_W)
                    o.sr = o.i is not None and o.i.op.startswith(SCC_R)
                    o.hold = False
                    ops.append(o)
        last = None
        for o in ops:
            if o.sr: assert last is not None; last.hold = max(last.hold, 1); last.nread = getattr(last, "nread", 0) + 1; o.prod = last
            if o.sw: last = o
        def passes(b, a):
            if a.c == "F" or b.c == "F": return False
            if a.soft != b.soft:
                sf, hd = (a, b) if a.soft else (b, a)
                if sf.ty == "wait": return a.soft or hd.ty in ("alu", "wait") or hd.text == "s_barrier" or hd.tag not in sf.tag
                if hd.ty == "wait" or hd.text == "s_barrier": return True
                if a.i.w & (b.i.r | b.i.w) or a.i.r & b.i.w: return False
                return not ((b.sr and b.prod is a) or (a.sr and b.sw) or (a.sw and b.hold))
            if a.ty == "fence" or b.ty == "fence": return False
            if a.ty == "wait": return b.ty == "alu" and b.c == "S"
            if b.ty == "wait": return a.ty == "alu"
            if a.ty == b.ty and a.ty != "alu": return False
            if a.i.w & (b.i.r | b.i.w) or a.i.r & b.i.w: return False
            if b.sr and b.prod is a: return False
            if a.sr and b.sw: return False
            if a.sw and b.hold: return False
            return True
        hist = []
        def rec():
            while rec.k < len(A.L):
                i = hazard.parse(A.L[rec.k]); rec.k += 1
                if i: hist.append(i)
        rec.k = max(0, len(A.L) - 14)
        def haz(i):
            rec(); d = 0
            for p in reversed(hist[-13:]):
                if hazard.need(p, i) > d: return True
                d += p.states
                if d >= 12: break
            return False
        issued = {}
        pend = []; k = 0; held = [0]
        st = dict(over=0, maxd=0)
        def out(o, g):
            pend.remove(o)
            st["maxd"] = max(st["maxd"], g - o.g)
            n0 = len(A.L)
            s.emit_op((o.kind, o.text, o.tag))
            if o.kind == "lds": issued[o.tag] = g
            if o.hold: held[0] = o.nread
            if o.sr: held[0] -= 1
            return len(A.L) > n0
        def cost(t, c): return {"S": t + 4, "V": max(t, 8) + 4, "T": max(t, 8) + 8, "G": t + 12, "F": 16}[c]
        def free(j):
            b = pend[j]
            if held[0] and b.sw: return False
            if b.kind == "lds" and len(A.lg) >= 15: return False
            return all(passes(b, a) for a in pend[:j])
        t = 4
        for m, (text, need) in enumerate(s.mf):
            if need:
                idx = [j for j, o in enumerate(pend) if o.kind == "lds" and o.tag in need]
                for o in pend[:idx[-1] + 1] if idx else []:
                    if out(o, m - 1): t = cost(t, o.c)
                if idx and verbose: print("forced", m)
                if A.wait_lg(need): t += 4
            if t > 16:
                st["over"] += t - 16
                if verbose: print("gap", m - 1, "+", t - 16)
            A(text); t = 4
            while k < len(ops) and ops[k].g <= m: pend.append(ops[k]); k += 1
            def needs(a, b): return [x for q in range(a, min(b, n)) for x in s.mf[q][1] if x in A.lg and not any(o.tag == x for o in pend)]
            hasG = any(o.c == "G" and free(j) and not haz(o.i) for j, o in enumerate(pend))
            if needs(m + 1, m + 2) or (needs(m + 1, m + 3) and not hasG):
                w = needs(m + 1, m + 2 + (0 if needs(m + 1, m + 2) else 1)) + [x for x in needs(m + 1, m + 2 + LA) if m - issued.get(x, -99) >= AGE]
                A.wait_lg(w); t = 8
            while pend:
                late = any(m - o.g > (DS if o.soft else D) for o in pend)
                pick = None
                order = ("G", "S", "V", "T", "F") if t == 4 else ("V", "T", "S", "F")
                for (cl, sf) in [(c_, False) for c_ in order] + [(c_, True) for c_ in order]:
                    for j, o in enumerate(pend):
                        if o.c != cl or o.soft != sf: continue
                        if cl != "F" and cost(t, cl) > 16: continue
                        if cl == "F" and t > 8: continue
                        if not free(j): continue
                        if o.i is not None and haz(o.i): continue
                        pick = o; break
                    if pick: break
                if pick is None and late:
                    j = next(j for j, o in enumerate(pend) if m - o.g > (DS if o.soft else D))
                    while True:
                        bl = [q for q in range(j) if not passes(pend[j], pend[q])]
                        if not bl: break
                        j = bl[0]
                    if held[0] and pend[j].sw: j = next(q for q, o in enumerate(pend) if o.sr)
                    if free(j): pick = pend[j]
                if pick is None: break
                if out(pick, m): t = cost(t, pick.c)
        for o in list(pend): out(o, n)
        for g in sorted(k for k in s.fill if k >= n):
            for op in s.fill[g]: s.emit_op(op)
        print("sched2: overflow", st["over"], "max delay", st["maxd"])
```

```python
from asmlib import *
from k1 import Sched, MF, wave_reduce_add
import k2
from k2 import S as S_, P, C, O, Kf, Vf, Q, Lr, ONES, NEGV, vSt, vA, vNM, vNMP, vNEG, vT, vPark
from k2 import sX, sW, sWS, sKV, sH, sI, sWv, sW8, sN, sSw, sA, sB, sT, sG, sEv, sTT, sRbA, sRbB, sRbP, sTri, sRet, sCtxA, sCtxB, sBad, sTmp, sRbS
import ko
from sched2 import Sched2
from k2 import interval, hook_site, flush, gen_hook, gen_slow

sDbg = 4
sPO, sNW0, sM1, sM2, sCnt = 3, 14, 15, 16, 17
vPa, vPd = 28, 29

def srd2(A, d, nbytes):
    A(f"s_mov_b32 s{d+2}, {nbytes}")
    A(f"s_mov_b32 s{d+3}, 0x20000")
def srd3(A, d): A(f"s_and_b32 s{d+1}, s{d+1}, 0xffff")

def gen(name, L=16, NB=6, st_flags="sc1", extra_start=6*64, store_start=9*64-32, store_step=10, stampk=None, opt={},
        sig_hs=6, poll1=330, chk_hs=13, code_kb=64, pfk3=None, hmap=0, kv_flags=None, rot=0, dbg='', fuse=1, oo={}, lp='kcvq', lpv=20, lpq=200, s2=1, lpx=300, lpw=(-990, 150, 420), dr=None, l2g=7, pw=-1, tw=0, cpf=1, pfl=0):
    A = Asm()
    ST = stampk is not None
    A(khead(name))
    A(f"s_cmp_ge_u32 s2, 256\ns_cbranch_scc1 L_end_{name}")
    sC, sK, sV, sR, sGw = 24, 28, 32, 48, 52
    A(f"s_load_dwordx2 s[{sC}:{sC+1}], s[0:1], 8")
    A(f"s_load_dwordx2 s[{sK}:{sK+1}], s[0:1], 24")
    A(f"s_load_dwordx2 s[{sX}:{sX+1}], s[0:1], 0")
    A(f"s_load_dwordx2 s[{sV}:{sV+1}], s[0:1], 32")
    A(f"s_load_dwordx2 s[{sR}:{sR+1}], s[0:1], 56")
    A(f"s_load_dwordx2 s[{sGw}:{sGw+1}], s[0:1], 88")
    A(f"s_load_dwordx2 s[{sWS}:{sWS+1}], s[0:1], 112")
    A(f"s_load_dwordx2 s[{sDbg}:{sDbg+1}], s[0:1], 104")
    A("s_load_dwordx2 s[12:13], s[0:1], 16")
    A("s_getpc_b64 s[62:63]")
    A(f"L_pc_{name}:")
    if cpf:
        A("v_lshrrev_b32 v1, 6, v0\nv_and_b32 v2, 7, v0\nv_lshl_or_b32 v1, v1, 3, v2")
        A("s_lshr_b32 s44, s2, 3\ns_lshl_b32 s44, s44, 11")
        A("v_lshl_add_u32 v1, v1, 6, s44")
        A(f"v_min_u32 v1, L_last_{name}-L_pc_{name}-4, v1")
        A.vmem("global_load_dword v30, v1, s[62:63]", "pf")
    else:
        A("v_lshlrev_b32 v1, 6, v0")
        A.vmem("global_load_dword v30, v1, s[62:63]", "pf")
        A("s_bfe_u32 s44, s2, 0x20003")
        A(f"s_add_u32 s44, s44, 1\ns_lshl_b32 s44, s44, 14")
        A(f"s_min_u32 s44, s44, L_last_{name}-L_pc_{name}-0x4000")
        A("v_add_u32 v2, s44, v1")
        A.vmem("global_load_dword v31, v2, s[62:63]", "pf")
    if ST: stamp_begin(A)
    A("v_lshrrev_b32 v1, 6, v0")
    A("v_and_b32 v0, 63, v0")
    A(f"v_readfirstlane_b32 s{sWv}, v1")
    if hmap:
        A(f"s_and_b32 s{sH}, s2, 7\ns_lshl_b32 s{sH}, s{sH}, 2\ns_bfe_u32 s{sI}, s2, 0x20003\ns_or_b32 s{sH}, s{sH}, s{sI}")
    else:
        A(f"s_and_b32 s{sH}, s2, 31")
    A(f"s_lshr_b32 s{sI}, s2, 5")
    if kv_flags is None: kv_flags = st_flags
    aW = list(range(2, 10)); aV = list(range(10, 14)); aC = [14, 15, 26, 27]
    dW = 16; dV = [17, 18]; dC = [19, 20]
    t0, t1, t2, t3 = 22, 23, 24, 25
    A(f"v_lshrrev_b32 v{t0}, 4, v0")
    A(f"v_and_b32 v{t1}, 15, v0")
    A(f"s_lshl_b32 s{sW8}, s{sWv}, 13")
    A(f"s_and_b32 s44, s{sWv}, 1")
    A("s_lshl_b32 s44, s44, 3")
    A(f"v_lshlrev_b32 v{t2}, 1, v{t0}")
    A(f"v_xor_b32 v{t2}, v{t2}, v{t1}")
    A(f"v_xor_b32 v{t2}, s44, v{t2}")
    A(f"v_lshlrev_b32 v{dW}, 13, v{t0}")
    A(f"v_lshl_or_b32 v{dW}, v{t2}, 4, v{dW}")
    A(f"v_lshrrev_b32 v{t1}, 3, v0")
    A(f"v_and_b32 v{t2}, 7, v0")
    A(f"v_xor_b32 v{t3}, v{t2}, v{t0}")
    A(f"v_lshlrev_b32 v{dC[0]}, 10, v{t1}")
    A(f"v_lshl_or_b32 v{dC[0]}, v{t3}, 4, v{dC[0]}")
    A(f"v_xor_b32 v{dC[1]}, 64, v{dC[0]}")
    A(f"v_lshlrev_b32 v{vSt}, 4, v0")
    srd2(A, sC, 2048*1024); srd2(A, sK, 4096*1024); srd2(A, sX, 2048*1024); srd2(A, sV, 4096*1024)
    srd2(A, sWS, WS_BYTES); srd2(A, sR, 1024); srd2(A, sGw, 1024); srd2(A, sDbg, 256)
    A(f"s_lshl_b32 s45, s{sI}, 2\ns_add_u32 s45, s45, s{sWv}")
    A("s_lshl_b32 s46, s45, 16")
    A(f"s_lshl_b32 s47, s{sH}, 8")
    A(f"s_lshl_b32 s56, s{sWv}, 16\ns_add_u32 s56, s56, s47")
    A(f"s_lshl_b32 s57, s{sWv}, 17\ns_add_u32 s57, s57, s47")
    A(f"s_lshl_b32 s60, s2, 2\ns_add_u32 s60, s60, s{sWv}\ns_lshl_b32 s61, s60, 11")
    sRot, sCb, sWc = 101, 100, sTmp
    if rot == 1:
        A(f"s_lshr_b32 s{sRot}, s2, 2\ns_and_b32 s{sRot}, s{sRot}, 6\ns_add_u32 s{sRot}, s{sRot}, s2\ns_add_u32 s{sRot}, s{sRot}, s{sI}")
    elif rot == 2:
        A(f"s_lshr_b32 s{sRot}, s2, 2\ns_and_b32 s{sRot}, s{sRot}, 6\ns_add_u32 s{sRot}, s{sRot}, s{sI}")
    else: A(f"s_mov_b32 s{sRot}, {rot-10 if rot >= 10 else 0}")
    A(f"s_and_b32 s{sRot}, s{sRot}, 7\ns_lshl_b32 s{sRot}, s{sRot}, 7")
    if hmap:
        A(f"s_lshr_b32 s66, s2, 3\ns_lshl_b32 s66, s66, 2\ns_add_u32 s66, s66, s{sWv}\ns_lshl_b32 s66, s66, 5\ns_and_b32 s67, s2, 7\ns_add_u32 s66, s66, s67\ns_lshl_b32 s66, s66, 10")
        A(f"v_and_b32 v32, 15, v0\nv_lshlrev_b32 v32, 6, v32\nv_lshl_or_b32 v32, v{t0}, 13, v32")
    else:
        A("s_lshl_b32 s66, s60, 12")
        A("v_lshlrev_b32 v32, 6, v0")
    A("v_lshlrev_b32 v33, 5, v0")
    A(f"s_lshr_b32 s67, s2, 3\ns_lshl_b32 s67, s67, 2\ns_add_u32 s67, s67, s{sWv}\ns_lshl_b32 s67, s67, 14")
    A(f"s_mov_b32 s63, {WS_R}\ns_lshl_b32 s58, s{sH}, 19\ns_add_u32 s62, s58, {WS_V}")
    A(f"v_lshlrev_b32 v38, {l2g}, v0")
    A(f"v_lshrrev_b32 v39, 2, v0\nv_and_b32 v1, 3, v0\nv_lshlrev_b32 v39, 13, v39\nv_lshl_or_b32 v39, v1, 6, v39")
    A("s_lshl_b32 s19, s45, 17\ns_add_u32 s19, s19, s47")
    A("s_waitcnt lgkmcnt(0)")
    if ST and not fuse: stamp(A, 11)
    if tw:
        for (p, o) in [(sC, "s46"), (sK, "s56"), (sX, "s61"), (sK, "s66"), (sC, "s61"), (sR, "0"), (sGw, "0"), (sWS, "s63"), (sDbg, "0")] + \
                      ([(sV, "s57"), (sV, "s66"), (12, "s66"), (12, "s56"), (sWS, "s58"), (sWS, "s62")] if tw > 1 else []):
            A(f"s_load_dword s59, s[{p}:{p+1}], {o}")
    for d in (sK, sC): srd3(A, d)
    def pf0():
        if 'c' in lp: A.vmem(f"buffer_load_dword v35, v33, s[{sC}:{sC+3}], s61 offen", "pf")
        if 'k' in lp: A.vmem(f"buffer_load_dword v34, v32, s[{sK}:{sK+3}], s66 offen", "pf")
    if pfl == 0: pf0()
    for d in (sX, sV, sR, sGw, sWS, sDbg): srd3(A, d)
    RG = 64
    S = Sched2(A) if s2 else Sched(A)
    def weave(g, lines, per=2, kind="v"):
        n = 0
        for ln in lines:
            for x in ln.split("\n"):
                S.at(g + n // per, kind, x); n += 1
        return g + (n + per - 1) // per
    Q0 = 1024
    def wslot(hs):
        if hs < 22: return ((hs % 8) >> 2, hs & 3)
        if hs < 24: return (2, hs - 22)
        return (3 + ((hs >> 2) & 1 ^ 0 if False else (((hs - 24) >> 2) & 1)), hs & 3)
    sXs, sXl, sWb = 8, 9, 10
    busy = []
    def claim(reg, g0, g1):
        for (r, a, b) in busy: assert r != reg or g1 < a or g0 > b, (reg, g0, g1, a, b)
        busy.append((reg, g0, g1))
    def dma_w(gap, hs, spread=1):
        b, t = wslot(hs)
        sWc = 59 if 22 <= hs < 32 else sTmp
        claim(sWc, gap, gap + spread)
        if hs < 16: k0, ex, base, sr = hs*64, 0, 56, sK
        elif hs < 32: k0, ex, base, sr = ((hs-16) & 7)*128, ((hs-16) >> 3)*128, 57, sV
        else: k0, ex, base, sr = (hs-32)*64, 0, sWb, sW
        S.at(gap, "s", f"s_add_u32 s{sWc}, s{sRot}, {k0}")
        S.at(gap, "s", f"s_and_b32 s{sWc}, s{sWc}, 1023")
        S.at(gap, "s", f"s_lshl_b32 s{sWc}, s{sWc}, 12")
        S.at(gap, "s", f"s_add_u32 s{sWc}, s{sWc}, s{base}")
        if ex: S.at(gap, "s", f"s_add_u32 s{sWc}, s{sWc}, {ex}")
        for j in range(2):
            lds = b*32768 + t*2048 + j*1024
            vo = dV[j] if 16 <= hs < 32 else dW
            g = gap + j*spread
            S.at(g, "s", f"s_add_u32 m0, s{sW8}, {lds}")
            if j: S.at(g, "s", f"s_add_u32 s{sWc}, s{sWc}, {(8 if 16 <= hs < 32 else 4)*8192}")
            elif not s2 or gap < 0: S.at(g, "s", "s_nop 0")
            S.at(g, "vm", f"buffer_load_dwordx4 v{vo}, s[{sr}:{sr+3}], s{sWc} offen lds", ("W", hs))
    def cblock(s): return 2 + ((s+1) % 3) if s < 8 else (s - 8 + 1) % 3
    def dma_c(gap, s, spread=2):
        claim(sCb, gap, gap + 7*spread)
        S.at(gap, "s", f"s_add_u32 s{sCb}, s{sRot}, {(s & 7)*128}")
        S.at(gap, "s", f"s_and_b32 s{sCb}, s{sCb}, 1023")
        for j in range(8):
            g = gap + j*spread
            S.at(g, "s", f"s_add_u32 m0, s{sW8}, {cblock(s)*32768 + j*1024}")
            if j == 0: S.at(g, "s", f"s_add_u32 s{sCb}, s{sCb}, s{46 if s < 8 else sXs}")
            elif j == 4 and s >= 8: S.at(g, "s", f"s_add_u32 s{sCb}, s{sCb}, s{sXl}")
            else: S.at(g, "s", f"s_add_u32 s{sCb}, s{sCb}, 8192")
            sr = sC if s < 8 else sX
            S.at(g, "vm", f"buffer_load_dwordx4 v{dC[j&1]}, s[{sr}:{sr+3}], s{sCb} offen lds", ("C", s))
    def creg(ks, tg): return ((ks & 15)*4 + tg) * 4
    def read_c(gap, s, spread=4):
        S.at(gap, "wvm", tag=[("C", s)])
        n = 0
        cb = cblock(s) - (2 if s < 8 else 0)
        for k2_ in range(2):
            for tg in range(4):
                off = (cb & 1)*32768 + tg*2048
                S.at(gap + n*spread, "lds", f"ds_read_b128 {ar(creg(2*s+k2_, tg))}, v{aC[k2_ + 2*(cb>>1)]} offset:{off}", ("c", 2*s+k2_, tg))
                n += 1
    g = -1000
    for n_, (kind, idx) in enumerate([("C",0),("W",0),("W",1),("R",0),("C",1),("W",2),("W",3),("C",2),("W",4),("W",5)]):
        if n_ == pw: S.at(g, "wvm", tag=["pf"])
        if pfl and n_ == pfl: S.at(g, "fn", pf0)
        if n_ == 4 and ST and not fuse: S.at(g, "fn", lambda: stamp(A, 12))
        if kind == "C": dma_c(g, idx, 1); g += 8
        elif kind == "W": dma_w(g, idx); g += 2
        else:
            S.at(g, "vm", f"buffer_load_dwordx4 {vr(RG)}, v{vSt}, s[{sX}:{sX+3}], s61 offen", "rg")
            S.at(g, "vm", f"buffer_load_dwordx4 {vr(RG+4)}, v{vSt}, s[{sX}:{sX+3}], s61 offen offset:1024", "rg")
            S.at(g, "vm", f"buffer_load_dwordx4 {vr(RG+8)}, v{vSt}, s[{sR}:{sR+3}], 0 offen", "rg")
            S.at(g, "vm", f"buffer_load_dwordx4 {vr(RG+12)}, v{vSt}, s[{sGw}:{sGw+3}], 0 offen", "rg")
            g += 1
    def consts_a():
        A(f"v_bfe_u32 v{t1}, v0, 2, 2")
        A(f"v_and_b32 v{t2}, 3, v0")
        A(f"v_and_b32 v{t3}, 1, v{t0}")
        A(f"v_lshl_or_b32 v{t3}, v{t3}, 2, v{t1}")
        A(f"v_lshlrev_b32 v{aW[0]}, 13, v{t0}")
        A(f"v_lshl_or_b32 v{aW[0]}, v{t1}, 8, v{aW[0]}")
        A(f"v_lshl_or_b32 v{aW[0]}, v{t3}, 5, v{aW[0]}")
        A(f"v_lshl_or_b32 v{aW[0]}, v{t2}, 3, v{aW[0]}")
        for d in range(1, 8): A(f"v_xor_b32 v{aW[d]}, {d<<5}, v{aW[0]}")
        A(f"v_lshrrev_b32 v{aV[0]}, 1, v{t0}")
        A(f"v_lshlrev_b32 v{aV[0]}, 13, v{aV[0]}")
        A(f"v_and_b32 v{t3}, 1, v{t0}")
        A(f"v_lshl_or_b32 v{aV[0]}, v{t3}, 10, v{aV[0]}")
        A(f"v_lshl_or_b32 v{aV[0]}, v{t1}, 7, v{aV[0]}")
        A(f"v_lshl_or_b32 v{aV[0]}, v{t3}, 6, v{aV[0]}")
        A(f"v_lshrrev_b32 v{t3}, 1, v{t1}")
        A(f"v_lshl_or_b32 v{aV[0]}, v{t3}, 5, v{aV[0]}")
        A(f"v_lshl_or_b32 v{aV[0]}, v{t2}, 3, v{aV[0]}")
        for d in range(1, 4): A(f"v_xor_b32 v{aV[d]}, {d<<5}, v{aV[0]}")
        A(f"v_and_b32 v{t1}, 15, v0")
        A(f"v_lshrrev_b32 v{t2}, 1, v{t1}")
        A(f"v_xor_b32 v{t2}, v{t2}, v{t0}")
        A(f"v_lshlrev_b32 v{aC[0]}, 7, v{t1}")
        A(f"v_lshl_or_b32 v{aC[0]}, v{t2}, 4, v{aC[0]}")
        A(f"v_add_u32 v{aC[0]}, s{sW8}, v{aC[0]}")
        A(f"v_add_u32 v{aC[0]}, 0x10000, v{aC[0]}")
        A(f"v_xor_b32 v{aC[1]}, 64, v{aC[0]}")
        A(f"v_add_u32 v{aC[2]}, 0x10000, v{aC[0]}")
        A(f"v_add_u32 v{aC[3]}, 0x10000, v{aC[1]}")
        A(f"v_lshrrev_b32 v{t1}, 3, v0")
        A(f"v_and_b32 v{t2}, 7, v0")
        A(f"v_and_b32 v{t3}, 1, v{t0}")
        A(f"v_lshlrev_b32 v{t3}, 1, v{t3}")
        A(f"v_xor_b32 v{t3}, v{t3}, v{t2}")
        A(f"v_lshlrev_b32 v{dV[0]}, 13, v{t1}")
        A(f"v_lshl_or_b32 v{dV[0]}, v{t3}, 4, v{dV[0]}")
        A(f"v_xor_b32 v{dV[1]}, 64, v{dV[0]}")
        A(f"s_lshl_b32 s58, s{sH}, 6\ns_lshl_b32 s63, s45, 1\ns_add_u32 s58, s58, s63\ns_lshl_b32 s58, s58, 13")
        A("s_mov_b32 s64, 0x3e0293ee\ns_mov_b32 s65, 0x3e0293ee")
        A(f"s_lshl_b32 s{sXs}, s{sI}, 17")
        A(f"s_lshl_b32 s44, s{sWv}, 15")
        A(f"s_lshl_b32 s{sXl}, s{sI}, 18")
        A(f"s_sub_u32 s{sXl}, {(15<<17) - 3*8192}, s{sXl}")
        A(f"s_add_u32 s{sXs}, s{sXs}, s44")
        A(f"s_mov_b32 s{sWb}, s56")
        A(f"s_lshl_b32 s11, s{sWv}, 12")
        A(f"s_cmp_eq_u32 s{sWv}, 0")
        A(f"s_cselect_b32 s{sPO}, 0, 0x1000")
        A(f"s_cselect_b32 s{sNW0}, 0, -1")
        A(f"s_and_b32 s44, s{sH}, 24")
        A(f"s_lshl_b32 s{sM1}, 1, s44")
        A(f"s_lshr_b32 s63, s{sI}, 1\ns_lshr_b32 s{sM2}, 255, s63\ns_lshl_b32 s{sM2}, s{sM2}, s44")
        A(f"s_and_b32 s44, s{sH}, 7\ns_lshl_b32 s44, s44, 4\ns_add_u32 s44, s44, 8")
        A(f"v_mov_b32 v{vPa}, s44")
    def rg():
        A.wait_vm("rg")
        for tk in range(2):
            xr = RG + 4*tk; acc_r, acc_g = RG+16+2*tk, RG+17+2*tk
            tx, tw, tp = RG+24, RG+25, RG+26
            first = True
            for j in range(4):
                for hi in range(2):
                    if hi: A(f"v_and_b32 v{tx}, 0xffff0000, v{xr+j}")
                    else: A(f"v_lshlrev_b32 v{tx}, 16, v{xr+j}")
                    if hi: A(f"v_and_b32 v{tw}, 0xffff0000, v{RG+8+j}")
                    else: A(f"v_lshlrev_b32 v{tw}, 16, v{RG+8+j}")
                    if first: A(f"v_mul_f32 v{acc_r}, v{tx}, v{tw}")
                    else: A(f"v_fmac_f32 v{acc_r}, v{tx}, v{tw}")
                    if hi: A(f"v_and_b32 v{tw}, 0xffff0000, v{RG+12+j}")
                    else: A(f"v_lshlrev_b32 v{tw}, 16, v{RG+12+j}")
                    A(f"v_mul_f32 v{tp}, v{tx}, v{tw}")
                    A(f"v_cvt_pk_bf16_f32 v{tp}, v{tp}, v{tp}")
                    A(f"v_and_b32 v{tp}, 0xffff0000, v{tp}")
                    if first: A(f"v_mov_b32 v{acc_g}, v{tp}")
                    else: A(f"v_add_f32 v{acc_g}, v{acc_g}, v{tp}")
                    first = False
            wave_reduce_add(A, acc_r, tx)
            wave_reduce_add(A, acc_g, tx)
            A(f"v_cvt_pk_bf16_f32 v{acc_r}, v{acc_r}, v{acc_r}")
            A(f"v_ashrrev_i32 v{tx}, 31, v{acc_r}")
            A(f"v_or_b32 v{tx}, 0x80000000, v{tx}")
            A(f"v_xor_b32 v{acc_r}, v{acc_r}, v{tx}")
            A(f"v_and_b32 v{acc_r}, 0xffff0000, v{acc_r}")
            A(f"s_lshl_b32 s62, s60, 1\ns_sub_u32 s62, {2047 - tk}, s62")
            A(f"v_or_b32 v{acc_r}, s62, v{acc_r}")
            A(f"v_cvt_pk_bf16_f32 v{acc_g}, v{acc_g}, v{acc_g}")
            A(f"v_and_b32 v{acc_g}, 0xffff0000, v{acc_g}")
            A(f"v_mul_f32 v{acc_g}, 0xbfb8aa3b, v{acc_g}")
            A(f"v_exp_f32 v{acc_g}, v{acc_g}")
            A("s_nop 0")
            A(f"v_add_f32 v{acc_g}, 1.0, v{acc_g}")
            A(f"v_rcp_f32 v{acc_g}, v{acc_g}")
            A("s_nop 0")
            A(f"v_cvt_pk_bf16_f32 v{acc_g}, v{acc_g}, v{acc_g}")
            A(f"v_and_b32 v{acc_g}, 0xffff0000, v{acc_g}")
        A(f"v_mov_b32 v{RG+28}, v{RG+16}\nv_mov_b32 v{RG+29}, v{RG+18}")
        A(f"v_mov_b32 v{RG+30}, v{RG+17}\nv_mov_b32 v{RG+31}, v{RG+19}")
        A(f"v_mov_b32 v{RG+24}, 0")
        A("s_lshl_b32 s62, s60, 3")
        A(f"s_add_u32 s62, s62, {WS_R}")
        A("s_mov_b64 exec, 1")
        A.vmem(f"buffer_store_dwordx2 v[{RG+28}:{RG+29}], v{RG+24}, s[{sWS}:{sWS+3}], s62 offen sc1", "rgs")
        A(f"s_add_u32 s62, s62, {WS_G-WS_R}")
        A.vmem(f"buffer_store_dwordx2 v[{RG+30}:{RG+31}], v{RG+24}, s[{sWS}:{sWS+3}], s62 offen sc1", "rgs")
        A("s_mov_b64 exec, -1")
        if fuse:
            A(f"s_lshl_b32 s62, s{sWv}, 10\ns_add_u32 s62, s62, {ko.WS_YA}\ns_cmp_eq_u32 s2, 0\ns_cselect_b32 s62, s62, {ko.BIG}")
            for r in range(4): A(f"v_mov_b32 v{RG+32+r}, 0")
            A.vmem(f"buffer_store_dwordx4 {vr(RG+32)}, v{vSt}, s[{sWS}:{sWS+3}], s62 offen sc1", "rgs")
    if 'v' in lp: S.at(lpv, "vm", f"buffer_load_dword v36, v32, s[{sV}:{sV+3}], s66 offen", "pf")
    if 'q' in lp:
        for k, x in enumerate([f"s_mov_b32 s{sR}, s12", f"s_and_b32 s{sR+1}, s13, 0xffff", f"s_mov_b32 s{sR+2}, {4096*1024}"]): S.at(lpq - 4 + k, "s", x)
        S.at(lpq, "vm", f"buffer_load_dword v37, v32, s[{sR}:{sR+3}], s66 offen", "pf")
    def l2pull(g, sr):
        for k in range(256 >> l2g):
            S.at(g + 2*k, "vm", f"buffer_load_dword v35, v38, s[{sr}:{sr+3}], s67 offen", "pf")
            S.at(g + 2*k + 1, "s", f"s_add_u32 s67, s67, {64 << l2g}")
        S.at(g + 2*k + 1, "s", f"s_sub_u32 s67, s67, 16384")
    if 'C' in lp: l2pull(-988, sC)
    if 'X' in lp: l2pull(lpx, sX)
    for c, g, sr in zip("KVQ", lpw, (sK, sV, sR)):
        if c in lp: S.at(g, "vm", f"buffer_load_dword v34, v39, s[{sr}:{sr+3}], s19 offen", "pf")
    S.at(-950, "fn", consts_a)
    S.at(-900, "fn", rg)
    read_c(-800, 0, 1)
    S.at(-700, "wlg", tag=[("c", 1, 3)])
    dma_c(-600, 3, 1)
    FB = 40
    ACC1, ACC2 = 64, 192
    def acc(p, dt, tg):
        if p == 0: return ACC1 + (dt*4 + tg)*4
        if p == 1: return ACC2 + (dt*4 + tg)*4
        if p == 2: return ACC1 + (dt*4 + tg)*4
        return O(dt, tg)
    win = 0
    gb = lambda hs: 32*hs - L - 1
    for f in range(384):
        fb = FB + (f % NB)*4
        hs = f >> 3
        b, t = wslot(hs)
        if f < 128:
            p, ks, dt = 0, f >> 3, f & 7
            offs = [(b*32768 + t*2048 + pp*1024, aW[dt]) for pp in range(2)]
        elif f < 256:
            f2 = f - 128
            p, ks, dt = 1 + (f2 >> 6), (f2 >> 2) & 15, f2 & 3
            w2 = b >> 1
            if w2 != win:
                for d in range(4): S.at(4*f - L - 1, "v", f"v_add_u32 v{aV[d]}, 0x10000, v{aV[d]}")
                win = w2
            offs = [((b&1)*32768 + (ks&1)*16384 + t*2048 + pp*512, aV[dt]) for pp in range(2)]
        else:
            p, ks, dt = 3, 16 + ((f - 256) >> 3), f & 7
            offs = [((b-3)*32768 + t*2048 + pp*1024, aW[dt]) for pp in range(2)]
        if f % 8 == 0:
            S.at(gb(hs), "wvm", tag=[("W", hs)])
            if hs == 32 + sig_hs: S.at(gb(hs), "wvm", tag=["st"])
            if hs == 32 + chk_hs: S.at(gb(hs), "fn", lambda: check(0, sM1))
            if not ('b' in dbg and 17 <= hs < 32): S.at(gb(hs), "s", "s_barrier")
            if hs + 6 < 22 or 32 <= hs + 6 < 48: dma_w(gb(hs) + 3, hs + 6, 4)
        for pp in range(2):
            if 'r' in dbg and 128 <= f < 256 and (f & 3): continue
            S.at(4*f - L + pp, "lds", f"ds_read_b64_tr_b16 v[{fb+2*pp}:{fb+2*pp+1}], v{offs[pp][1]} offset:{offs[pp][0]}", ("w", f))
        for tg in range(4):
            d = acc(p, dt, tg); c = vr(d) if (ks & 15) else "0"
            need = [("w", f)] + ([("c", ks, tg)] if p in (0, 3) else [])
            if p in (0, 3): S.mfma(f"{MF} {vr(d)}, {vr(fb)}, {ar(creg(ks,tg))}, {c}", need)
            else: S.mfma(f"{MF} {vr(d)}, {ar(creg(ks,tg))}, {vr(fb)}, {c}", need)
    for s in range(1, 8):
        read_c(64*(s-1) + 6, s, 4)
        if s + 3 < 8:
            S.at(64*(s-1) + 46, "wlg", tag=[("c", 2*s+1, 3)])
            dma_c(64*(s-1) + 46, s + 3, 2)
    g = extra_start + 2
    for hs in range(22, 32):
        blk = wslot(hs)[0]
        g = max(g, 64*(blk + 3) + 2)
        dma_w(g, hs, 4); g += 12
    last_dma = g
    def drain(gap0, step, p, sel=slice(None)):
        g = gap0
        items = []
        if p == 0:
            for ds in range(4):
                for tg in range(4):
                    items.append((acc(0, 2*ds, tg), acc(0, 2*ds+1, tg), WS_K + (tg >> 1)*8192 + ((tg & 1)*4 + ds)*1024))
        else:
            for dt in range(4):
                for u in range(2):
                    items.append((acc(p, dt, 2*u), acc(p, dt, 2*u+1), WS_V + u*8192 + ((p-1)*4 + dt)*1024))
        for (a0, a1, off) in items[sel]:
            if p == 0:
                for k, a in enumerate((a0, a0+1, a0+2, a0+3, a1, a1+1, a1+2, a1+3)):
                    S.at(g - 4 + (k >> 1), "v", f"v_mul_f32 v{a}, s64, v{a}")
            S.at(g, "v", f"v_cvt_pk_bf16_f32 v{a0}, v{a0}, v{a0+1}")
            S.at(g, "v", f"v_cvt_pk_bf16_f32 v{a0+1}, v{a0+2}, v{a0+3}")
            S.at(g+1, "v", f"v_cvt_pk_bf16_f32 v{a0+2}, v{a1}, v{a1+1}")
            S.at(g+1, "v", f"v_cvt_pk_bf16_f32 v{a0+3}, v{a1+2}, v{a1+3}")
            S.at(g+2, "s", f"s_add_u32 s62, s58, {off}")
            if not ('s' in dbg and p < 2): S.at(g+2, "vm", f"buffer_store_dwordx4 {vr(a0)}, v{vSt}, s[{sWS}:{sWS+3}], s62 offen {kv_flags}", "st")
            g += step
        return g
    if dr is None:
        e = drain(max(store_start, last_dma) + 2, store_step, 0)
        assert e <= 768 + 8, e
        drain(768 + 10, 12, 1)
        e2 = drain(Q0 + 2, 4, 2)
    else:
        g0 = max(dr[0], last_dma + 2)
        e = drain(g0, dr[1], 0, slice(0, dr[2]))
        assert g0 + 8*dr[1] <= 768 + 4
        e = max(e, 778); n2 = 16 - dr[2]
        stp = (Q0 - 6 - e) // (8 + n2)
        e = drain(e, stp, 0, slice(dr[2], 16))
        drain(e, stp, 1)
        e2 = drain(Q0 + 2, dr[3], 2)
    weave(520, [f"s_mov_b32 s{sW}, s12", f"s_and_b32 s{sW+1}, s13, 0xffff", f"s_mov_b32 s{sW+2}, {4096*1024}"] +
          [f"v_add_u32 v{aW[d]}, 0x18000, v{aW[d]}" for d in range(8)] +
          [f"v_subrev_u32 v{aC[d]}, 0x10000, v{aC[d]}" for d in range(4)], 1)
    if 'Q' not in lp and not hmap: g = weave(last_dma + 20, [f"v_lshrrev_b32 v{t1}, 2, v0", f"v_and_b32 v{t2}, 3, v0", f"v_lshlrev_b32 v{t1}, 13, v{t1}",
                         f"v_lshl_or_b32 v{t1}, v{t2}, 6, v{t1}", "s_lshl_b32 s63, s45, 17", "s_add_u32 s63, s63, s47"], 1)
    if 'Q' not in lp and not hmap: S.at(g + 1, "vm", f"buffer_load_dword v30, v{t1}, s[{sW}:{sW+3}], s63 offen", "pf")
    dma_c(gb(23) + 2, 8, 3)
    dma_c(gb(25) + 2, 9, 3)
    dma_c(gb(27) + 10, 10, 3)
    for s in range(8, 16):
        b = Q0 + 64*(s-9)
        read_c(b + 6, s, 4)
        S.at(b + 46, "wlg", tag=[("c", 2*s+1, 3)])
        if s + 3 < 16: dma_c(b + 46, s + 3, 2)
    cq = []
    cq += [f"v_and_b32 v{t1}, 15, v0", f"v_lshlrev_b32 v{t2}, 2, v{t0}", f"v_sub_u32 v{t2}, v{t1}, v{t2}"]
    cq += [f"v_cmp_le_i32 s[{sTri[r]}:{sTri[r]+1}], {r}, v{t2}" for r in range(4)]
    cq += [f"s_lshr_b32 s{sT}, s{sWv}, 1\ns_lshl_b32 s{sT}, s{sT}, 24",
        f"s_lshl_b32 s{sG}, s{sH}, 19\ns_add_u32 s{sG}, s{sG}, s{sT}",
        f"s_lshl_b32 s{sT}, s{sI}, 15\ns_sub_u32 s{sT}, {64*8192}, s{sT}",
        f"s_mov_b32 s{sKV}, s{sWS}\ns_mov_b32 s{sKV+1}, s{sWS+1}\ns_add_u32 s{sKV+2}, s{sG}, s{sT}\ns_mov_b32 s{sKV+3}, 0x20000",
        f"s_and_b32 s{sT}, s{sWv}, 1\ns_lshl_b32 s{sT}, s{sT}, 12\ns_add_u32 s{sG}, s{sG}, s{sT}",
        f"s_lshl_b32 s{sTT}, s{sI}, 2\ns_add_u32 s{sRbA}, s{sTT}, s{sWv}",
        f"s_sub_u32 s{sRbB}, 60, s{sTT}\ns_xor_b32 s{sRbP}, s{sWv}, 1\ns_add_u32 s{sRbP}, s{sRbP}, s{sRbB}\ns_add_u32 s{sRbB}, s{sRbB}, s{sWv}",
        f"s_add_u32 s{sTT}, s{sTT}, 4\ns_mov_b32 s{sRbS}, s{sRbA}",
        f"s_and_b32 s{sT}, s{sWv}, 2\ns_add_u32 s{sSw}, s{sTT}, s{sT}\ns_sub_u32 s{sSw}, s{sSw}, 2",
        f"s_mov_b32 s{sEv}, 63\ns_mov_b32 s{sEv+1}, 0",
        f"s_lshl_b64 s[{sEv}:{sEv+1}], s[{sEv}:{sEv+1}], s{sTT}",
        f"s_lshr_b64 s[{sEv}:{sEv+1}], s[{sEv}:{sEv+1}], 5",
        f"s_or_b32 s{sEv}, s{sEv}, 0x80000000\ns_or_b32 s{sEv+1}, s{sEv+1}, 1",
        (f"s_mov_b64 s[{sEv}:{sEv+1}], 0\n" if 'h' in dbg else "") + f"s_mov_b32 s{sN}, 0\ns_mov_b32 s{sA}, 16384",
        f"s_and_b32 s{sT}, s{sWv}, 1\ns_add_u32 s{sT}, s{sT}, 2\ns_sub_u32 s{sT}, s{sT}, s{sTT}\ns_lshl_b32 s{sB}, s{sT}, 14",
        f"s_lshl_b32 s{sT}, s{sH}, 12\ns_add_u32 s{sT}, s{sT}, {WS_CTX}",
        f"s_lshl_b32 s{sCtxA}, s{sRbA}, 18\ns_add_u32 s{sCtxA}, s{sCtxA}, s{sT}",
        f"s_lshl_b32 s{sCtxB}, s{sRbB}, 18\ns_add_u32 s{sCtxB}, s{sCtxB}, s{sT}",
        f"s_mov_b64 s[{sBad}:{sBad+1}], 0\ns_mov_b64 s[{sBad+2}:{sBad+3}], 0",
        f"s_lshl_b32 s{sT}, s{sM1}, s{sI}", f"v_mov_b32 v31, s{sT}"]
    ge = weave(e2 + 4, cq, 1)
    assert ge < gb(32 + sig_hs) - 4, ge
    S.at(gb(32 + sig_hs) + 1, "s", "s_mov_b64 exec, 1")
    S.at(gb(32 + sig_hs) + 1, "vm", f"buffer_atomic_or v31, v{vPa}, s[{sDbg}:{sDbg+3}], s{sPO} offen sc1", "sig")
    S.at(gb(32 + sig_hs) + 1, "s", "s_mov_b64 exec, -1")
    def poll(): A.vmem(f"buffer_load_dword v{vPd}, v{vPa}, s[{sDbg}:{sDbg+3}], s{sPO} offen sc0 sc1", "poll")
    def check(k, sm):
        A.wait_vm("poll")
        A(f"v_readfirstlane_b32 s{sT}, v{vPd}")
        A(f"s_mov_b32 s{sCnt}, s{sm}")
        A(f"s_or_b32 s{sT}, s{sT}, s{sNW0}")
        A(f"s_and_b32 s{sT}, s{sT}, s{sm}")
        A(f"s_cmp_lg_u32 s{sT}, s{sm}")
        A(f"s_cbranch_scc1 L_pstub{k}_{name}")
        A(f"L_pback{k}_{name}:")
    S.at(Q0 + poll1, "fn", poll)
    def dma_kv(gap, u, spread=2):
        for r in (sTmp, sCb): claim(r, gap, gap + 1 + 3*spread)
        S.at(gap, "s", f"s_add_u32 m0, s11, {u*16384}")
        S.at(gap, "s", f"s_add_u32 s{sTmp}, s{sG}, {u*8192}")
        for j in range(4):
            S.at(gap + 1 + j*spread, "vm", f"buffer_load_dwordx4 v{vSt}, s[{sKV}:{sKV+3}], s{sTmp} offen offset:{j*1024} lds", ("KV", u))
    g = gb(32 + chk_hs) + 2
    free = {0: gb(42), 1: gb(42), 2: gb(44), 3: gb(44), 4: gb(46), 5: gb(46), 6: gb(46)}
    for u in range(7):
        g = max(g, free[u] + 2)
        dma_kv(g, u); g += 10
    S.at(g, "fn", poll)
    assert g < Q0 + 505
    for ds in range(4):
        g = Q0 + 480 + 8*ds + 8 + 3
        for tg in range(4):
            a0, a1 = O(2*ds, tg), O(2*ds+1, tg)
            S.at(g, "v", f"v_cvt_pk_bf16_f32 v{a0}, v{a0}, v{a0+1}")
            S.at(g, "v", f"v_cvt_pk_bf16_f32 v{a0+1}, v{a0+2}, v{a0+3}")
            S.at(g, "v", f"v_cvt_pk_bf16_f32 v{a0+2}, v{a1}, v{a1+1}")
            S.at(g, "v", f"v_cvt_pk_bf16_f32 v{a0+3}, v{a1+2}, v{a1+3}")
            for r in range(4): S.at(g+1, "v", f"v_accvgpr_write_b32 a{Q(tg,ds)+r}, v{a0+r}")
            g += 2
    S.at(Q0 + 512, "s", "s_nop 4")
    if ST and not oo.get("st"):
        S.at(-901, "fn", lambda: stamp(A, 1))
        S.at(0, "fn", lambda: stamp(A, 2))
        S.at(512, "fn", lambda: stamp(A, 3))
        S.at(768, "fn", lambda: stamp(A, 4))
        S.at(Q0, "fn", lambda: stamp(A, 5))
        S.at(gb(32 + sig_hs) + 2, "fn", lambda: stamp(A, 6))
        S.at(gb(32 + chk_hs) + 1, "fn", lambda: stamp(A, 7))
        S.at(Q0 + 511, "fn", lambda: stamp(A, 8))
    S.at(Q0 + 507, "wlg", tag=[("w", 383)])
    S.at(Q0 + 507, "wvm", tag=[("KV", 1)])
    S.at(Q0 + 507, "s", "s_barrier")
    S.at(Q0 + 508, "v", f"v_mov_b32 v{vA[0]}, v{vSt}")
    S.at(Q0 + 508, "v", f"v_add_u32 v{vA[1]}, 0x4000, v{vSt}")
    for f in range(8): S.at(Q0 + 509 + (f >> 2), "lds", f"ds_read_b128 {ar(Kf(f))}, v{vSt} offset:{f*1024}", ("k", f))
    S.emit()
    S = S_
    A(f"s_add_u32 s{sT}, s{sW8}, 0x20000")
    A(f"v_add_u32 v{vPark}, s{sT}, v{vSt}")
    for q in range(2):
        for ds in range(4):
            A.lds(f"ds_write_b128 v{vPark}, {vr(O(2*ds, 2+q))} offset:{(q*4+ds)*1024}", "pk")
            if len(A.lg) >= 14: A.wait_lg([("k", 7)])
    A(f"v_xor_b32 v{vPark}, 0x2000, v{vPark}")
    A(f"v_mov_b32 v{vNEG}, {NEGV}")
    A(f"v_mov_b32 v{vT[0]}, 0x3f803f80")
    for r in range(4): A(f"v_accvgpr_write_b32 a{ONES+r}, v{vT[0]}")
    A("s_waitcnt lgkmcnt(0)"); A.lg = []
    z = [f"v_mov_b64 v[{128+2*k}:{129+2*k}], 0" for k in range(64)] + [f"v_accvgpr_write_b32 a{Lr(0)+k}, 0" for k in range(16)]
    for kt in range(2):
        for ds in range(4):
            for qg in range(4):
                cc = "0" if ds == 0 else vr(S(kt, qg))
                A(f"{MF} {vr(S(kt,qg))}, {ar(Kf(kt*4+ds))}, {ar(Q(qg,ds))}, {cc}")
                for _ in range(2): A(z.pop(0))
    for f in range(8): A(f"ds_read_b128 {ar(Kf(f))}, v{vA[1]} offset:{f*1024}")
    while z: A(z.pop(0))
    A(f"s_cmp_lg_u32 s{sRbA}, 0\ns_cbranch_scc1 L_nd0_{name}")
    for r in range(4):
        A(f"v_cndmask_b32 v{S(0,0)+r}, v{vNEG}, v{S(0,0)+r}, s[{sTri[r]}:{sTri[r]+1}]")
        A(f"v_mov_b32 v{S(1,0)+r}, v{vNEG}")
        A(f"v_cndmask_b32 v{S(1,1)+r}, v{vNEG}, v{S(1,1)+r}, s[{sTri[r]}:{sTri[r]+1}]")
    A(f"L_nd0_{name}:")
    for qg in range(4):
        a, b = S(0, qg), S(1, qg); d = vNM[qg]
        A(f"v_max3_f32 v{d}, v{a}, v{a+1}, v{a+2}")
        A(f"v_max3_f32 v{d}, v{d}, v{a+3}, v{b}")
        A(f"v_max3_f32 v{d}, v{d}, v{b+1}, v{b+2}")
        A(f"v_max_f32 v{d}, v{d}, v{b+3}")
    for sw in ("v_permlane16_swap_b32", "v_permlane32_swap_b32"):
        for qg in range(4): A(f"v_mov_b32 v{vT[qg]}, v{vNM[qg]}")
        for qg in range(4): A(f"{sw} v{vNM[qg]}, v{vT[qg]}")
        for qg in range(4): A(f"v_max_f32 v{vNM[qg]}, v{vNM[qg]}, v{vT[qg]}")
    for qg in range(4): A(f"v_xor_b32 v{vNM[qg]}, 0x80000000, v{vNM[qg]}")
    A(f"s_lshl_b32 s{sT}, s{sWv}, 9\ns_add_u32 s{sT}, s{sT}, {7*16384}")
    A(f"v_lshlrev_b32 v{vT[0]}, 3, v0")
    A(f"v_add_u32 v{vT[0]}, s{sT}, v{vT[0]}")
    A(f"ds_write_b64 v{vT[0]}, v[{vNM[2]}:{vNM[3]}]")
    A(f"v_xor_b32 v{vT[0]}, 512, v{vT[0]}")
    for kt in range(2):
        for qg in range(4):
            for r in range(4): A(f"v_add_f32 v{S(kt,qg)+r}, v{S(kt,qg)+r}, v{vNM[qg]}")
    A("s_waitcnt lgkmcnt(0)\ns_barrier")
    A(f"ds_read_b64 v[{vNMP[0]}:{vNMP[1]}], v{vT[0]}")
    for kt in range(2):
        for qg in range(4):
            for r in range(4): A(f"v_mov_b32 v{C(kt,qg)+r}, v{vNM[qg]}")
    check(1, sM2)
    A("s_waitcnt lgkmcnt(0)\ns_barrier")
    A(f"s_add_u32 m0, s11, {7*16384}")
    A(f"s_add_u32 s{sG}, s{sG}, {7*8192}")
    for j in range(4): A(f"buffer_load_dwordx4 v{vSt}, s[{sKV}:{sKV+3}], s{sG} offen offset:{j*1024} lds")
    if pfk3: pfk3(A)
    if fuse:
        ko.pre_consts(A, oo)
        TL = ko.Tail(A, name, st_flags, ST, stampk, oo)
        opt = dict(opt); opt["t32"] = ko.t32_ops(name, oo)
    tl = [(0, 0), (0, 1), (0, 2), (0, 3), (1, 0), (1, 1)]
    for (kt, qg) in tl:
        for r in range(4): A(f"v_exp_f32 v{S(kt,qg)+r}, v{S(kt,qg)+r}")
    for (kt, qg) in tl:
        for r in (0, 2): A(f"v_cvt_pk_bf16_f32 v{P(0,qg)+2*kt+(r>>1)}, v{S(kt,qg)+r}, v{S(kt,qg)+r+1}")
    if ST and not oo.get('st'): stamp(A, 9)
    A(f".p2align 6\nL_l1_{name}:")
    hook_site(A, 0, name); interval(A, 0, "L1", name, opt)
    hook_site(A, 1, name); interval(A, 1, "L1", name, opt)
    A(f"s_cmp_lt_u32 s{sN}, s{sSw}\ns_cbranch_scc1 L_l1_{name}")
    A(f"s_cmp_ge_u32 s{sN}, 32\ns_cbranch_scc1 L_tail_{name}")
    A(f".p2align 6\nL_l2_{name}:")
    hook_site(A, 2, name); interval(A, 0, "L2", name, opt)
    hook_site(A, 3, name); interval(A, 1, "L2", name, opt)
    A(f"s_cmp_lt_u32 s{sN}, 32\ns_cbranch_scc1 L_l2_{name}")
    A(f"L_tail_{name}:")
    hook_site(A, 4, name); interval(A, 0, "T32", name, opt)
    A.vm = []; A.lg = []
    if fuse: opt["t33"] = TL.t33()
    interval(A, 1, "T33", name, opt)
    if ST: stamp(A, 10)
    if fuse: TL.gen()
    else: old_tail(A, name, st_flags, ST, stampk)
    for k in range(5):
        A(f"L_stub{k}_{name}:\ns_call_b64 s[{sRet}:{sRet+1}], L_hook_{name}\ns_branch L_back{k}_{name}")
    for k in range(2):
        A(f"L_pstub{k}_{name}:\ns_call_b64 s[{sRet}:{sRet+1}], L_spin_{name}\ns_branch L_pback{k}_{name}")
    A(f"L_spin_{name}:")
    A(f"s_mov_b32 s{sTmp}, 0")
    A(f"L_spinl_{name}:")
    A("s_sleep 4")
    A(f"buffer_load_dword v{vPd}, v{vPa}, s[{sDbg}:{sDbg+3}], 0 offen sc0 sc1")
    A("s_waitcnt vmcnt(0)")
    A(f"v_readfirstlane_b32 s{sT}, v{vPd}")
    A(f"s_add_u32 s{sTmp}, s{sTmp}, 1")
    A(f"s_and_b32 s{sT}, s{sT}, s{sCnt}")
    A(f"s_cmp_eq_u32 s{sT}, s{sCnt}\ns_cbranch_scc1 L_spinx_{name}")
    A(f"s_cmp_lt_u32 s{sTmp}, 0x20000\ns_cbranch_scc1 L_spinl_{name}")
    A(f"L_spinx_{name}:")
    A(f"s_setpc_b64 s[{sRet}:{sRet+1}]")
    gen_hook(A, name, st_flags)
    gen_slow(A, name, st_flags, ko.slow_sig if fuse else None)
    A(f'L_last_{name}:')
    return A.text() + kdesc(name, 512, 256)

def old_tail(A, name, st_flags, ST, stampk):
    A("s_waitcnt vmcnt(0)\ns_barrier")
    A(f"s_lshl_b32 s{sT}, s{sWv}, 14")
    A(f"v_add_u32 v{vT[0]}, s{sT}, v{vSt}")
    A(f"s_lshl_b32 s{sT}, s{sWv}, 9\ns_add_u32 s{sT}, s{sT}, 65536")
    A(f"v_lshlrev_b32 v{vT[1]}, 2, v0")
    A(f"v_add_u32 v{vT[1]}, s{sT}, v{vT[1]}")
    for dt in range(8):
        for q in range(2):
            A(f"ds_write_b128 v{vT[0]}, {vr(O(dt,q))} offset:{(dt*2+q)*1024}")
        if dt == 5: A("s_waitcnt lgkmcnt(8)")
    for q in range(2): A(f"ds_write_b32 v{vT[1]}, a{Lr(q)} offset:{q*256}")
    A(f"v_xor_b32 v{vT[0]}, 0x4000, v{vT[0]}")
    A(f"v_xor_b32 v{vT[1]}, 512, v{vT[1]}")
    A(f"v_accvgpr_read_b32 v{vNM[0]}, a{Lr(2)}")
    A(f"v_accvgpr_read_b32 v{vNM[2]}, a{Lr(3)}")
    A(f"v_mov_b32 v{vT[4]}, 0x5d800000")
    A("s_waitcnt lgkmcnt(0)\ns_barrier")
    for q in range(2): A.lds(f"ds_read_b32 v{vNMP[q]}, v{vT[1]} offset:{q*256}", "l")
    def rd(k):
        q, dt = k >> 3, k & 7
        A.lds(f"ds_read_b128 {vr(32 + k*4)}, v{vT[0]} offset:{(dt*2+q)*1024}", ("o", k))
    for k in range(12): rd(k)
    A.wait_lg("l")
    A(f"v_add_f32 v{vNM[0]}, v{vNM[0]}, v{vNMP[0]}")
    A(f"v_add_f32 v{vNM[2]}, v{vNM[2]}, v{vNMP[1]}")
    for k in range(16):
        q, dt = k >> 3, k & 7
        A.wait_lg([("o", k)])
        if k + 12 < 16: rd(k + 12)
        o = O(dt, 2+q)
        A(f"v_pk_add_f32 v[{o}:{o+1}], v[{o}:{o+1}], v[{32+k*4}:{33+k*4}]")
        A(f"v_pk_add_f32 v[{o+2}:{o+3}], v[{o+2}:{o+3}], v[{34+k*4}:{35+k*4}]")
    flush(A, 2, [vNM[0], vNM[2]], sCtxB, sBad+2, st_flags)
    A(f"s_or_b64 s[12:13], s[{sBad}:{sBad+1}], s[{sBad+2}:{sBad+3}]")
    A(f"s_cbranch_scc1 L_slow_{name}")
    A(f"L_fin_{name}:")
    if ST: stamp_end(A, stampk, sWS, sWv)
    A(f"L_end_{name}:\ns_endpgm")

def pf_k3(A):
    A("s_load_dwordx2 s[8:9], s[0:1], 40")
    A(f"s_lshl_b32 s12, s{sWv}, 3\ns_add_u32 s12, s12, 64\ns_min_u32 s12, s12, 80")
    A("s_load_dwordx2 s[12:13], s[0:1], s12")
    A("v_lshlrev_b32 v30, 6, v0")
    A(f"s_lshl_b32 s{sT}, s2, 2\ns_add_u32 s{sT}, s{sT}, s{sWv}\ns_lshl_b32 s{sT}, s{sT}, 12")
    A(f"s_mov_b32 s10, {4096*1024}\ns_mov_b32 s11, 0x20000")
    A(f"s_mov_b32 s14, {1792*1024}\ns_mov_b32 s15, 0x20000")
    A(f"s_mul_i32 s{sTmp}, s2, 7168")
    A("s_waitcnt lgkmcnt(0)")
    A("s_and_b32 s9, s9, 0xffff\ns_and_b32 s13, s13, 0xffff")
    A(f"buffer_load_dword v31, v30, s[8:11], s{sT} offen")
    A(f"buffer_load_dword v29, v30, s[12:15], s{sTmp} offen")
    A(f"buffer_load_dword v28, v30, s[12:15], s{sTmp} offen offset:3072")

if __name__ == "__main__":
    import sys, json, hazard, k3
    kw = json.loads(sys.argv[1])
    st = not kw.pop("nostamp", 0)
    k3kw = kw.pop("k3", {})
    if kw.pop("pf", 1): kw["pfk3"] = pf_k3
    if kw.get("fuse", 1):
        hdr = "; @launch grid=(256,1,1) block=(256,1,1) lds=163840\n"
        body = gen("KN", stampk=0 if st else None, **kw)
        full = "gated_mix__compressed_kv_cla__moe_arch_mod__prompt_kernel"
        import re
        body = re.sub(r"(?<![A-Za-z0-9_])KN\b", full, body)
    else:
        hdr = "; @launch kernel=fz_kernel grid=(256,1,1) block=(256,1,1) lds=163840\n" + k3.launch("k3_kernel")
        body = gen("fz_kernel", stampk=0 if st else None, **kw) + k3.gen_k3("k3_kernel", stampk=1 if st else None, **k3kw)
    out = hdr + '.amdgcn_target "amdgcn-amd-amdhsa--gfx950"\n.text\n' + body
    r = hazard.check(out)
    for x in r[:int(sys.argv[3]) if len(sys.argv) > 3 else 0]: print(x)
    out, n = hazard.fix(out)
    open(sys.argv[2], "w").write(out)
    print(len(r), "hazards", n, "nops inserted", len(hazard.check(out)), "left", len(out), "bytes")
    import subprocess
    rr = subprocess.run(["clang", "-x", "assembler", "-target", "amdgcn-amd-amdhsa", "-mcpu=gfx950", "-c", sys.argv[2], "-o", "chk.o"], capture_output=True, text=True)
    assert not rr.returncode, rr.stderr[:600]
    sym = {}
    for ln in subprocess.run(["readelf", "-sW", "chk.o"], capture_output=True, text=True).stdout.split("\n"):
        p = ln.split()
        if len(p) == 8 and p[7].startswith("L_"): sym[p[7]] = int(p[1], 16)
    if kw.get("fuse", 1):
        assert sym["L_last_KN"] - sym["L_pc2_KN"] >= 0x4400 and sym["L_last_KN"] <= 5*16384, sym
        print("code bytes", sym["L_last_KN"], "tail cover", sym["L_pc2_KN"] + 0x4400 - sym["L_end_KN"])
```

```python
from asmlib import *
BIG = 0x40000000
WS_TOP = WS_Y + 224*4096
WS_PRE = 54 << 20
DPP4 = ("quad_perm:[1,0,3,2]", "quad_perm:[2,3,0,1]", "row_half_mirror", "row_mirror")
def dpp(x): return f"{x} row_mask:0xf bank_mask:0xf"
def rnd(v): return [f"v_cvt_pk_bf16_f32 v{v}, v{v}, v{v}", f"v_and_b32 v{v}, 0xffff0000, v{v}"]
def sigm(v): return [f"v_mul_f32 v{v}, 0xbfb8aa3b, v{v}", f"v_exp_f32 v{v}, v{v}", f"v_add_f32 v{v}, 1.0, v{v}", f"v_rcp_f32 v{v}, v{v}"]
def zipl(*ls):
    o = []
    for k in range(max(len(l) for l in ls)):
        o += [l[k] for l in ls if k < len(l)]
    return o

def rg_ops(RG, vg, sOne, sTok):
    G = RG + 16; T = RG + 24; AC = RG + 32
    o = [f"s_mov_b32 s{sOne}, 0x3f803f80"]
    for j in range(4): o += [f"v_lshlrev_b32 v{G+2*j}, 16, v{RG+12+j}", f"v_and_b32 v{G+2*j+1}, 0xffff0000, v{RG+12+j}"]
    for j in range(4):
        ch = []
        for tk in range(2):
            x = RG + 4*tk + j; a, b = T + 2*tk + 4*(j & 1), T + 2*tk + 4*(j & 1) + 1; r, g = AC + 2*tk, AC + 2*tk + 1
            ch.append([f"v_lshlrev_b32 v{a}, 16, v{x}", f"v_and_b32 v{b}, 0xffff0000, v{x}",
                  f"v_dot2_f32_bf16 v{r}, v{x}, v{RG+8+j}, {f'v{r}' if j else 0}",
                  f"v_mul_f32 v{a}, v{a}, v{G+2*j}", f"v_mul_f32 v{b}, v{b}, v{G+2*j+1}", f"v_cvt_pk_bf16_f32 v{a}, v{a}, v{b}",
                  f"v_dot2_f32_bf16 v{g}, v{a}, s{sOne}, {f'v{g}' if j else 0}"])
        o += zipl(*ch)
    v = AC
    o += [f"v_and_b32 v{T+1}, 1, v{vg}", f"v_lshrrev_b32 v{T+2}, 1, v{vg}",
          f"v_permlane32_swap_b32 v{AC}, v{AC+1}", f"v_permlane32_swap_b32 v{AC+2}, v{AC+3}",
          f"v_sub_u32 v{T+3}, s{sTok}, v{T+1}", f"v_lshlrev_b32 v{T+1}, 2, v{T+1}",
          f"v_add_f32 v{AC}, v{AC}, v{AC+1}", f"v_add_f32 v{AC+2}, v{AC+2}, v{AC+3}",
          f"v_lshl_or_b32 v{T+1}, v{T+2}, 13, v{T+1}", f"v_cmp_eq_u32 vcc, 0, v{T+2}",
          f"v_permlane16_swap_b32 v{AC}, v{AC+2}", f"v_add_f32 v{v}, v{AC}, v{AC+2}"]
    o += [dpp(f"v_add_f32_dpp v{v}, v{v}, v{v} {d}") for d in DPP4]
    o += rnd(v)
    k = AC + 1; u = AC + 2
    o += zipl([f"v_ashrrev_i32 v{k}, 31, v{v}", f"v_or_b32 v{k}, 0x80000000, v{k}", f"v_xor_b32 v{k}, v{v}, v{k}",
               f"v_and_b32 v{k}, 0xffff0000, v{k}", f"v_or_b32 v{k}, v{k}, v{T+3}"],
              [f"v_mul_f32 v{u}, 0xbfb8aa3b, v{v}"] + sigm(u)[1:] + rnd(u))
    o += [f"v_cndmask_b32 v{T}, v{u}, v{k}, vcc"]
    return o

def merge4(m1, m2, t):
    o = []
    for d in DPP4:
        o += [dpp(f"v_min_u32_dpp v{t}, v{m1}, v{m1} {d}"), dpp(f"v_max_u32_dpp v{m2}, v{m2}, v{m2} {d}"),
              dpp(f"v_max_u32_dpp v{m1}, v{m1}, v{m1} {d}"), f"v_max_u32 v{m2}, v{m2}, v{t}"]
    return o
def top_a(K, m1, m2, t):
    o = [f"v_max_u32 v{m1}, v{K}, v{K+1}", f"v_min_u32 v{m2}, v{K}, v{K+1}"]
    for k in range(2, 8): o += [f"v_med3_u32 v{m2}, v{m1}, v{m2}, v{K+k}", f"v_max_u32 v{m1}, v{m1}, v{K+k}"]
    return o + merge4(m1, m2, t)

def dot_ops(G0, U0, XS, PM, SM, sP):
    o = [f"s_mov_b32 s{sP[0]}, 0x05040100", f"s_mov_b32 s{sP[1]}, 0x07060302"]
    for mat, r in enumerate((G0, U0)):
        for c in range(8):
            p = PM + (c & 3)
            o.append(f"v_perm_b32 v{p}, v{r+4+(c>>1)}, v{r+(c>>1)}, s{sP[c&1]}")
            if c: o += [f"v_dot2_f32_bf16 v{SM + mat*16 + (c-1)*2 + tk}, v{PM + ((c-1) & 3)}, v{XS+tk}, 0" for tk in range(2)]
        o += [f"v_dot2_f32_bf16 v{SM + mat*16 + 14 + tk}, v{PM + 3}, v{XS+tk}, 0" for tk in range(2)]
    B = (SM, SM + 16)
    for b in B:
        o += [f"v_permlane32_swap_b32 v{b+k}, v{b+8+k}" for k in range(8)] + [f"v_add_f32 v{b+k}, v{b+k}, v{b+8+k}" for k in range(8)]
    for b in B:
        o += [f"v_permlane16_swap_b32 v{b+k}, v{b+4+k}" for k in range(4)] + [f"v_add_f32 v{b+k}, v{b+k}, v{b+4+k}" for k in range(4)]
    for b in B: o += [f"v_add_f32_dpp v{b+k}, v{b+k}, v{b+k} row_ror:8 row_mask:0xf bank_mask:0x3" for k in range(2)]
    for b in B: o += [f"v_add_f32_dpp v{b+k}, v{b+2+k}, v{b+2+k} row_ror:8 row_mask:0xf bank_mask:0xc" for k in range(2)]
    return o

def act2_ops(R, WD, T, Y0, sh):
    gt, up = R, R + 2
    o = [dpp(f"v_add_f32_dpp v{R+k}, v{R+k}, v{R+k} row_ror:8") for k in range(4)]
    o += [f"v_permlane16_swap_b32 v{x}, v{x+1}" for x in (gt, up)] + [f"v_add_f32 v{x}, v{x}, v{x+1}" for x in (gt, up)]
    o += [f"v_mov_b32 v{x+1}, v{x}" for x in (gt, up)] + [f"v_permlane32_swap_b32 v{x}, v{x+1}" for x in (gt, up)] + [f"v_add_f32 v{x}, v{x}, v{x+1}" for x in (gt, up)]
    o += zipl(rnd(gt), rnd(up))
    o += [f"v_mul_f32 v{T}, 0xbfb8aa3b, v{gt}"] + sigm(T)[1:] + [f"v_mul_f32 v{gt}, v{gt}, v{T}"] + rnd(gt) + [f"v_mul_f32 v{gt}, v{gt}, v{up}"] + rnd(gt)
    Y = [Y0 + k for k in range(4)]
    def rl(f): return [f"v_readlane_b32 s{sh[(f&1)*2+tk]}, v{gt}, {16*tk+f}" for tk in range(2)]
    o += rl(0)
    for f in range(8):
        a, b = T + (f & 1)*2, T + (f & 1)*2 + 1
        o += [f"v_lshlrev_b32 v{a}, 16, v{WD+f}", f"v_and_b32 v{b}, 0xffff0000, v{WD+f}"]
        if f < 7: o += rl(f + 1)
        op = "v_fmac_f32" if f else "v_mul_f32"
        s0, s1 = sh[(f&1)*2], sh[(f&1)*2+1]
        o += [f"{op} v{Y[0]}, s{s0}, v{a}", f"{op} v{Y[1]}, s{s0}, v{b}", f"{op} v{Y[2]}, s{s1}, v{a}", f"{op} v{Y[3]}, s{s1}, v{b}"]
    return o

def act_ops(SM, WD, T, sh):
    gt, up = SM, SM + 1
    o = []
    for e in range(2): o += [f"v_add_f32 v{SM+e}, v{SM+e}, v{SM+2+e}", f"v_add_f32 v{SM+4+e}, v{SM+4+e}, v{SM+6+e}"]
    for e in range(2): o += [f"v_add_f32 v{SM+e}, v{SM+e}, v{SM+4+e}"]
    o += zipl(rnd(gt), rnd(up))
    o += [f"v_mul_f32 v{T}, 0xbfb8aa3b, v{gt}"] + sigm(T)[1:] + [f"v_mul_f32 v{gt}, v{gt}, v{T}"] + rnd(gt) + [f"v_mul_f32 v{gt}, v{gt}, v{up}"] + rnd(gt)
    Y = [SM + 8 + k for k in range(4)]
    def rl(f): return [f"v_readlane_b32 s{sh[(f&1)*2+tk]}, v{gt}, {(f*2+tk)*4}" for tk in range(2)]
    o += rl(0)
    for f in range(8):
        a, b = T + (f & 1)*2, T + (f & 1)*2 + 1
        o += [f"v_lshlrev_b32 v{a}, 16, v{WD+f}", f"v_and_b32 v{b}, 0xffff0000, v{WD+f}"]
        if f < 7: o += rl(f + 1)
        op = "v_fmac_f32" if f else "v_mul_f32"
        s0, s1 = sh[(f&1)*2], sh[(f&1)*2+1]
        o += [f"{op} v{Y[0]}, s{s0}, v{a}", f"{op} v{Y[1]}, s{s0}, v{b}", f"{op} v{Y[2]}, s{s1}, v{a}", f"{op} v{Y[3]}, s{s1}, v{b}"]
    return o
def yaddr_ops(d, t):
    return [f"v_bfe_u32 v{d}, v0, 1, 2", f"v_bfe_u32 v{t}, v0, 3, 2", f"v_lshlrev_b32 v{d}, 6, v{d}", f"v_lshl_or_b32 v{d}, v{t}, 4, v{d}",
            f"v_and_b32 v{t}, 1, v0", f"v_lshl_or_b32 v{d}, v{t}, 3, v{d}", f"v_lshrrev_b32 v{t}, 5, v0", f"v_lshl_or_b32 v{d}, v{t}, 8, v{d}"]
```

```python
from asmlib import *
from k1 import Sched, MF
import ffq

def launch(name): return f"; @launch kernel={name} grid=(256,1,1) block=(256,1,1) lds=163840\n"
sX, sWo, sWS, sOut, sY = 20, 24, 36, 28, 32
sWv = 42; sK = [48, 49]; sT = 50; sT2 = 51

def rnd(A, v):
    A(f"v_cvt_pk_bf16_f32 v{v}, v{v}, v{v}")
    A(f"v_and_b32 v{v}, 0xffff0000, v{v}")

def gen_k3(name, NS=6, NC=7, stampk=None, ld_flags="", ky=(1, 9, 10, 18), kb=26, order="wc"):
    A = Asm()
    A(khead(name))
    A(f"s_cmp_ge_u32 s2, 256\ns_cbranch_scc1 L_end_{name}")
    if stampk is not None: stamp_begin(A)
    A("s_load_dwordx2 s[16:17], s[0:1], 112")
    A("s_load_dwordx2 s[4:5], s[0:1], 0")
    A("s_load_dwordx2 s[12:13], s[0:1], 96")
    A("v_lshrrev_b32 v1, 6, v0")
    A("v_and_b32 v0, 63, v0")
    A(f"v_readfirstlane_b32 s{sWv}, v1")
    vC = [2, 3, 4, 5]; dW = 6; aW = [8, 9, 10, 11]; T = list(range(12, 24)); vRow = 7
    XR = 24; GV = 32; vY = 36; vI = 37; vE = 38
    ACC = 64; WFB = 128; YR = 160
    YL = 4*NS*4096
    assert YL + 4096 <= 163840 and NC <= 16
    A(f"v_lshlrev_b32 v{vC[0]}, 4, v0")
    for j in range(1, 4): A(f"v_add_u32 v{vC[j]}, {j*131072}, v{vC[0]}")
    A(f"v_lshrrev_b32 v{T[0]}, 4, v0")
    A(f"v_lshrrev_b32 v{T[1]}, 3, v0")
    A(f"v_and_b32 v{T[2]}, 7, v0")
    A(f"v_lshlrev_b32 v{T[3]}, 1, v{T[0]}")
    A(f"v_xor_b32 v{T[2]}, v{T[2]}, v{T[3]}")
    A(f"v_lshlrev_b32 v{dW}, 7, v{T[1]}")
    A(f"v_lshl_or_b32 v{dW}, v{T[2]}, 4, v{dW}")
    A("s_and_b32 s40, s2, 7\ns_lshl_b32 s40, s40, 2\ns_bfe_u32 s41, s2, 0x20003\ns_add_u32 s40, s40, s41\ns_lshr_b32 s41, s2, 5")
    A(f"s_lshl_b32 s52, s40, 19\ns_lshl_b32 s{sT}, s{sWv}, 15\ns_add_u32 s52, s52, s{sT}\ns_add_u32 s52, s52, {WS_CTX}")
    A(f"s_lshl_b32 s53, s{sWv}, 17\ns_lshl_b32 s{sT}, s41, 19\ns_add_u32 s53, s53, s{sT}\ns_add_u32 s53, s53, {WS_WO}")
    A(f"s_mul_i32 s43, s{sWv}, {NS*4096}")
    for d, n in ((sWS, WS_BYTES), (sX, 2048*1024), (sOut, 2048*1024)):
        A(f"s_mov_b32 s{d+2}, {n}\ns_mov_b32 s{d+3}, 0x20000")
    A(f"s_mov_b32 s58, {ffq.WS_TOP}")
    A("s_waitcnt lgkmcnt(0)")
    for d, p in ((sWS, 16),): A(f"s_mov_b32 s{d}, s{p}\ns_and_b32 s{d+1}, s{p+1}, 0xffff")
    S = Sched(A)
    def dma_w(gap, kk, spread):
        S.at(gap, "s", f"s_add_u32 m0, s43, {(kk % NS)*4096}")
        S.at(gap, "s", f"s_add_u32 s{sT}, s53, {kk*4096}")
        for j in range(4):
            S.at(gap + j*spread, "vm", f"buffer_load_dwordx4 v{dW}, s[{sWS}:{sWS+3}], s{sT} offen offset:{j*1024} lds", ("W", kk))
    def ld_c(gap, kk, spread):
        if kk % 4 == 0: S.at(gap, "s", f"s_add_u32 s{sT2}, s52, {kk*1024}")
        for j in range(4):
            S.at(gap + j*spread, "vm", f"buffer_load_dwordx4 {ar((kk % NC)*16 + 4*j)}, v{vC[j]}, s[{sWS}:{sWS+3}], s{sT2} offen offset:{(kk&3)*1024} {ld_flags}", ("C", kk))
    def rd_w(gap, kk, spread):
        S.at(gap, "wvm", tag=[("W", kk)])
        n = 0
        for mt in range(4):
            for p in range(2):
                w = WFB + (kk & 1)*16 + mt*4 + 2*p
                S.at(gap + n*spread, "lds", f"ds_read_b64_tr_b16 v[{w}:{w+1}], v{aW[mt]} offset:{(kk % NS)*4096 + p*2048}", ("w", kk, mt))
                n += 1
    g = -1000
    for kk in range(max(NS, NC)):
        for c in order:
            if c == "w" and kk < NS: dma_w(g, kk, 1); g += 4
            if c == "c" and kk < NC - 1: ld_c(g, kk, 1); g += 4
        if kk == 0: S.at(g, "s", f"s_load_dwordx2 s[{sK[0]}:{sK[1]}], s[16:17], s58"); g += 1
    def pro():
        A(f"v_bfe_u32 v{T[1]}, v0, 2, 2")
        A(f"v_lshl_add_u32 v{T[2]}, v{T[0]}, 2, v{T[1]}")
        A(f"v_bfe_u32 v{T[3]}, v{T[2]}, 1, 2")
        A(f"v_lshlrev_b32 v{aW[0]}, 7, v{T[2]}")
        A(f"v_lshl_or_b32 v{aW[0]}, v{T[3]}, 5, v{aW[0]}")
        A(f"v_and_b32 v{T[3]}, 3, v0")
        A(f"v_lshl_or_b32 v{aW[0]}, v{T[3]}, 3, v{aW[0]}")
        A(f"v_add_u32 v{aW[0]}, s43, v{aW[0]}")
        for mt in range(1, 4): A(f"v_xor_b32 v{aW[mt]}, {mt<<5}, v{aW[0]}")
        for d, p in ((sX, 4), (sOut, 12)): A(f"s_mov_b32 s{d}, s{p}\ns_and_b32 s{d+1}, s{p+1}, 0xffff")
        A(f"s_lshl_b32 s54, s40, 2\ns_add_u32 s54, s54, s{sWv}")
        A(f"v_and_b32 v{T[1]}, 15, v0")
        A(f"v_lshlrev_b32 v{vRow}, 10, v{T[1]}")
        A(f"v_lshl_or_b32 v{vRow}, v{T[0]}, 3, v{vRow}")
        A(f"s_lshl_b32 s55, s54, 14\ns_lshl_b32 s{sT}, s41, 7\ns_add_u32 s55, s55, s{sT}")
        A(f"v_lshlrev_b32 v{vY}, 4, v{T[0]}")
        A(f"v_add_u32 v{vY}, {YL}, v{vY}")
        A(f"s_lshl_b32 s{sT}, s54, 4")
        A(f"v_add_u32 v{vI}, s{sT}, v{T[1]}")
        A(f"v_lshlrev_b32 v{T[1]}, 2, v{T[1]}")
        A(f"s_lshl_b32 s44, s54, 6\ns_add_u32 s44, s44, {WS_G}")
        A(f"s_mul_i32 s45, s41, 57344\ns_mul_i32 s{sT}, s{sWv}, 14336\ns_add_u32 s45, s45, s{sT}\ns_add_u32 s45, s45, {WS_Y}")
        A(f"s_lshl_b32 s{sT}, s{sWv}, 10\ns_add_u32 s{sT}, s{sT}, {YL}\nv_add_u32 v{vE}, s{sT}, v{vC[0]}")
    def pro2():
        A("s_waitcnt lgkmcnt(0)")
        for j in range(2):
            A(f"s_andn2_b32 s{56+j}, 0x7ff, s{sK[j]}\ns_lshr_b32 s{sT}, s{56+j}, 6\ns_add_u32 s{58+j}, s45, {j*8*57344}")
            A(f"s_cmp_eq_u32 s{sT}, s40\ns_cselect_b32 s{58+j}, s{58+j}, {ffq.BIG}\ns_cselect_b32 s{60+j}, 1, 0")
    S.at(-500, "fn", pro)
    S.at(-400, "wvm", tag=[("W", 0)])
    S.at(-400, "fn", pro2)
    rd_w(-400, 0, 1)
    for mt in range(4):
        S.at(16 + 5 + mt, "vm", f"buffer_load_dwordx2 v[{XR+2*mt}:{XR+2*mt+1}], v{vRow}, s[{sX}:{sX+3}], s55 offen offset:{mt*32}", "x")
    S.at(16 + 9, "vm", f"buffer_load_dword v{GV}, v{T[1]}, s[{sWS}:{sWS+3}], s44 offen", "x")
    for j in range(2):
        for q in range(4):
            b = 16*(ky[2*j] + q)
            for mt in range(4):
                if q*4 + mt < 14: S.at(b + 4 + 3*mt, "vm", f"buffer_load_dwordx4 {vr(YR + (q*4+mt)*4)}, v{vC[0]}, s[{sWS}:{sWS+3}], s{58+j} offen offset:{mt*1024}", ("y", j))
            S.at(b + 14, "s", f"s_add_u32 s{58+j}, s{58+j}, 4096")
        b = 16*ky[2*j+1] + 10
        S.at(b, "wvm", tag=[("y", j), "x"])
        S.at(b, "s", f"s_cmp_lg_u32 s{60+j}, 0\ns_cbranch_scc1 L_own{j}_{name}\nL_ownr{j}_{name}:")
    for kk in range(32):
        b = 16*kk
        if kk + 1 < 32: rd_w(b + 1, kk + 1, 1)
        S.at(b - 1, "wvm", tag=[("C", kk)])
        if kk + NC - 1 < 32: ld_c(b + 2, kk + NC - 1, 3)
        S.at(b + 12, "wlg", tag=[("w", kk, 3)])
        if kk + NS < 32: dma_w(b + 12, kk + NS, 1)
        for mt in range(4):
            for j in range(4):
                d = ACC + (mt*4 + j)*4
                S.mfma(f"{MF} {vr(d)}, {vr(WFB + (kk&1)*16 + mt*4)}, {ar((kk % NC)*16 + 4*j)}, {vr(d) if kk else 0}", [("w", kk, mt)])
    B = YR; G1 = GV + 2
    o = [f"v_sub_f32 v{G1}, 1.0, v{GV}"] + ffq.rnd(G1)
    for k in range(8):
        o += [f"v_lshlrev_b32 v{B+2*k}, 16, v{XR+k}", f"v_and_b32 v{B+2*k+1}, 0xffff0000, v{XR+k}",
              f"v_mul_f32 v{B+2*k}, v{B+2*k}, v{G1}", f"v_mul_f32 v{B+2*k+1}, v{B+2*k+1}, v{G1}",
              f"v_cvt_pk_bf16_f32 v{B+2*k+1}, v{B+2*k}, v{B+2*k+1}", f"v_lshlrev_b32 v{B+2*k}, 16, v{B+2*k+1}", f"v_and_b32 v{B+2*k+1}, 0xffff0000, v{B+2*k+1}"]
    o += [f"v_add_u32 v{T[1]}, s43, v{vC[0]}", f"s_lshl_b32 s{sT2}, s{sWv}, 12", f"v_add_u32 v{T[2]}, s{sT2}, v{vC[0]}", f"v_add_u32 v{T[3]}, {2*NS*4096}, v{T[2]}"]
    g0 = 16*kb + 12
    assert g0 + len(o) < 510 and kb + NC - 1 >= 28
    for n, x in enumerate(o): S.at(g0 + n, "v", x)
    if stampk is not None:
        S.at(-501, "fn", lambda: stamp(A, 1))
        S.at(-401, "fn", lambda: stamp(A, 2))
        S.at(0, "fn", lambda: stamp(A, 3))
        S.at(256, "fn", lambda: stamp(A, 4))
        S.at(511, "fn", lambda: stamp(A, 5))
    S.emit()
    for mt in range(4):
        for j in range(4):
            A(f"ds_write_b128 v{T[1]}, {vr(ACC + (mt*4+j)*4)} offset:{j*4096 + mt*1024}")
        if mt == 2: A("s_waitcnt lgkmcnt(4)")
    A("s_waitcnt lgkmcnt(0)\ns_barrier")
    R = ACC
    A.lg = []
    def rd(mt):
        for ww in range(4): A.lds(f"ds_read_b128 {vr(R + (ww*4+mt)*4)}, v{T[2 + (ww>>1)]} offset:{(ww&1)*NS*4096 + mt*1024}", mt)
    for mt in range(3): rd(mt)
    for k in range(8):
        a = R + 2*k
        if k % 2 == 0: A.wait_lg([k >> 1])
        if k == 0: rd(3)
        A(f"v_pk_add_f32 v[{a}:{a+1}], v[{a}:{a+1}], v[{a+16}:{a+17}]")
        A(f"v_pk_add_f32 v[{a+32}:{a+33}], v[{a+32}:{a+33}], v[{a+48}:{a+49}]")
        A(f"v_pk_add_f32 v[{a}:{a+1}], v[{a}:{a+1}], v[{a+32}:{a+33}]")
        A(f"v_cvt_pk_bf16_f32 v{a+1}, v{a}, v{a+1}")
        A(f"v_lshlrev_b32 v{a}, 16, v{a+1}")
        A(f"v_and_b32 v{a+1}, 0xffff0000, v{a+1}")
        A(f"v_pk_mul_f32 v[{a}:{a+1}], v[{a}:{a+1}], v[{GV}:{GV+1}] op_sel_hi:[1,0]")
        A(f"v_cvt_pk_bf16_f32 v{a+1}, v{a}, v{a+1}")
        A(f"v_lshlrev_b32 v{a}, 16, v{a+1}")
        A(f"v_and_b32 v{a+1}, 0xffff0000, v{a+1}")
        A(f"v_pk_add_f32 v[{a}:{a+1}], v[{a}:{a+1}], v[{B+2*k}:{B+2*k+1}]")
        A(f"v_cvt_pk_bf16_f32 v{XR+k}, v{a}, v{a+1}")
        if k & 1:
            mt = k >> 1
            A(f"buffer_store_dwordx2 v[{XR+2*mt}:{XR+2*mt+1}], v{vRow}, s[{sOut}:{sOut+3}], s55 offen offset:{mt*32}")
    if stampk is not None: stamp_end(A, stampk, sWS, sWv)
    A(f"L_end_{name}:\ns_endpgm")
    def add3():
        for k in range(0, 16, 2):
            a = YR + k
            A(f"v_pk_add_f32 v[{a}:{a+1}], v[{a}:{a+1}], v[{a+16}:{a+17}]")
            A(f"v_pk_add_f32 v[{a+32}:{a+33}], v[{a+32}:{a+33}], v[{a+48}:{a+49}]")
        for k in range(0, 16, 2):
            a = YR + k
            A(f"v_pk_add_f32 v[{a}:{a+1}], v[{a}:{a+1}], v[{a+32}:{a+33}]")
    for j in range(2):
        A(f"L_own{j}_{name}:")
        n = 14
        while n > 1:
            h = n // 2
            for q in range(h):
                for e in (0, 2):
                    a, b = YR + 4*q + e, YR + 4*(n - h + q) + e
                    A(f"v_pk_add_f32 v[{a}:{a+1}], v[{a}:{a+1}], v[{b}:{b+1}]")
            n -= h
        for sw in ("v_permlane16_swap_b32", "v_permlane32_swap_b32"):
            for r in range(4): A(f"v_mov_b32 v{YR+4+r}, v{YR+r}")
            for r in range(4): A(f"{sw} v{YR+r}, v{YR+4+r}")
            for r in range(4): A(f"v_add_f32 v{YR+r}, v{YR+r}, v{YR+4+r}")
        A(f"ds_write_b128 v{vE}, {vr(YR)}")
        A(f"s_and_b32 s62, s{sK[j]}, 0xffff0000")
        A(f"s_xor_b32 s63, s62, 0x80000000\ns_xor_b32 s64, s62, 0xffff0000")
        A(f"s_bitcmp1_b32 s62, 31\ns_cselect_b32 s63, s63, s64")
        A(f"v_mov_b32 v{T[6]}, s63")
        A("s_waitcnt lgkmcnt(0)\ns_barrier")
        for k in range(16):
            A(f"ds_read_b128 {vr(YR + 4*k)}, v{vY} offset:{(k>>2)*1024 + (k&3)*64}")
            if k == 11: A("s_waitcnt lgkmcnt(6)")
        for x in ffq.sigm(T[6]) + ffq.rnd(T[6]): A(x)
        A(f"v_cmp_eq_u32 vcc, s{56+j}, v{vI}")
        A("s_waitcnt lgkmcnt(0)\ns_barrier")
        add3()
        def unp(a, s):
            A(f"v_lshlrev_b32 v{a}, 16, v{s}")
            A(f"v_and_b32 v{a+1}, 0xffff0000, v{s}")
        for k in range(8):
            a = YR + 2*k; b = YR + 16 + 2*k
            A(f"v_cvt_pk_bf16_f32 v{a+1}, v{a}, v{a+1}")
            unp(b, XR + k)
            unp(a, a + 1)
            A(f"v_pk_mul_f32 v[{a}:{a+1}], v[{a}:{a+1}], v[{T[6]}:{T[6]+1}] op_sel_hi:[1,0]")
            A(f"v_cvt_pk_bf16_f32 v{a+1}, v{a}, v{a+1}")
            unp(a, a + 1)
            A(f"v_pk_add_f32 v[{a}:{a+1}], v[{a}:{a+1}], v[{b}:{b+1}]")
            A(f"v_cvt_pk_bf16_f32 v{a}, v{a}, v{a+1}")
            A(f"v_cndmask_b32 v{XR+k}, v{XR+k}, v{a}, vcc")
        A(f"s_branch L_ownr{j}_{name}")
    return A.text() + kdesc(name, 512, 256)
```

```python
from asmlib import *
from k1 import Sched, MF, wave_reduce_add
import k2
from k2 import S as S_, P, C, O, Kf, Vf, Q, Lr, ONES, NEGV, vSt, vA, vNM, vNMP, vNEG, vT, vPark
from k2 import sX, sW, sWS, sKV, sH, sI, sWv, sW8, sN, sSw, sA, sB, sT, sG, sEv, sTT, sRbA, sRbB, sRbP, sTri, sRet, sCtxA, sCtxB, sBad, sTmp, sRbS
import ko, ffq
from sched2 import Sched2
from k2 import interval, hook_site, flush, gen_hook, gen_slow

sDbg = 4
sPO, sNW0, sM1, sM2, sCnt = 3, 14, 15, 16, 17
vPa, vPd = 28, 29

def srd2(A, d, nbytes):
    A(f"s_mov_b32 s{d+2}, {nbytes}")
    A(f"s_mov_b32 s{d+3}, 0x20000")
def srd3(A, d): A(f"s_and_b32 s{d+1}, s{d+1}, 0xffff")

def gen(name, L=16, NB=6, st_flags="sc1", extra_start=6*64, store_start=9*64-32, store_step=10, stampk=None, opt={},
        sig_hs=6, poll1=330, chk_hs=13, code_kb=64, pfk3=None, hmap=1, kv_flags=None, rot=0, dbg='', fuse=1, oo={}, lp='kcvq', lpv=20, lpq=200, s2=1, lpx=300, lpw=(-990, 150, 420), dr=(520, 20, 10, 5), l2g=7, pw=-1, tw=0, cpf=1, pfl=0, fq={}):
    A = Asm()
    ST = stampk is not None
    A(khead(name))
    A(f"s_cmp_ge_u32 s2, 256\ns_cbranch_scc1 L_end_{name}")
    sC, sK, sV, sR, sGw = 24, 28, 32, 48, 52
    A(f"s_load_dwordx2 s[{sC}:{sC+1}], s[0:1], 8")
    A(f"s_load_dwordx2 s[{sK}:{sK+1}], s[0:1], 24")
    A(f"s_load_dwordx2 s[{sX}:{sX+1}], s[0:1], 0")
    A(f"s_load_dwordx2 s[{sV}:{sV+1}], s[0:1], 32")
    A(f"s_load_dwordx2 s[{sR}:{sR+1}], s[0:1], 56")
    A(f"s_load_dwordx2 s[{sGw}:{sGw+1}], s[0:1], 88")
    A(f"s_load_dwordx2 s[{sWS}:{sWS+1}], s[0:1], 112")
    A(f"s_load_dwordx2 s[{sDbg}:{sDbg+1}], s[0:1], 104")
    A("s_load_dwordx2 s[12:13], s[0:1], 16")
    A("s_getpc_b64 s[62:63]")
    A(f"L_pc_{name}:")
    if cpf:
        A("v_lshrrev_b32 v1, 6, v0\nv_and_b32 v2, 7, v0\nv_lshl_or_b32 v1, v1, 3, v2")
        A("s_lshr_b32 s44, s2, 3\ns_lshl_b32 s44, s44, 11")
        A("v_lshl_add_u32 v1, v1, 6, s44")
        A(f"v_min_u32 v1, L_last_{name}-L_pc_{name}-4, v1")
        A.vmem("global_load_dword v30, v1, s[62:63]", "pf")
    else:
        A("v_lshlrev_b32 v1, 6, v0")
        A.vmem("global_load_dword v30, v1, s[62:63]", "pf")
        A("s_bfe_u32 s44, s2, 0x20003")
        A(f"s_add_u32 s44, s44, 1\ns_lshl_b32 s44, s44, 14")
        A(f"s_min_u32 s44, s44, L_last_{name}-L_pc_{name}-0x4000")
        A("v_add_u32 v2, s44, v1")
        A.vmem("global_load_dword v31, v2, s[62:63]", "pf")
    if ST: stamp_begin(A)
    A("v_lshrrev_b32 v1, 6, v0")
    A("v_and_b32 v0, 63, v0")
    A(f"v_readfirstlane_b32 s{sWv}, v1")
    if hmap:
        A(f"s_and_b32 s{sH}, s2, 7\ns_lshl_b32 s{sH}, s{sH}, 2\ns_bfe_u32 s{sI}, s2, 0x20003\ns_or_b32 s{sH}, s{sH}, s{sI}")
    else:
        A(f"s_and_b32 s{sH}, s2, 31")
    A(f"s_lshr_b32 s{sI}, s2, 5")
    if kv_flags is None: kv_flags = st_flags
    aW = list(range(2, 10)); aV = list(range(10, 14)); aC = [14, 15, 26, 27]
    dW = 16; dV = [17, 18]; dC = [19, 20]
    t0, t1, t2, t3 = 22, 23, 24, 25
    A(f"v_lshrrev_b32 v{t0}, 4, v0")
    A(f"v_and_b32 v{t1}, 15, v0")
    A(f"s_lshl_b32 s{sW8}, s{sWv}, 13")
    A(f"s_and_b32 s44, s{sWv}, 1")
    A("s_lshl_b32 s44, s44, 3")
    A(f"v_lshlrev_b32 v{t2}, 1, v{t0}")
    A(f"v_xor_b32 v{t2}, v{t2}, v{t1}")
    A(f"v_xor_b32 v{t2}, s44, v{t2}")
    A(f"v_lshlrev_b32 v{dW}, 13, v{t0}")
    A(f"v_lshl_or_b32 v{dW}, v{t2}, 4, v{dW}")
    A(f"v_lshrrev_b32 v{t1}, 3, v0")
    A(f"v_and_b32 v{t2}, 7, v0")
    A(f"v_xor_b32 v{t3}, v{t2}, v{t0}")
    A(f"v_lshlrev_b32 v{dC[0]}, 10, v{t1}")
    A(f"v_lshl_or_b32 v{dC[0]}, v{t3}, 4, v{dC[0]}")
    A(f"v_xor_b32 v{dC[1]}, 64, v{dC[0]}")
    A(f"v_lshlrev_b32 v{vSt}, 4, v0")
    srd2(A, sC, 2048*1024); srd2(A, sK, 4096*1024); srd2(A, sX, 2048*1024); srd2(A, sV, 4096*1024)
    srd2(A, sWS, WS_BYTES); srd2(A, sR, 1024); srd2(A, sGw, 1024); srd2(A, sDbg, 256)
    A(f"s_lshl_b32 s45, s{sI}, 2\ns_add_u32 s45, s45, s{sWv}")
    A("s_lshl_b32 s46, s45, 16")
    A(f"s_lshl_b32 s47, s{sH}, 8")
    A(f"s_lshl_b32 s56, s{sWv}, 16\ns_add_u32 s56, s56, s47")
    A(f"s_lshl_b32 s57, s{sWv}, 17\ns_add_u32 s57, s57, s47")
    A(f"s_lshl_b32 s60, s2, 2\ns_add_u32 s60, s60, s{sWv}\ns_lshl_b32 s61, s60, 11")
    sRot, sCb, sWc = 101, 100, sTmp
    if rot == 1:
        A(f"s_lshr_b32 s{sRot}, s2, 2\ns_and_b32 s{sRot}, s{sRot}, 6\ns_add_u32 s{sRot}, s{sRot}, s2\ns_add_u32 s{sRot}, s{sRot}, s{sI}")
    elif rot == 2:
        A(f"s_lshr_b32 s{sRot}, s2, 2\ns_and_b32 s{sRot}, s{sRot}, 6\ns_add_u32 s{sRot}, s{sRot}, s{sI}")
    else: A(f"s_mov_b32 s{sRot}, {rot-10 if rot >= 10 else 0}")
    A(f"s_and_b32 s{sRot}, s{sRot}, 7\ns_lshl_b32 s{sRot}, s{sRot}, 7")
    if hmap:
        A(f"s_lshr_b32 s66, s2, 3\ns_lshl_b32 s66, s66, 2\ns_add_u32 s66, s66, s{sWv}\ns_lshl_b32 s66, s66, 5\ns_and_b32 s67, s2, 7\ns_add_u32 s66, s66, s67\ns_lshl_b32 s66, s66, 10")
        A(f"v_and_b32 v32, 15, v0\nv_lshlrev_b32 v32, 6, v32\nv_lshl_or_b32 v32, v{t0}, 13, v32")
    else:
        A("s_lshl_b32 s66, s60, 12")
        A("v_lshlrev_b32 v32, 6, v0")
    A("v_lshlrev_b32 v33, 5, v0")
    A(f"s_lshr_b32 s67, s2, 3\ns_lshl_b32 s67, s67, 2\ns_add_u32 s67, s67, s{sWv}\ns_lshl_b32 s67, s67, 14")
    A(f"s_mov_b32 s63, {WS_R}\ns_lshl_b32 s58, s{sH}, 19\ns_add_u32 s62, s58, {WS_V}")
    A(f"v_lshlrev_b32 v38, {l2g}, v0")
    A(f"v_lshrrev_b32 v39, 2, v0\nv_and_b32 v1, 3, v0\nv_lshlrev_b32 v39, 13, v39\nv_lshl_or_b32 v39, v1, 6, v39")
    A("s_lshl_b32 s19, s45, 17\ns_add_u32 s19, s19, s47")
    A("s_waitcnt lgkmcnt(0)")
    if ST and not fuse: stamp(A, 11)
    if tw:
        for (p, o) in [(sC, "s46"), (sK, "s56"), (sX, "s61"), (sK, "s66"), (sC, "s61"), (sR, "0"), (sGw, "0"), (sWS, "s63"), (sDbg, "0")] + \
                      ([(sV, "s57"), (sV, "s66"), (12, "s66"), (12, "s56"), (sWS, "s58"), (sWS, "s62")] if tw > 1 else []):
            A(f"s_load_dword s59, s[{p}:{p+1}], {o}")
    for d in (sK, sC): srd3(A, d)
    def pf0():
        if 'c' in lp: A.vmem(f"buffer_load_dword v35, v33, s[{sC}:{sC+3}], s61 offen", "pf")
        if 'k' in lp: A.vmem(f"buffer_load_dword v34, v32, s[{sK}:{sK+3}], s66 offen", "pf")
    if pfl == 0: pf0()
    for d in (sX, sV, sR, sGw, sWS, sDbg): srd3(A, d)
    RG = 192
    S = Sched2(A) if s2 else Sched(A)
    def weave(g, lines, per=2, kind="v"):
        n = 0
        for ln in lines:
            for x in ln.split("\n"):
                S.at(g + int(n / per), kind, x); n += 1
        return g + int((n - 1) / per) + 1
    Q0 = 1024
    def wslot(hs):
        if hs < 22: return ((hs % 8) >> 2, hs & 3)
        if hs < 24: return (2, hs - 22)
        return (3 + ((hs >> 2) & 1 ^ 0 if False else (((hs - 24) >> 2) & 1)), hs & 3)
    sXs, sXl, sWb = 8, 9, 10
    busy = []
    def claim(reg, g0, g1):
        for (r, a, b) in busy: assert r != reg or g1 < a or g0 > b, (reg, g0, g1, a, b)
        busy.append((reg, g0, g1))
    def dma_w(gap, hs, spread=1):
        b, t = wslot(hs)
        sWc = 59 if 22 <= hs < 32 else sTmp
        claim(sWc, gap, gap + spread)
        if hs < 16: k0, ex, base, sr = hs*64, 0, 56, sK
        elif hs < 32: k0, ex, base, sr = ((hs-16) & 7)*128, ((hs-16) >> 3)*128, 57, sV
        else: k0, ex, base, sr = (hs-32)*64, 0, sWb, sW
        S.at(gap, "s", f"s_add_u32 s{sWc}, s{sRot}, {k0}")
        S.at(gap, "s", f"s_and_b32 s{sWc}, s{sWc}, 1023")
        S.at(gap, "s", f"s_lshl_b32 s{sWc}, s{sWc}, 12")
        S.at(gap, "s", f"s_add_u32 s{sWc}, s{sWc}, s{base}")
        if ex: S.at(gap, "s", f"s_add_u32 s{sWc}, s{sWc}, {ex}")
        for j in range(2):
            lds = b*32768 + t*2048 + j*1024
            vo = dV[j] if 16 <= hs < 32 else dW
            g = gap + j*spread
            S.at(g, "s", f"s_add_u32 m0, s{sW8}, {lds}")
            if j: S.at(g, "s", f"s_add_u32 s{sWc}, s{sWc}, {(8 if 16 <= hs < 32 else 4)*8192}")
            elif not s2 or gap < 0: S.at(g, "s", "s_nop 0")
            S.at(g, "vm", f"buffer_load_dwordx4 v{vo}, s[{sr}:{sr+3}], s{sWc} offen lds", ("W", hs))
    def cblock(s): return 2 + ((s+1) % 3) if s < 8 else (s - 8 + 1) % 3
    def dma_c(gap, s, spread=2):
        claim(sCb, gap, gap + 7*spread)
        S.at(gap, "s", f"s_add_u32 s{sCb}, s{sRot}, {(s & 7)*128}")
        S.at(gap, "s", f"s_and_b32 s{sCb}, s{sCb}, 1023")
        for j in range(8):
            g = gap + j*spread
            S.at(g, "s", f"s_add_u32 m0, s{sW8}, {cblock(s)*32768 + j*1024}")
            if j == 0: S.at(g, "s", f"s_add_u32 s{sCb}, s{sCb}, s{46 if s < 8 else sXs}")
            elif j == 4 and s >= 8: S.at(g, "s", f"s_add_u32 s{sCb}, s{sCb}, s{sXl}")
            else: S.at(g, "s", f"s_add_u32 s{sCb}, s{sCb}, 8192")
            sr = sC if s < 8 else sX
            S.at(g, "vm", f"buffer_load_dwordx4 v{dC[j&1]}, s[{sr}:{sr+3}], s{sCb} offen lds", ("C", s))
    def creg(ks, tg): return ((ks & 15)*4 + tg) * 4
    def read_c(gap, s, spread=4):
        S.at(gap, "wvm", tag=[("C", s)])
        n = 0
        cb = cblock(s) - (2 if s < 8 else 0)
        for k2_ in range(2):
            for tg in range(4):
                off = (cb & 1)*32768 + tg*2048
                S.at(gap + n*spread, "lds", f"ds_read_b128 {ar(creg(2*s+k2_, tg))}, v{aC[k2_ + 2*(cb>>1)]} offset:{off}", ("c", 2*s+k2_, tg))
                n += 1
    g = -1000
    for n_, (kind, idx) in enumerate([("C",0),("W",0),("W",1),("R",0),("C",1),("W",2),("W",3),("C",2),("W",4),("W",5)]):
        if n_ == pw: S.at(g, "wvm", tag=["pf"])
        if pfl and n_ == pfl: S.at(g, "fn", pf0)
        if n_ == 4 and ST and not fuse: S.at(g, "fn", lambda: stamp(A, 12))
        if kind == "C": dma_c(g, idx, 1); g += 8
        elif kind == "W": dma_w(g, idx); g += 2
        else:
            S.at(g, "vm", f"buffer_load_dwordx4 {vr(RG)}, v{vSt}, s[{sX}:{sX+3}], s61 offen", "rg")
            S.at(g, "vm", f"buffer_load_dwordx4 {vr(RG+4)}, v{vSt}, s[{sX}:{sX+3}], s61 offen offset:1024", "rg")
            S.at(g, "vm", f"buffer_load_dwordx4 {vr(RG+8)}, v{vSt}, s[{sR}:{sR+3}], 0 offen", "rg")
            S.at(g, "vm", f"buffer_load_dwordx4 {vr(RG+12)}, v{vSt}, s[{sGw}:{sGw+3}], 0 offen", "rg")
            g += 1
    def consts_a():
        A(f"v_bfe_u32 v{t1}, v0, 2, 2")
        A(f"v_and_b32 v{t2}, 3, v0")
        A(f"v_and_b32 v{t3}, 1, v{t0}")
        A(f"v_lshl_or_b32 v{t3}, v{t3}, 2, v{t1}")
        A(f"v_lshlrev_b32 v{aW[0]}, 13, v{t0}")
        A(f"v_lshl_or_b32 v{aW[0]}, v{t1}, 8, v{aW[0]}")
        A(f"v_lshl_or_b32 v{aW[0]}, v{t3}, 5, v{aW[0]}")
        A(f"v_lshl_or_b32 v{aW[0]}, v{t2}, 3, v{aW[0]}")
        for d in range(1, 8): A(f"v_xor_b32 v{aW[d]}, {d<<5}, v{aW[0]}")
        A(f"v_lshrrev_b32 v{aV[0]}, 1, v{t0}")
        A(f"v_lshlrev_b32 v{aV[0]}, 13, v{aV[0]}")
        A(f"v_and_b32 v{t3}, 1, v{t0}")
        A(f"v_lshl_or_b32 v{aV[0]}, v{t3}, 10, v{aV[0]}")
        A(f"v_lshl_or_b32 v{aV[0]}, v{t1}, 7, v{aV[0]}")
        A(f"v_lshl_or_b32 v{aV[0]}, v{t3}, 6, v{aV[0]}")
        A(f"v_lshrrev_b32 v{t3}, 1, v{t1}")
        A(f"v_lshl_or_b32 v{aV[0]}, v{t3}, 5, v{aV[0]}")
        A(f"v_lshl_or_b32 v{aV[0]}, v{t2}, 3, v{aV[0]}")
        for d in range(1, 4): A(f"v_xor_b32 v{aV[d]}, {d<<5}, v{aV[0]}")
        A(f"v_and_b32 v{t1}, 15, v0")
        A(f"v_lshrrev_b32 v{t2}, 1, v{t1}")
        A(f"v_xor_b32 v{t2}, v{t2}, v{t0}")
        A(f"v_lshlrev_b32 v{aC[0]}, 7, v{t1}")
        A(f"v_lshl_or_b32 v{aC[0]}, v{t2}, 4, v{aC[0]}")
        A(f"v_add_u32 v{aC[0]}, s{sW8}, v{aC[0]}")
        A(f"v_add_u32 v{aC[0]}, 0x10000, v{aC[0]}")
        A(f"v_xor_b32 v{aC[1]}, 64, v{aC[0]}")
        A(f"v_add_u32 v{aC[2]}, 0x10000, v{aC[0]}")
        A(f"v_add_u32 v{aC[3]}, 0x10000, v{aC[1]}")
        A(f"v_lshrrev_b32 v{t1}, 3, v0")
        A(f"v_and_b32 v{t2}, 7, v0")
        A(f"v_and_b32 v{t3}, 1, v{t0}")
        A(f"v_lshlrev_b32 v{t3}, 1, v{t3}")
        A(f"v_xor_b32 v{t3}, v{t3}, v{t2}")
        A(f"v_lshlrev_b32 v{dV[0]}, 13, v{t1}")
        A(f"v_lshl_or_b32 v{dV[0]}, v{t3}, 4, v{dV[0]}")
        A(f"v_xor_b32 v{dV[1]}, 64, v{dV[0]}")
        A(f"s_lshl_b32 s58, s{sH}, 6\ns_lshl_b32 s63, s45, 1\ns_add_u32 s58, s58, s63\ns_lshl_b32 s58, s58, 13")
        pass
        A(f"s_lshl_b32 s{sXs}, s{sI}, 17")
        A(f"s_lshl_b32 s44, s{sWv}, 15")
        A(f"s_lshl_b32 s{sXl}, s{sI}, 18")
        A(f"s_sub_u32 s{sXl}, {(15<<17) - 3*8192}, s{sXl}")
        A(f"s_add_u32 s{sXs}, s{sXs}, s44")
        A(f"s_mov_b32 s{sWb}, s56")
        A(f"s_lshl_b32 s11, s{sWv}, 12")
        A(f"s_cmp_eq_u32 s{sWv}, 0")
        A(f"s_cselect_b32 s{sPO}, 0, 0x1000")
        A(f"s_cselect_b32 s{sNW0}, 0, -1")
        A(f"s_and_b32 s44, s{sH}, 24")
        A(f"s_lshl_b32 s{sM1}, 1, s44")
        A(f"s_lshr_b32 s63, s{sI}, 1\ns_lshr_b32 s{sM2}, 255, s63\ns_lshl_b32 s{sM2}, s{sM2}, s44")
        A(f"s_and_b32 s44, s{sH}, 7\ns_lshl_b32 s44, s44, 4")
        A(f"v_lshl_add_u32 v{vPa}, v0, 8, s44")
        A(f"s_lshl_b32 s44, s{sM1}, s{sI}\nv_mov_b32 v31, s44")
        A("s_mov_b32 s63, 0x3e0293ee")
    if 'v' in lp: S.at(lpv, "vm", f"buffer_load_dword v36, v32, s[{sV}:{sV+3}], s66 offen", "pf")
    if 'q' in lp:
        for k, x in enumerate([f"s_mov_b32 s{sR}, s12", f"s_and_b32 s{sR+1}, s13, 0xffff", f"s_mov_b32 s{sR+2}, {4096*1024}"]): S.at(lpq - 4 + k, "s", x)
        S.at(lpq, "vm", f"buffer_load_dword v37, v32, s[{sR}:{sR+3}], s66 offen", "pf")
    def l2pull(g, sr):
        for k in range(256 >> l2g):
            S.at(g + 2*k, "vm", f"buffer_load_dword v35, v38, s[{sr}:{sr+3}], s67 offen", "pf")
            S.at(g + 2*k + 1, "s", f"s_add_u32 s67, s67, {64 << l2g}")
        S.at(g + 2*k + 1, "s", f"s_sub_u32 s67, s67, 16384")
    if 'C' in lp: l2pull(-988, sC)
    if 'X' in lp: l2pull(lpx, sX)
    for c, g, sr in zip("KVQ", lpw, (sK, sV, sR)):
        if c in lp: S.at(g, "vm", f"buffer_load_dword v34, v39, s[{sr}:{sr+3}], s19 offen", "pf")
    S.at(-950, "fn", consts_a)
    read_c(-800, 0, 1)
    S.at(-700, "wlg", tag=[("c", 1, 3)])
    dma_c(-600, 3, 1)
    FB = 40
    ACC1, ACC2 = 64, 192
    def acc(p, dt, tg):
        if p == 0: return ACC1 + (dt*4 + tg)*4
        if p == 1: return ACC2 + (dt*4 + tg)*4
        if p == 2: return ACC1 + (dt*4 + tg)*4
        return O(dt, tg)
    win = 0
    hsR, hsC, hsX = fq.get("hsR", 7), fq.get("hsC", 19), fq.get("hsX", 43)
    def checkr():
        A.wait_vm("pollr")
        A(f"v_or_b32 v{vPd}, s{sNW0}, v{vPd}")
        A(f"v_cmp_ne_u32 vcc, -1, v{vPd}")
        A(f"s_cbranch_vccnz L_rstub_{name}")
        A(f"L_rback_{name}:")
    gb = lambda hs: 32*hs - L - 1
    for f in range(384):
        fb = FB + (f % NB)*4
        hs = f >> 3
        b, t = wslot(hs)
        if f < 128:
            p, ks, dt = 0, f >> 3, f & 7
            offs = [(b*32768 + t*2048 + pp*1024, aW[dt]) for pp in range(2)]
        elif f < 256:
            f2 = f - 128
            p, ks, dt = 1 + (f2 >> 6), (f2 >> 2) & 15, f2 & 3
            w2 = b >> 1
            if w2 != win:
                for d in range(4): S.at(4*f - L - 1, "v", f"v_add_u32 v{aV[d]}, 0x10000, v{aV[d]}")
                win = w2
            offs = [((b&1)*32768 + (ks&1)*16384 + t*2048 + pp*512, aV[dt]) for pp in range(2)]
        else:
            p, ks, dt = 3, 16 + ((f - 256) >> 3), f & 7
            offs = [((b-3)*32768 + t*2048 + pp*1024, aW[dt]) for pp in range(2)]
        if f % 8 == 0:
            S.at(gb(hs), "wvm", tag=[("W", hs)])
            if hs == 32 + sig_hs: S.at(gb(hs), "wvm", tag=["st"])
            if hs == hsR: S.at(gb(hs), "wvm", tag=["rgs"])
            if hs == hsC: S.at(gb(hs), "fn", lambda: checkr())
            if hs in (26, 27, hsX): S.at(gb(hs), "wlg", tag=["fx"])
            if hs == 32 + chk_hs: S.at(gb(hs), "fn", lambda: check(0, sM1))
            if not ('b' in dbg and 17 <= hs < 32): S.at(gb(hs), "s", "s_barrier")
            if hs + 6 < 22 or 32 <= hs + 6 < 48: dma_w(gb(hs) + 3, hs + 6, 4)
        for pp in range(2):
            if 'r' in dbg and 128 <= f < 256 and (f & 3): continue
            S.at(4*f - L + pp, "lds", f"ds_read_b64_tr_b16 v[{fb+2*pp}:{fb+2*pp+1}], v{offs[pp][1]} offset:{offs[pp][0]}", ("w", f))
        for tg in range(4):
            d = acc(p, dt, tg); c = vr(d) if (ks & 15) else "0"
            need = [("w", f)] + ([("c", ks, tg)] if p in (0, 3) else [])
            if p in (0, 3): S.mfma(f"{MF} {vr(d)}, {vr(fb)}, {ar(creg(ks,tg))}, {c}", need)
            else: S.mfma(f"{MF} {vr(d)}, {ar(creg(ks,tg))}, {vr(fb)}, {c}", need)
    for s in range(1, 8):
        read_c(64*(s-1) + 6, s, 4)
        if s + 3 < 8:
            S.at(64*(s-1) + 46, "wlg", tag=[("c", 2*s+1, 3)])
            dma_c(64*(s-1) + 46, s + 3, 2)
    g = extra_start + 2
    for hs in range(22, 32):
        blk = wslot(hs)[0]
        g = max(g, 64*(blk + 3) + 2)
        dma_w(g, hs, 4); g += 12
    last_dma = g
    def drain(gap0, step, p, sel=slice(None)):
        g = gap0
        items = []
        if p == 0:
            for ds in range(4):
                for tg in range(4):
                    items.append((acc(0, 2*ds, tg), acc(0, 2*ds+1, tg), WS_K + (tg >> 1)*8192 + ((tg & 1)*4 + ds)*1024))
        else:
            for dt in range(4):
                for u in range(2):
                    items.append((acc(p, dt, 2*u), acc(p, dt, 2*u+1), WS_V + u*8192 + ((p-1)*4 + dt)*1024))
        for (a0, a1, off) in items[sel]:
            if p == 0:
                for k, a in enumerate((a0, a0+1, a0+2, a0+3, a1, a1+1, a1+2, a1+3)):
                    S.at(g - 4 + (k >> 1), "v", f"v_mul_f32 v{a}, s63, v{a}")
            S.at(g, "v", f"v_cvt_pk_bf16_f32 v{a0}, v{a0}, v{a0+1}")
            S.at(g, "v", f"v_cvt_pk_bf16_f32 v{a0+1}, v{a0+2}, v{a0+3}")
            S.at(g+1, "v", f"v_cvt_pk_bf16_f32 v{a0+2}, v{a1}, v{a1+1}")
            S.at(g+1, "v", f"v_cvt_pk_bf16_f32 v{a0+3}, v{a1+2}, v{a1+3}")
            S.at(g+2, "s", f"s_add_u32 s62, s58, {off}")
            if not ('s' in dbg and p < 2): S.at(g+2, "vm", f"buffer_store_dwordx4 {vr(a0)}, v{vSt}, s[{sWS}:{sWS+3}], s62 offen {kv_flags}", "st")
            g += step
        return g
    if dr is None:
        e = drain(max(store_start, last_dma) + 2, store_step, 0)
        assert e <= 768 + 8, e
        drain(768 + 10, 12, 1)
        e2 = drain(Q0 + 2, 4, 2)
    else:
        g0 = max(dr[0], last_dma + 2)
        e = drain(g0, dr[1], 0, slice(0, dr[2]))
        assert g0 + 8*dr[1] <= 768 + 4
        e = max(e, 778); n2 = 16 - dr[2]
        stp = (Q0 - 6 - e) // (8 + n2)
        e = drain(e, stp, 0, slice(dr[2], 16))
        drain(e, stp, 1)
        e2 = drain(Q0 + 2, dr[3], 2)
    def lwait(): A("s_waitcnt lgkmcnt(0)"); A.lg = []
    weave0 = weave
    def ffn(e2):
        SL = fq.get('sl', 14)
        def weave(g, lines, per=2): return weave0(g, lines, per, 'v~')
        S.at(0, "wvm~", tag=["rg"])
        g = weave(0, ["s_lshl_b32 s67, s60, 1", "s_sub_u32 s67, 2047, s67"] + ffq.rg_ops(RG, t0, 65, 67), fq.get("per", 1)) + SL
        weave(g - 3, ["s_lshl_b32 s62, s60, 3", f"s_add_u32 s62, s62, {WS_R}"])
        S.at(g, "vm", f"buffer_store_dword v{RG+24}, v{RG+25}, s[{sWS}:{sWS+3}], s62 offen sc1", "rgs")
        assert g + 12 < gb(hsR)
        S.at(gb(hsR) + 1, "vm", f"buffer_atomic_or v31, v{vPa}, s[{sDbg}:{sDbg+3}], s{sPO} offen offset:4 sc1", "sig")
        g = fq.get("gf", 500)
        S.at(g - 70, "s", "s_load_dwordx4 s[28:31], s[0:1], 64")
        S.at(g - 23, "fn", lwait)
        weave(g - 22, [f"s_min_u32 s51, s{sH}, 27", f"s_mul_i32 s49, s45, {16*3584}", "s_lshl_b32 s50, s51, 7", "v_lshrrev_b32 v23, 3, v0", "v_and_b32 v24, 7, v0", "s_add_u32 s49, s49, s50",
                       f"v_mul_u32_u24 v23, {2*3584}, v23", "v_lshl_add_u32 v23, v24, 4, v23", "v_add_u32 v23, s49, v23"], 1)
        for k in range(4):
            S.at(g, "s", f"s_add_u32 m0, s{sW8}, {65536 + 4096 + k*1024 - (k&1)*3584}")
            S.at(g, "vm", f"global_load_lds_dwordx4 v23, s[{28+(k&2)}:{29+(k&2)}] offset:{(k&1)*3584}", "fw"); g += fq.get("fs", 6)
        assert g < fq.get("gt", 750)
        weave(836, [f"s_add_u32 s62, s{sW8}, 65536", f"v_add_u32 v38, s62, v{vSt}"])
        S.at(850, "wvm", tag=["fw"])
        for k in range(4): S.at(850 + k, "lds", f"ds_read_b128 {ar(64+4*k)}, v38 offset:{4096 + k*1024}", "fz")
        S.at(860, "wlg", tag=["fz"])
        weave(Q0 + 16, [f"v_accvgpr_read_b32 v{64+k}, a{64+k}" for k in range(16)], 1)
        g = fq.get("gq", 480)
        weave(g - 4, ["v_and_b32 v33, 7, v0", "v_lshlrev_b32 v33, 4, v33"])
        S.at(g, "vm", f"buffer_load_dword v{vPd}, v33, s[{sDbg}:{sDbg+3}], s{sPO} offen offset:4 sc0 sc1", "pollr")
        g = gb(hsC) + 1
        KEY, m1, m2, tt = 32, 128+32, 129+32, 130+32
        weave(g - 4, [f"s_lshl_b32 s48, s{sWv}, 11", f"s_add_u32 s48, s48, {WS_R}"])
        for j in range(2): S.at(g + j, "vm", f"buffer_load_dwordx4 {vr(KEY+4*j)}, v{vSt}, s[{sWS}:{sWS+3}], s48 offen offset:{j*1024} sc0 sc1", "key")
        g = fq.get("gt", 750)
        m1, m2, tt = 24, 25, 23
        S.at(g, "wvm~", tag=["key"])
        g = weave(g, ffq.top_a(KEY, m1, m2, tt) + [f"s_lshl_b32 s48, s{sWv}, 9", f"v_lshl_add_u32 v{tt}, v0, 3, s48"], 1) + SL
        assert g < gb(26) - 2, g
        S.at(g, "lds", f"ds_write_b64 v{tt}, v[{m1}:{m2}]", "fx")
        weave(g + 1, [f"v_and_b32 v{tt}, 15, v0", f"v_lshlrev_b32 v{tt}, 7, v{tt}"])
        S.at(gb(26) + 1, "lds", f"ds_read_b64 v[34:35], v{tt}", "fx")
        g = gb(27) + 1
        XS = 32
        o = ffq.merge4(34, 35, tt) + ["v_lshrrev_b32 v36, 3, v0", "s_lshl_b32 s50, s45, 5", "v_lshlrev_b32 v36, 2, v36", "v_readfirstlane_b32 s48, v34", "v_readfirstlane_b32 s49, v35"]
        for j in range(2): o += [f"s_andn2_b32 s{48+j}, 0x7ff, s{48+j}", f"s_lshl_b32 s{48+j}, s{48+j}, 10", f"s_add_u32 s{48+j}, s{48+j}, s50"]
        S.at(g, "wlg~", tag=["fx"])
        g = weave(g, o, 1) + SL
        for j in range(2): S.at(g + j, "vm", f"buffer_load_dword v{XS+j}, v36, s[{sX}:{sX+3}], s{48+j} offen", "xs")
        g = weave(g + 2, ["s_cmp_eq_u32 s60, 0", f"s_cselect_b32 s48, {ffq.WS_TOP}, {ffq.BIG}", f"v_mov_b32 v{tt}, 0"])
        S.at(g, "vm", f"buffer_store_dwordx2 v[34:35], v{tt}, s[{sWS}:{sWS+3}], s48 offen sc1", "st")
        G0, U0, WD, PM, T, SM = 64, 72, 80, 88, 92, 96
        assert g < Q0
        ge = e2 + 1
        g = Q0 + fq.get("gd", 64)
        S.at(g, "wvm~", tag=["xs"])
        g = weave(g, ffq.dot_ops(G0, U0, XS, PM, SM, (12, 13)) + [f"s_lshl_b32 s12, s{sWv}, 10", "v_and_b32 v37, 7, v0", "v_lshrrev_b32 v36, 3, v0", f"s_add_u32 s12, s12, {7*16384}", "v_lshl_or_b32 v37, v37, 3, v36",
                  f"s_lshl_b32 s13, s{sWv}, 8", "v_lshl_add_u32 v37, v37, 4, s12", f"s_add_u32 s13, s13, {7*16384}", "v_lshl_add_u32 v36, v0, 2, s13"], fq.get("per2", 0.6)) + SL
        g = max(g, gb(42) + 2)
        assert g < gb(hsX) - 4, g
        for k in range(2): S.at(g + k, "lds", f"ds_write_b64 v37, v[{SM+16*k}:{SM+16*k+1}] offset:{8*k}", "fx")
        g = gb(hsX) + 1
        for w in range(4): S.at(g, "lds", f"ds_read_b32 v{SM+w}, v36 offset:{w*1024}", "fy")
        g = weave(g + 1, ["v_lshrrev_b32 v38, 5, v0", "v_and_b32 v37, 31, v0", "v_lshlrev_b32 v38, 10, v38", f"s_lshl_b32 s10, s{sH}, 13", "v_lshl_add_u32 v37, v37, 2, v38",
                          f"s_lshl_b32 s12, s{sWv}, 11", "s_add_u32 s10, s10, s12", f"s_lshl_b32 s12, s{sI}, 7", "s_add_u32 s10, s10, s12", f"s_add_u32 s10, s10, {ffq.WS_PRE}"], 2)
        S.at(g, "wlg~", tag=["fy"])
        g = weave(g, [f"v_add_f32 v{SM}, v{SM}, v{SM+1}", f"v_add_f32 v{SM+2}, v{SM+2}, v{SM+3}", f"v_add_f32 v{SM}, v{SM}, v{SM+2}"], 1) + SL
        S.at(g, "vm", f"buffer_store_dword v{SM}, v37, s[{sWS}:{sWS+3}], s10 offen sc1", "ya")
        print("ffn ends", g + 4 - Q0)
        return ge
    weave(520, [f"s_mov_b32 s{sW}, s12", f"s_and_b32 s{sW+1}, s13, 0xffff", f"s_mov_b32 s{sW+2}, {4096*1024}"] +
          [f"v_add_u32 v{aW[d]}, 0x18000, v{aW[d]}" for d in range(8)] +
          [f"v_subrev_u32 v{aC[d]}, 0x10000, v{aC[d]}" for d in range(4)], 1)
    if 'Q' not in lp and not hmap: g = weave(last_dma + 20, [f"v_lshrrev_b32 v{t1}, 2, v0", f"v_and_b32 v{t2}, 3, v0", f"v_lshlrev_b32 v{t1}, 13, v{t1}",
                         f"v_lshl_or_b32 v{t1}, v{t2}, 6, v{t1}", "s_lshl_b32 s63, s45, 17", "s_add_u32 s63, s63, s47"], 1)
    if 'Q' not in lp and not hmap: S.at(g + 1, "vm", f"buffer_load_dword v30, v{t1}, s[{sW}:{sW+3}], s63 offen", "pf")
    dma_c(gb(23) + 2, 8, 3)
    dma_c(861, 9, 2)
    dma_c(880, 10, 3)
    for s in range(8, 16):
        b = Q0 + 64*(s-9)
        read_c(b + 6, s, 4)
        S.at(b + 46, "wlg", tag=[("c", 2*s+1, 3)])
        if s + 3 < 16: dma_c(b + 46, s + 3, 2)
    cq = []
    cq += [f"v_and_b32 v{t1}, 15, v0", f"v_lshlrev_b32 v{t2}, 2, v{t0}", f"v_sub_u32 v{t2}, v{t1}, v{t2}"]
    cq += [f"v_cmp_le_i32 s[{sTri[r]}:{sTri[r]+1}], {r}, v{t2}" for r in range(4)]
    cq += [f"s_lshr_b32 s{sT}, s{sWv}, 1\ns_lshl_b32 s{sT}, s{sT}, 24",
        f"s_lshl_b32 s{sG}, s{sH}, 19\ns_add_u32 s{sG}, s{sG}, s{sT}",
        f"s_lshl_b32 s{sT}, s{sI}, 15\ns_sub_u32 s{sT}, {64*8192}, s{sT}",
        f"s_mov_b32 s{sKV}, s{sWS}\ns_mov_b32 s{sKV+1}, s{sWS+1}\ns_add_u32 s{sKV+2}, s{sG}, s{sT}\ns_mov_b32 s{sKV+3}, 0x20000",
        f"s_and_b32 s{sT}, s{sWv}, 1\ns_lshl_b32 s{sT}, s{sT}, 12\ns_add_u32 s{sG}, s{sG}, s{sT}",
        f"s_lshl_b32 s{sTT}, s{sI}, 2\ns_add_u32 s{sRbA}, s{sTT}, s{sWv}",
        f"s_sub_u32 s{sRbB}, 60, s{sTT}\ns_xor_b32 s{sRbP}, s{sWv}, 1\ns_add_u32 s{sRbP}, s{sRbP}, s{sRbB}\ns_add_u32 s{sRbB}, s{sRbB}, s{sWv}",
        f"s_add_u32 s{sTT}, s{sTT}, 4\ns_mov_b32 s{sRbS}, s{sRbA}",
        f"s_and_b32 s{sT}, s{sWv}, 2\ns_add_u32 s{sSw}, s{sTT}, s{sT}\ns_sub_u32 s{sSw}, s{sSw}, 2",
        f"s_mov_b32 s{sEv}, 63\ns_mov_b32 s{sEv+1}, 0",
        f"s_lshl_b64 s[{sEv}:{sEv+1}], s[{sEv}:{sEv+1}], s{sTT}",
        f"s_lshr_b64 s[{sEv}:{sEv+1}], s[{sEv}:{sEv+1}], 5",
        f"s_or_b32 s{sEv}, s{sEv}, 0x80000000\ns_or_b32 s{sEv+1}, s{sEv+1}, 1",
        (f"s_mov_b64 s[{sEv}:{sEv+1}], 0\n" if 'h' in dbg else "") + f"s_mov_b32 s{sN}, 0\ns_mov_b32 s{sA}, 16384",
        f"s_and_b32 s{sT}, s{sWv}, 1\ns_add_u32 s{sT}, s{sT}, 2\ns_sub_u32 s{sT}, s{sT}, s{sTT}\ns_lshl_b32 s{sB}, s{sT}, 14",
        f"s_lshl_b32 s{sT}, s{sH}, 12\ns_add_u32 s{sT}, s{sT}, {WS_CTX}",
        f"s_lshl_b32 s{sCtxA}, s{sRbA}, 18\ns_add_u32 s{sCtxA}, s{sCtxA}, s{sT}",
        f"s_lshl_b32 s{sCtxB}, s{sRbB}, 18\ns_add_u32 s{sCtxB}, s{sCtxB}, s{sT}",
        f"s_mov_b64 s[{sBad}:{sBad+1}], 0\ns_mov_b64 s[{sBad+2}:{sBad+3}], 0"]
    ge = weave(ffn(e2) + 2, cq, 1)
    assert ge < gb(32 + sig_hs) - 4, ge
    S.at(gb(32 + sig_hs) + 1, "vm", f"buffer_atomic_or v31, v{vPa}, s[{sDbg}:{sDbg+3}], s{sPO} offen offset:8 sc1", "sig")
    POLL = f"buffer_load_dword v{vPd}, v{vPa}, s[{sDbg}:{sDbg+3}], s{sPO} offen offset:8 sc0 sc1"
    def check(k, sm):
        A.wait_vm("poll")
        A(f"v_readfirstlane_b32 s{sT}, v{vPd}")
        A(f"s_mov_b32 s{sCnt}, s{sm}")
        A(f"s_or_b32 s{sT}, s{sT}, s{sNW0}")
        A(f"s_and_b32 s{sT}, s{sT}, s{sm}")
        A(f"s_cmp_lg_u32 s{sT}, s{sm}")
        A(f"s_cbranch_scc1 L_pstub{k}_{name}")
        A(f"L_pback{k}_{name}:")
    S.at(Q0 + poll1, "vm", POLL, "poll")
    def dma_kv(gap, u, spread=2):
        for r in (sTmp, sCb): claim(r, gap, gap + 1 + 3*spread)
        S.at(gap, "s", f"s_add_u32 m0, s11, {u*16384}")
        S.at(gap, "s", f"s_add_u32 s{sTmp}, s{sG}, {u*8192}")
        for j in range(4):
            S.at(gap + 1 + j*spread, "vm", f"buffer_load_dwordx4 v{vSt}, s[{sKV}:{sKV+3}], s{sTmp} offen offset:{j*1024} lds", ("KV", u))
    g = gb(32 + chk_hs) + 2
    free = {0: gb(42), 1: gb(42), 2: gb(44), 3: gb(44), 4: gb(46), 5: gb(46), 6: gb(46)}
    for u in range(7):
        g = max(g, free[u] + 2)
        dma_kv(g, u); g += 10
    S.at(g, "vm", POLL, "poll")
    assert g < Q0 + 505
    for ds in range(4):
        g = Q0 + 480 + 8*ds + 8 + 3
        for tg in range(4):
            a0, a1 = O(2*ds, tg), O(2*ds+1, tg)
            S.at(g, "v", f"v_cvt_pk_bf16_f32 v{a0}, v{a0}, v{a0+1}")
            S.at(g, "v", f"v_cvt_pk_bf16_f32 v{a0+1}, v{a0+2}, v{a0+3}")
            S.at(g, "v", f"v_cvt_pk_bf16_f32 v{a0+2}, v{a1}, v{a1+1}")
            S.at(g, "v", f"v_cvt_pk_bf16_f32 v{a0+3}, v{a1+2}, v{a1+3}")
            for r in range(4): S.at(g+1, "v", f"v_accvgpr_write_b32 a{Q(tg,ds)+r}, v{a0+r}")
            g += 2
    S.at(Q0 + 512, "s", "s_nop 4")
    if ST and not oo.get("st"):
        S.at(-901, "fn", lambda: stamp(A, 1))
        S.at(0, "fn", lambda: stamp(A, 2))
        S.at(512, "fn", lambda: stamp(A, 3))
        S.at(768, "fn", lambda: stamp(A, 4))
        S.at(Q0, "fn", lambda: stamp(A, 5))
        S.at(gb(32 + sig_hs) + 2, "fn", lambda: stamp(A, 6))
        S.at(gb(32 + chk_hs) + 1, "fn", lambda: stamp(A, 7))
        S.at(Q0 + 511, "fn", lambda: stamp(A, 8))
    S.at(Q0 + 507, "wlg", tag=[("w", 383)])
    S.at(Q0 + 507, "wvm", tag=[("KV", 1)])
    S.at(Q0 + 507, "s", "s_barrier")
    S.at(Q0 + 508, "v", f"v_mov_b32 v{vA[0]}, v{vSt}")
    S.at(Q0 + 508, "v", f"v_add_u32 v{vA[1]}, 0x4000, v{vSt}")
    for f in range(8): S.at(Q0 + 509 + (f >> 2), "lds", f"ds_read_b128 {ar(Kf(f))}, v{vSt} offset:{f*1024}", ("k", f))
    S.emit(verbose=fq.get('v'))
    S = S_
    A(f"s_add_u32 s{sT}, s{sW8}, 0x20000")
    A(f"v_add_u32 v{vPark}, s{sT}, v{vSt}")
    for q in range(2):
        for ds in range(4):
            A.lds(f"ds_write_b128 v{vPark}, {vr(O(2*ds, 2+q))} offset:{(q*4+ds)*1024}", "pk")
            if len(A.lg) >= 14: A.wait_lg([("k", 7)])
    A(f"v_xor_b32 v{vPark}, 0x2000, v{vPark}")
    A(f"v_mov_b32 v{vNEG}, {NEGV}")
    A(f"v_mov_b32 v{vT[0]}, 0x3f803f80")
    for r in range(4): A(f"v_accvgpr_write_b32 a{ONES+r}, v{vT[0]}")
    A("s_waitcnt lgkmcnt(0)"); A.lg = []
    if pfk3: A("s_load_dwordx2 s[8:9], s[0:1], 40\ns_load_dwordx2 s[12:13], s[0:1], 80")
    z = [f"v_mov_b64 v[{128+2*k}:{129+2*k}], 0" for k in range(64)] + [f"v_accvgpr_write_b32 a{Lr(0)+k}, 0" for k in range(16)]
    for kt in range(2):
        for ds in range(4):
            for qg in range(4):
                cc = "0" if ds == 0 else vr(S(kt, qg))
                A(f"{MF} {vr(S(kt,qg))}, {ar(Kf(kt*4+ds))}, {ar(Q(qg,ds))}, {cc}")
                for _ in range(2): A(z.pop(0))
    for f in range(8): A(f"ds_read_b128 {ar(Kf(f))}, v{vA[1]} offset:{f*1024}")
    while z: A(z.pop(0))
    A(f"s_cmp_lg_u32 s{sRbA}, 0\ns_cbranch_scc1 L_nd0_{name}")
    for r in range(4):
        A(f"v_cndmask_b32 v{S(0,0)+r}, v{vNEG}, v{S(0,0)+r}, s[{sTri[r]}:{sTri[r]+1}]")
        A(f"v_mov_b32 v{S(1,0)+r}, v{vNEG}")
        A(f"v_cndmask_b32 v{S(1,1)+r}, v{vNEG}, v{S(1,1)+r}, s[{sTri[r]}:{sTri[r]+1}]")
    A(f"L_nd0_{name}:")
    for qg in range(4):
        a, b = S(0, qg), S(1, qg); d = vNM[qg]
        A(f"v_max3_f32 v{d}, v{a}, v{a+1}, v{a+2}")
        A(f"v_max3_f32 v{d}, v{d}, v{a+3}, v{b}")
        A(f"v_max3_f32 v{d}, v{d}, v{b+1}, v{b+2}")
        A(f"v_max_f32 v{d}, v{d}, v{b+3}")
    for sw in ("v_permlane16_swap_b32", "v_permlane32_swap_b32"):
        for qg in range(4): A(f"v_mov_b32 v{vT[qg]}, v{vNM[qg]}")
        for qg in range(4): A(f"{sw} v{vNM[qg]}, v{vT[qg]}")
        for qg in range(4): A(f"v_max_f32 v{vNM[qg]}, v{vNM[qg]}, v{vT[qg]}")
    for qg in range(4): A(f"v_xor_b32 v{vNM[qg]}, 0x80000000, v{vNM[qg]}")
    A(f"s_lshl_b32 s{sT}, s{sWv}, 9\ns_add_u32 s{sT}, s{sT}, {7*16384}")
    A(f"v_lshlrev_b32 v{vT[0]}, 3, v0")
    A(f"v_add_u32 v{vT[0]}, s{sT}, v{vT[0]}")
    A(f"ds_write_b64 v{vT[0]}, v[{vNM[2]}:{vNM[3]}]")
    A(f"v_xor_b32 v{vT[0]}, 512, v{vT[0]}")
    for kt in range(2):
        for qg in range(4):
            for r in range(4): A(f"v_add_f32 v{S(kt,qg)+r}, v{S(kt,qg)+r}, v{vNM[qg]}")
    A("s_waitcnt lgkmcnt(0)\ns_barrier")
    A(f"ds_read_b64 v[{vNMP[0]}:{vNMP[1]}], v{vT[0]}")
    for kt in range(2):
        for qg in range(4):
            for r in range(4): A(f"v_mov_b32 v{C(kt,qg)+r}, v{vNM[qg]}")
    check(1, sM2)
    A("s_waitcnt lgkmcnt(0)\ns_barrier")
    A(f"buffer_atomic_or v31, v{vPa}, s[{sDbg}:{sDbg+3}], s{sPO} offen offset:12 sc1")
    A(f"s_add_u32 m0, s11, {7*16384}")
    A(f"s_add_u32 s{sG}, s{sG}, {7*8192}")
    for j in range(4): A(f"buffer_load_dwordx4 v{vSt}, s[{sKV}:{sKV+3}], s{sG} offen offset:{j*1024} lds")
    if pfk3:
        pfk3(A)
        opt = dict(opt); opt['t32'] = wo_st(); opt['t32w'] = 1; opt['t33'] = ffn2()
    if fuse:
        ko.pre_consts(A, oo)
        TL = ko.Tail(A, name, st_flags, ST, stampk, oo)
        opt = dict(opt); opt["t32"] = ko.t32_ops(name, oo)
    tl = [(0, 0), (0, 1), (0, 2), (0, 3), (1, 0), (1, 1)]
    for (kt, qg) in tl:
        for r in range(4): A(f"v_exp_f32 v{S(kt,qg)+r}, v{S(kt,qg)+r}")
    for (kt, qg) in tl:
        for r in (0, 2): A(f"v_cvt_pk_bf16_f32 v{P(0,qg)+2*kt+(r>>1)}, v{S(kt,qg)+r}, v{S(kt,qg)+r+1}")
    if ST and not oo.get('st'): stamp(A, 9)
    A(f".p2align 6\nL_l1_{name}:")
    hook_site(A, 0, name); interval(A, 0, "L1", name, opt)
    hook_site(A, 1, name); interval(A, 1, "L1", name, opt)
    A(f"s_cmp_lt_u32 s{sN}, s{sSw}\ns_cbranch_scc1 L_l1_{name}")
    A(f"s_cmp_ge_u32 s{sN}, 32\ns_cbranch_scc1 L_tail_{name}")
    A(f".p2align 6\nL_l2_{name}:")
    hook_site(A, 2, name); interval(A, 0, "L2", name, opt)
    hook_site(A, 3, name); interval(A, 1, "L2", name, opt)
    A(f"s_cmp_lt_u32 s{sN}, 32\ns_cbranch_scc1 L_l2_{name}")
    A(f"L_tail_{name}:")
    if pfk3:
        A("s_waitcnt vmcnt(4)")
        A(f"v_readfirstlane_b32 s{sT}, v{vPd}")
        A(f"s_mul_i32 s{sCnt}, s{sM1}, 255")
        A(f"s_and_b32 s{sT}, s{sT}, s{sCnt}")
        A(f"s_cmp_lg_u32 s{sT}, s{sCnt}")
        A(f"s_cbranch_scc1 L_pstub2_{name}")
        A(f"L_pback2_{name}:")
    hook_site(A, 4, name)
    if pfk3: A(f"buffer_load_dwordx4 v[24:27], v{vSt}, s[{sWS}:{sWS+3}], s16 offen sc0 sc1")
    interval(A, 0, "T32", name, opt)
    A.vm = []; A.lg = []
    if fuse: opt["t33"] = TL.t33()
    interval(A, 1, "T33", name, opt)
    if ST: stamp(A, 10)
    if fuse: TL.gen()
    else: old_tail(A, name, st_flags, ST, stampk)
    for k in range(5):
        A(f"L_stub{k}_{name}:")
        if k & 1 and pfk3:
            A(f"s_cmp_eq_u32 s{sN}, 31\ns_cselect_b32 s{sT}, 0, 0x1000")
            A(f"buffer_load_dword v{vPd}, v{vPa}, s[{sDbg}:{sDbg+3}], s{sT} offen offset:12 sc0 sc1")
        A(f"s_call_b64 s[{sRet}:{sRet+1}], L_hook_{name}\ns_branch L_back{k}_{name}")
    for k in range(3):
        A(f"L_pstub{k}_{name}:\ns_mov_b32 s{sRot}, {12 if k == 2 else 8}\ns_call_b64 s[{sRet}:{sRet+1}], L_spin_{name}\ns_branch L_pback{k}_{name}")
    A(f"L_rstub_{name}:")
    A("s_mov_b32 s49, 0")
    A(f"L_rspin_{name}:")
    A("s_sleep 4")
    A(f"buffer_load_dword v{vPd}, v33, s[{sDbg}:{sDbg+3}], 0 offen offset:4 sc0 sc1")
    A("s_waitcnt vmcnt(0)")
    A(f"v_cmp_ne_u32 vcc, -1, v{vPd}")
    A("s_add_u32 s49, s49, 1")
    A(f"s_cbranch_vccz L_rback_{name}")
    A(f"s_cmp_lt_u32 s49, 0x20000\ns_cbranch_scc1 L_rspin_{name}")
    A(f"s_branch L_rback_{name}")
    A(f"L_spin_{name}:")
    A(f"s_mov_b32 s{sTmp}, 0")
    A(f"L_spinl_{name}:")
    A("s_sleep 4")
    A(f"buffer_load_dword v{vPd}, v{vPa}, s[{sDbg}:{sDbg+3}], s{sRot} offen sc0 sc1")
    A("s_waitcnt vmcnt(0)")
    A(f"v_readfirstlane_b32 s{sT}, v{vPd}")
    A(f"s_add_u32 s{sTmp}, s{sTmp}, 1")
    A(f"s_and_b32 s{sT}, s{sT}, s{sCnt}")
    A(f"s_cmp_eq_u32 s{sT}, s{sCnt}\ns_cbranch_scc1 L_spinx_{name}")
    A(f"s_cmp_lt_u32 s{sTmp}, 0x20000\ns_cbranch_scc1 L_spinl_{name}")
    A(f"L_spinx_{name}:")
    A(f"s_setpc_b64 s[{sRet}:{sRet+1}]")
    gen_hook(A, name, st_flags)
    gen_slow(A, name, st_flags, ko.slow_sig if fuse else None)
    A(f'L_last_{name}:')
    return A.text() + kdesc(name, 512, 256)

def old_tail(A, name, st_flags, ST, stampk):
    A("s_barrier")
    A(f"s_lshl_b32 s{sT}, s{sWv}, 14")
    A(f"v_add_u32 v{vT[0]}, s{sT}, v{vSt}")
    A(f"s_lshl_b32 s{sT}, s{sWv}, 9\ns_add_u32 s{sT}, s{sT}, 65536")
    A(f"v_lshlrev_b32 v{vT[1]}, 2, v0")
    A(f"v_add_u32 v{vT[1]}, s{sT}, v{vT[1]}")
    for dt in range(8):
        for q in range(2):
            A(f"ds_write_b128 v{vT[0]}, {vr(O(dt,q))} offset:{(dt*2+q)*1024}")
        if dt == 5: A("s_waitcnt lgkmcnt(8)")
    for q in range(2): A(f"ds_write_b32 v{vT[1]}, a{Lr(q)} offset:{q*256}")
    A(f"v_xor_b32 v{vT[0]}, 0x4000, v{vT[0]}")
    A(f"v_xor_b32 v{vT[1]}, 512, v{vT[1]}")
    A(f"v_accvgpr_read_b32 v{vNM[0]}, a{Lr(2)}")
    A(f"v_accvgpr_read_b32 v{vNM[2]}, a{Lr(3)}")
    A(f"v_mov_b32 v{vT[4]}, 0x5d800000")
    A("s_waitcnt lgkmcnt(0)\ns_barrier")
    for q in range(2): A.lds(f"ds_read_b32 v{vNMP[q]}, v{vT[1]} offset:{q*256}", "l")
    def rd(k):
        q, dt = k >> 3, k & 7
        A.lds(f"ds_read_b128 {vr(32 + k*4)}, v{vT[0]} offset:{(dt*2+q)*1024}", ("o", k))
    for k in range(12): rd(k)
    A.wait_lg("l")
    A(f"v_add_f32 v{vNM[0]}, v{vNM[0]}, v{vNMP[0]}")
    A(f"v_add_f32 v{vNM[2]}, v{vNM[2]}, v{vNMP[1]}")
    for k in range(16):
        q, dt = k >> 3, k & 7
        A.wait_lg([("o", k)])
        if k + 12 < 16: rd(k + 12)
        o = O(dt, 2+q)
        A(f"v_pk_add_f32 v[{o}:{o+1}], v[{o}:{o+1}], v[{32+k*4}:{33+k*4}]")
        A(f"v_pk_add_f32 v[{o+2}:{o+3}], v[{o+2}:{o+3}], v[{34+k*4}:{35+k*4}]")
    flush(A, 2, [vNM[0], vNM[2]], sCtxB, sBad+2, st_flags)
    A(f"s_or_b64 s[12:13], s[{sBad}:{sBad+1}], s[{sBad+2}:{sBad+3}]")
    A(f"s_cbranch_scc1 L_slow_{name}")
    A(f"L_fin_{name}:")
    if ST: stamp_end(A, stampk, sWS, sWv)
    A(f"L_end_{name}:\ns_endpgm")

WOA = 160
def pf_k3(A):
    A(f"s_lshl_b32 s{sT}, s2, 2\ns_add_u32 s{sT}, s{sT}, s{sWv}\ns_lshl_b32 s{sT}, s{sT}, 12")
    A("v_and_b32 v29, 15, v0\nv_lshlrev_b32 v29, 4, v29\nv_lshl_or_b32 v29, v22, 10, v29")
    A(f"s_mov_b32 s10, {4096*1024}\ns_mov_b32 s11, 0x20000")
    A("s_and_b32 s9, s9, 0xffff")
    for j in range(4): A(f"buffer_load_dwordx4 {ar(WOA+4*j)}, v29, s[8:11], s{sT} offen offset:{j*256}")
    A("v_bfe_u32 v30, v0, 3, 1\nv_and_b32 v31, 7, v0\nv_lshlrev_b32 v30, 19, v30\nv_lshl_or_b32 v30, v22, 7, v30\nv_lshl_or_b32 v30, v31, 4, v30")
    A(f"s_lshr_b32 s{sT}, s{sT}, 3")
    for j in range(4): A(f"s_add_u32 s{8+j}, s{sT}, {WS_WO + (j << 20)}")
    A(f"s_min_u32 s{sT}, s{sH}, 27\ns_lshl_b32 s{sT}, s{sT}, 3\ns_add_u32 s{sT}, s{sT}, s{sI}\ns_lshl_b32 s{sTmp}, s{sT}, 13\ns_add_u32 s{sTmp}, s{sTmp}, 4096")
    A(f"v_lshl_add_u32 v31, v0, 2, s{sTmp}\ns_lshl_b32 s{sTmp}, s{sWv}, 8\nv_add_u32 v31, s{sTmp}, v31")
    A(f"s_mul_i32 s{sTmp}, s{sWv}, {2048-256}\nv_mul_u32_u24 v20, 28, v0\nv_add3_u32 v20, v20, v31, s{sTmp}")
    A("global_load_dword v20, v20, s[12:13] offset:-4096")
    A("v_lshrrev_b32 v19, 5, v0\nv_and_b32 v18, 31, v0\nv_mul_u32_u24 v19, 57344, v19\nv_lshl_add_u32 v18, v18, 3, v19")
    A(f"v_add_u32 v19, {8*57344}, v18")
    A(f"s_mul_i32 s14, s{sWv}, {2*57344}\ns_lshl_b32 s{sT}, s{sT}, 8\ns_add_u32 s14, s14, s{sT}\ns_add_u32 s14, s14, {WS_Y}")
    A(f"s_lshl_b32 s16, s{sH}, 3\ns_add_u32 s16, s16, s{sI}\ns_lshl_b32 s16, s16, 10\ns_add_u32 s16, s16, {ffq.WS_PRE}")
    A(f"s_cmp_lt_u32 s{sH}, 28\ns_cselect_b32 s14, s14, {ffq.BIG}")
WDA = 176
def ffn2():
    o = ["s_waitcnt vmcnt(12)"] + ffq.act2_ops(24, 96, 104, 108, (8, 9, 10, 11))
    o.insert(next(k for k, x in enumerate(o) if "readlane" in x), "s_waitcnt vmcnt(4)")
    o += [f"buffer_store_dwordx2 v[{108+2*k}:{109+2*k}], v{18+k}, s[{sWS}:{sWS+3}], s14 offen sc1" for k in range(2)]
    ex = {}
    for n, x in enumerate(o): ex.setdefault(min(n * 36 // len(o), 35), []).append(x)
    return ex
def wo_st(): return [(f"global_load_dword v{96+f}, v31, s[12:13] offset:{f*1024-4096}", 1) for f in range(8)] + [(f"buffer_store_dwordx4 {ar(WOA+4*j)}, v30, s[{sWS}:{sWS+3}], s{8+j} offen sc1", 1) for j in range(4)]

if __name__ == "__main__":
    import sys, json, hazard, k4 as k3
    kw = json.loads(sys.argv[1])
    st = not kw.pop("nostamp", 0)
    k3kw = kw.pop("k3", {})
    if kw.pop("pf", 1): kw["pfk3"] = pf_k3
    if kw.get("fuse", 1):
        hdr = "; @launch grid=(256,1,1) block=(256,1,1) lds=163840\n"
        body = gen("KN", stampk=0 if st else None, **kw)
        full = "gated_mix__compressed_kv_cla__moe_arch_mod__prompt_kernel"
        import re
        body = re.sub(r"(?<![A-Za-z0-9_])KN\b", full, body)
    else:
        hdr = "; @launch kernel=fz_kernel grid=(256,1,1) block=(256,1,1) lds=163840\n" + k3.launch("k3_kernel")
        body = gen("fz_kernel", stampk=0 if st else None, **kw) + k3.gen_k3("k3_kernel", stampk=1 if st else None, **k3kw)
    out = hdr + '.amdgcn_target "amdgcn-amd-amdhsa--gfx950"\n.text\n' + body
    r = hazard.check(out)
    for x in r[:int(sys.argv[3]) if len(sys.argv) > 3 else 0]: print(x)
    out, n = hazard.fix(out)
    open(sys.argv[2], "w").write(out)
    print(len(r), "hazards", n, "nops inserted", len(hazard.check(out)), "left", len(out), "bytes")
    import subprocess
    rr = subprocess.run(["clang", "-x", "assembler", "-target", "amdgcn-amd-amdhsa", "-mcpu=gfx950", "-c", sys.argv[2], "-o", "chk.o"], capture_output=True, text=True)
    assert not rr.returncode, rr.stderr[:600]
    sym = {}
    for ln in subprocess.run(["readelf", "-sW", "chk.o"], capture_output=True, text=True).stdout.split("\n"):
        p = ln.split()
        if len(p) == 8 and p[7].startswith("L_"): sym[p[7]] = int(p[1], 16)
    if kw.get("fuse", 1):
        assert sym["L_last_KN"] - sym["L_pc2_KN"] >= 0x4400 and sym["L_last_KN"] <= 5*16384, sym
        print("code bytes", sym["L_last_KN"], "tail cover", sym["L_pc2_KN"] + 0x4400 - sym["L_end_KN"])
```

```python
from asmlib import *
from k1 import Sched, MF
from k2 import O, Lr, vSt, vNM, vNMP, vT
from k2 import sX, sWS, sH, sI, sWv, sN, sT, sRet, sCtxB, sBad, sTmp, sRbS, sRbB, sTT
from k2 import flush
import ffq
sDbg = 4; sPO = 3; vPa = 28
WOA = 160; sWb = 100
SLOT = [160, 176, 192, 208, 224, 240, 0, 16, 64, 80, 96, 112, 32, 48, 128, 144]

def pre(A):
    A(f"s_lshl_b32 s{sT}, s2, 2\ns_add_u32 s{sT}, s{sT}, s{sWv}")
    A(f"s_lshr_b32 s{sTmp}, s{sT}, 3\ns_and_b32 s{sT}, s{sT}, 7\ns_lshl_b32 s{sWb}, s{sTmp}, 8\ns_add_u32 s{sWb}, s{sWb}, s{sT}\ns_lshl_b32 s{sWb}, s{sWb}, 7")
    A("v_lshrrev_b32 v30, 3, v0\nv_and_b32 v23, 7, v0\nv_lshlrev_b32 v29, 12, v30\nv_lshl_or_b32 v29, v23, 4, v29")
    A(f"s_mov_b32 s10, {4096*1024}\ns_mov_b32 s11, 0x20000\ns_and_b32 s9, s9, 0xffff")
    for r in range(4): A(f"buffer_load_dwordx4 {ar(WOA+4*r)}, v29, s[8:11], s{sWb} offen offset:{r*1024}")
    A("v_and_b32 v30, 31, v0\nv_lshlrev_b32 v30, 5, v30\nv_lshrrev_b32 v20, 5, v0\nv_lshl_or_b32 v30, v20, 4, v30")
    A(f"s_lshl_b32 s9, s{sT}, 19\ns_lshl_b32 s{sTmp}, s{sTmp}, 12\ns_add_u32 s9, s9, s{sTmp}\ns_add_u32 s9, s9, {WS_WO}")
    A("s_mov_b32 s10, 0x05040100\ns_mov_b32 s11, 0x07060302")
    A(f"s_lshl_b32 s{sWb}, s{sI}, 2\ns_add_u32 s{sWb}, s{sWb}, s{sWv}\ns_lshl_b32 s{sWb}, s{sWb}, 17\ns_add_u32 s{sWb}, s{sWb}, {WS_WO}")

    A(f"s_lshl_b32 s101, s{sRbS}, 10\ns_lshl_b32 s{sT}, s{sH}, 4\ns_add_u32 s101, s101, s{sT}\ns_add_u32 s101, s101, {WS_FL}")

WS_FL = 55 << 20
def fst(A, so, tag=None):
    A("s_mov_b64 exec, 1")
    x = f"buffer_store_dword v31, v{vSt}, s[{sWS}:{sWS+3}], s{so} offen sc1"
    if tag: A.vmem(x, tag)
    else: A(x)
    A("s_mov_b64 exec, -1")
def early33(A):
    A(f"s_cmp_eq_u64 s[{sBad}:{sBad+1}], 0\ns_cselect_b32 s17, s101, {ffq.BIG}")
    fst(A, 17, "fl")

def events(A, name, o):
    E1, E2 = o.get("e", (9, 15))
    A(f"L_ev_{name}:")
    A(f"s_cmp_lg_u32 s{sN}, 31\ns_cbranch_scc1 L_ev1_{name}")
    A("v_and_b32 v29, 7, v0\nv_lshlrev_b32 v29, 4, v29")
    A(f"s_cmp_eq_u64 s[{sBad}:{sBad+1}], 0\ns_cselect_b32 s17, s101, {ffq.BIG}\ns_cmp_lt_u32 s{sTT}, 32\ns_cselect_b32 s17, s17, {ffq.BIG}\ns_cselect_b32 s101, {ffq.BIG}, s101")
    A("s_waitcnt vmcnt(16)")
    fst(A, 17)
    A(f"buffer_load_dwordx4 v[24:27], v29, s[{sDbg}:{sDbg+3}], 0 offen sc0 sc1")
    A(f"L_ev1_{name}:")
    A(f"s_cmp_lg_u32 s{sN}, {E2}\ns_cbranch_scc1 L_ev2_{name}")
    A(f"buffer_atomic_or v31, v{vPa}, s[{sDbg}:{sDbg+3}], s{sPO} offen sc1")
    A(f"L_ev2_{name}:")
    A(f"s_cmp_lg_u32 s{sN}, {E1}\ns_cbranch_scc1 L_hook_{name}")
    T = (11, 16, 20, 29)
    for q in range(4):
        d = (24, 12)[q & 1]
        for r in range(4): A(f"v_accvgpr_read_b32 v{T[r]}, a{WOA+4*r+q}")
        for s in range(2):
            for hh in range(2): A(f"v_perm_b32 v{d+2*s+hh}, v{T[2*hh+1]}, v{T[2*hh]}, s{10+s}")
        for hh in range(2): A(f"v_permlane32_swap_b32 v{d+hh}, v{d+2+hh}")
        A(f"buffer_store_dwordx4 {vr(d)}, v30, s[{sWS}:{sWS+3}], s9 offen offset:{q*1024} sc1")
    A(f"s_branch L_hook_{name}")

def w_ops(kk):
    o = [(f"buffer_load_dwordx4 {ar(SLOT[kk & 15] + 4*mt)}, v{vSt}, s[{sWS}:{sWS+3}], s{sWb} offen offset:{mt*1024}", ("W", kk)) for mt in range(4)]
    return o + [f"s_add_u32 s{sWb}, s{sWb}, 4096"]
def emit(A, ops):
    for x in ops:
        if isinstance(x, tuple):
            if len(A.vm) >= 62: A.wait_vm([A.vm[1]])
            A.vmem(*x)
        else: A(x)

def tail_head(A, name, o):
    A("s_waitcnt vmcnt(4)")
    A("v_and_b32 v24, v24, v27")
    A("v_cmp_ne_u32 vcc, -1, v24")
    A(f"s_cbranch_vccnz L_wstub_{name}")
    A(f"L_wback_{name}:")

def gen(A, name, st_flags, ST, stampk, o, nw):
    NC = o.get("NC", 8)
    A(f"s_lshl_b32 s14, s{sH}, 10\ns_add_u32 s14, s14, {WS_FL}")
    emit(A, [(f"buffer_load_dword v29, v{vSt}, s[{sWS}:{sWS+3}], s14 offen sc0 sc1", "poll")])
    A("s_barrier")
    A(f"s_lshl_b32 s{sT}, s{sWv}, 14")
    A(f"v_add_u32 v{vT[0]}, s{sT}, v{vSt}")
    A(f"s_lshl_b32 s{sT}, s{sWv}, 9\ns_add_u32 s{sT}, s{sT}, 65536")
    A(f"v_lshlrev_b32 v{vT[1]}, 2, v0")
    A(f"v_add_u32 v{vT[1]}, s{sT}, v{vT[1]}")
    for dt in range(8):
        for q in range(2):
            A(f"ds_write_b128 v{vT[0]}, {vr(O(dt,q))} offset:{(dt*2+q)*1024}")
        if dt == 5: A("s_waitcnt lgkmcnt(8)")
    for q in range(2): A(f"ds_write_b32 v{vT[1]}, a{Lr(q)} offset:{q*256}")
    A(f"v_xor_b32 v{vT[0]}, 0x4000, v{vT[0]}")
    A(f"v_xor_b32 v{vT[1]}, 512, v{vT[1]}")
    A(f"v_accvgpr_read_b32 v{vNM[0]}, a{Lr(2)}")
    A(f"v_accvgpr_read_b32 v{vNM[2]}, a{Lr(3)}")
    A(f"v_mov_b32 v{vT[4]}, 0x5d800000")
    A("s_waitcnt lgkmcnt(0)\ns_barrier"); A.lg = []
    for q in range(2): A.lds(f"ds_read_b32 v{vNMP[q]}, v{vT[1]} offset:{q*256}", "l")
    def rd(k):
        A.lds(f"ds_read_b128 {vr(32 + k*4)}, v{vT[0]} offset:{((k&7)*2+(k>>3))*1024}", ("o", k))
    for k in range(12): rd(k)
    A.wait_lg("l")
    A(f"v_add_f32 v{vNM[0]}, v{vNM[0]}, v{vNMP[0]}")
    A(f"v_add_f32 v{vNM[2]}, v{vNM[2]}, v{vNMP[1]}")
    for k in range(16):
        A.wait_lg([("o", k)])
        if k + 12 < 16: rd(k + 12)
        a = O(k & 7, 2 + (k >> 3))
        A(f"v_pk_add_f32 v[{a}:{a+1}], v[{a}:{a+1}], v[{32+k*4}:{33+k*4}]")
        A(f"v_pk_add_f32 v[{a+2}:{a+3}], v[{a+2}:{a+3}], v[{34+k*4}:{35+k*4}]")
    while len(A.vm) > 54: A.wait_vm([A.vm[0]])
    flush(A, 2, [vNM[0], vNM[2]], sCtxB, sBad+2, st_flags, tag="ctx")
    A(f"s_or_b64 s[12:13], s[{sBad}:{sBad+1}], s[{sBad+2}:{sBad+3}]")
    A(f"s_cbranch_scc1 L_slow_{name}")
    A(f"L_fin_{name}:")
    if ST: stamp(A, 11)
    vC = [vSt, 18, 19, 20]; vRow, vI, vY, vE, vZ, vL8, vG, vY2 = 2, 3, 4, 5, 6, 7, 8, 9
    GV, G1, SG, PD = 10, 12, 14, 16
    XR = 24; ACC = 32; CB = 96; TM = CB + 128
    sOut = 28; sK = [44, 45]; sRt, sRg, sCb, sXo, sGo, sYo, sPo, sMk, sLy = 8, 9, 10, 11, 12, 13, 14, 15, 16
    sTok, sYj, sOwn = [46, 47], [50, 51], [52, 53]
    sCk = [56, 57, 58, 59, 60, 61, 62, 63]
    PF = 11
    A(f"s_lshl_b32 s{sPo}, s{sH}, 10\ns_add_u32 s{sPo}, s{sPo}, {WS_FL}")
    POLL = f"buffer_load_dword v{PF}, v{vSt}, s[{sWS}:{sWS+3}], s{sPo} offen sc0 sc1"
    n1 = o.get("n1", 8)
    for kk in range(nw, n1): emit(A, w_ops(kk))
    A(f"s_load_dwordx2 s[{sOut}:{sOut+1}], s[0:1], 96")
    A(f"v_lshlrev_b32 v{vL8}, 8, v0\ns_lshl_b32 s{sT}, 1, s{sH}\nv_mov_b32 v{vZ}, s{sT}")
    A(f"s_lshl_b32 s{sTmp}, s{sI}, 2\ns_add_u32 s{sTmp}, s{sTmp}, s{sPO}")
    A(f"s_lshl_b32 s{sCb}, s{sH}, 18\ns_lshl_b32 s{sT}, s{sWv}, 15\ns_add_u32 s{sCb}, s{sCb}, s{sT}\ns_add_u32 s{sCb}, s{sCb}, {WS_CTX}")
    for k in range(8): A(f"s_add_u32 s{sCk[k]}, s{sCb}, {k*4096}")
    for j in range(1, 4): A(f"v_add_u32 v{vC[j]}, {((j&1) + 64*(j>>1))*131072}, v{vSt}")
    A(f"s_lshl_b32 s{sRg}, s{sH}, 1\ns_and_b32 s{sT}, s{sWv}, 1\ns_add_u32 s{sRg}, s{sRg}, s{sT}\ns_and_b32 s{sT}, s{sWv}, 2\ns_lshl_b32 s{sT}, s{sT}, 5\ns_add_u32 s{sRg}, s{sRg}, s{sT}")
    A(f"v_and_b32 v{vG}, 15, v0\nv_lshlrev_b32 v{vRow}, 10, v{vG}\nv_lshl_or_b32 v{vRow}, v22, 5, v{vRow}")
    A(f"s_lshl_b32 s{sXo}, s{sRg}, 14\ns_lshl_b32 s{sT}, s{sI}, 7\ns_add_u32 s{sXo}, s{sXo}, s{sT}")
    A(f"s_lshl_b32 s{sT}, s{sRg}, 4\nv_add_u32 v{vI}, s{sT}, v{vG}\nv_lshlrev_b32 v{vG}, 2, v{vG}")
    A(f"s_lshl_b32 s{sGo}, s{sRg}, 6\ns_add_u32 s{sGo}, s{sGo}, {WS_G}")
    A(f"s_lshl_b32 s{sT}, s{sH}, 4\ns_add_u32 s{sT}, s{sT}, {WS_FL}\ns_lshl_b32 s101, s{sRbS}, 10\ns_add_u32 s101, s101, s{sT}")
    A(f"s_cmp_eq_u64 s[{sBad}:{sBad+1}], 0\ns_cselect_b32 s101, {ffq.BIG}, s101")
    A(f"s_lshl_b32 s17, s{sRbB}, 10\ns_add_u32 s17, s17, s{sT}\ns_sub_u32 s17, s17, {32768 - 512}")
    A.wait_vm("poll")
    A(f"v_cmp_eq_u32 vcc, 0, v29")
    A(f"s_cmp_lg_u32 vcc_lo, 0\ns_cbranch_scc1 L_estub_{name}")
    A(f"L_eback_{name}:")
    def c_op(e, kk, j): return (f"buffer_load_dwordx4 {vr(CB + e*8 + 4*(j&1))}, v{vC[j]}, s[{sWS}:{sWS+3}], s{sCk[kk>>2]} offen offset:{(kk&3)*1024}", ("C", kk, j >> 1))
    ka = o.get("ka", 3)
    for kk in range(16):
        if kk == 4 and ka >= 4: A.wait_vm("ctx")
        emit(A, [c_op(kk, kk, 0), c_op(kk, kk, 1)])
        if n1 + kk < 16: emit(A, w_ops(n1 + kk))
        if kk == ka:
            A.wait_vm("ctx")
            fst(A, 17, "fl"); fst(A, 101, "fl")
        if kk == o.get("kb", 6):
            A("s_barrier")
            emit(A, [(f"buffer_atomic_or v{vZ}, v{vL8}, s[{sDbg}:{sDbg+3}], s{sTmp} offen offset:128 sc1", "sig")])
    YL = 14336; YX = 28672
    A(f"s_mul_i32 s{sYo}, s{sI}, 57344\ns_mul_i32 s{sLy}, s{sWv}, 14336\ns_add_u32 s{sYo}, s{sYo}, s{sLy}\ns_add_u32 s{sYo}, s{sYo}, {WS_Y}")
    A(f"v_lshlrev_b32 v{vY}, 6, v22\nv_add_u32 v{vY2}, 0x10000, v{vY}")
    A(f"s_lshl_b32 s{sLy}, s{sWv}, 15\nv_add_u32 v{vE}, s{sLy}, v{vSt}")
    A(f"v_mov_b32 v{vL8}, 0\ns_mov_b32 s{sT}, {ffq.WS_TOP}")
    A(f"v_and_b32 v{vZ}, 7, v0\nv_lshlrev_b32 v{vZ}, 2, v{vZ}")
    A(f"s_mov_b32 s{sOut+2}, {2048*1024}\ns_mov_b32 s{sOut+3}, 0x20000")
    A(f"s_waitcnt lgkmcnt(0)\ns_and_b32 s{sOut+1}, s{sOut+1}, 0xffff")
    if ST: stamp(A, 12)
    S = Sched(A); A.auto = 1
    S.at(1, "vm", f"buffer_load_dwordx2 v[{SG}:{SG+1}], v{vL8}, s[{sWS}:{sWS+3}], s{sT} offen sc0 sc1", "top")
    for hh in range(2): S.at(2 + hh, "vm", f"buffer_load_dwordx4 {vr(XR+4*hh)}, v{vRow}, s[{sX}:{sX+3}], s{sXo} offen offset:{hh*16}", "x")
    S.at(4, "vm", f"buffer_load_dword v{GV}, v{vG}, s[{sWS}:{sWS+3}], s{sGo} offen sc0 sc1", "x")
    def own():
        A.wait_vm("top")
        for j in range(2):
            A(f"v_readfirstlane_b32 s{sK[j]}, v{SG+j}")
            A(f"s_andn2_b32 s{sTok[j]}, 0x7ff, s{sK[j]}\ns_bfe_u32 s{sT}, s{sTok[j]}, 0x50005\ns_add_u32 s{sYj[j]}, s{sYo}, {j*8*57344}")
            A(f"s_cmp_eq_u32 s{sT}, s{sH}\ns_cselect_b32 s{sYj[j]}, s{sYj[j]}, {ffq.BIG}\ns_cselect_b32 s{sOwn[j]}, 0, -1")
        A(f"s_and_b32 s{sMk}, s{sOwn[0]}, s{sOwn[1]}\ns_and_b32 s{sRt}, s{sMk}, 0x1000")
    S.at(127, "fn", own)
    kp, kc, ks0, ks1 = o.get("ky", (9, 14, 22, 25))
    S.at(16*kp + 4, "vm", f"buffer_load_dword v{PD}, v{vZ}, s[{sDbg}:{sDbg+3}], s{sRt} offen offset:128 sc0 sc1", "poll")
    S.at(16*kc + 1, "wvm", tag=["poll"])
    S.at(16*kc + 1, "v", f"v_or_b32 v{PD}, s{sMk}, v{PD}")
    S.at(16*kc + 2, "v", f"v_cmp_ne_u32 vcc, -1, v{PD}")
    S.at(16*kc + 3, "s", f"s_cbranch_vccnz L_ystub_{name}\nL_yback_{name}:")
    for j in range(2):
        for q in range(4):
            b = 16*(kc + 4*j + q)
            S.at(b + 3, "s", f"s_add_u32 m0, s{sLy}, {(YL if j else 0) + q*4096}")
            for mt in range(4):
                if q*4 + mt < 14: S.at(b + 4 + 3*mt, "vm", f"buffer_load_dwordx4 v{vSt}, s[{sWS}:{sWS+3}], s{sYj[j]} offen offset:{mt*1024} lds", ("y", j))
            S.at(b + 14, "s", f"s_add_u32 s{sYj[j]}, s{sYj[j]}, 4096")
        b = 16*(ks0, ks1)[j] + 10
        S.at(b, "wvm", tag=[("y", j), "x"])
        S.at(b, "s", f"s_cmp_eq_u32 s{sOwn[j]}, 0\ns_cbranch_scc1 L_own{j}_{name}\nL_ownr{j}_{name}:")
    def mm(kk, js, e):
        for mt in range(4):
            for j in js:
                d = ACC + (mt*4 + j)*4
                S.mfma(f"{MF} {vr(d)}, {ar(SLOT[kk & 15] + mt*4)}, {vr(CB + e[j>>1]*8 + 4*(j&1))}, {vr(d) if kk else 0}")
    gp = o.get("gp", 72); NL = o.get("NL", 8); g0, gs = o.get("gl", (6, 12)); vE2 = 17
    S.at(0, "s", f"s_lshl_b32 s{sCb}, s{sWv}, 13\ns_add_u32 s{sCb}, s{sCb}, {131072 - 8*4096}\nv_add_u32 v{vE2}, s{sCb}, v{vSt}")
    for q in range(NL):
        b = g0 + q*gs
        S.at(b, "s", f"s_add_u32 m0, s{sLy if q < 8 else sCb}, {q*4096}")
        for mt in range(4): S.at(b + mt*(gs // 4), "vm", f"buffer_load_dwordx4 v{vSt}, s[{sWS}:{sWS+3}], s{sWb} offen offset:{mt*1024} lds", ("WL", q))
        S.at(b + 3*(gs // 4), "s", f"s_add_u32 s{sWb}, s{sWb}, 4096")
    assert g0 + NL*gs <= 127 + gs // 4 and 128 + 8*min(NL, 8) + 16 <= 16*kc
    for kk in range(16):
        b = 8*kk
        S.at(b - 1, "wvm", tag=[("C", kk, 0), ("W", kk)])
        if 1 <= kk <= 8:
            for j in range(2): S.at(b + 2 + 3*j, "vm", *c_op(kk - 1, kk + 15, j))
        mm(kk, (0, 1), (kk, 0))
    S.at(gp, "vm", POLL, "lp")
    S.at(127, "wvm", tag=["lp"])
    S.at(127, "v", f"v_cmp_eq_u32 vcc, 0, v{PF}")
    S.at(127, "s", f"s_cmp_lg_u32 vcc_hi, 0\ns_cbranch_scc1 L_cstub_{name}\nL_cback_{name}:")
    if ST: S.at(127, "fn", lambda: stamp(A, 3))
    for kk in range(8):
        for j in (2, 3): S.at(127, "vm", *c_op(8 + kk, kk, j))
    for kk in range(16):
        b = 128 + 8*kk
        S.at(b - 1, "wvm", tag=[("C", kk, 1)])
        if kk >= 1:
            for j in (2, 3): S.at(b + j - 1, "vm", *c_op(8 + ((kk - 1) & 7), kk + 7, j))
            if kk - 1 < NL:
                S.at(b + 3, "wvm", tag=[("WL", kk - 1)])
                for mt in range(4): S.at(b + 3 + mt, "lds", f"ds_read_b128 {ar(SLOT[kk - 1] + 4*mt)}, v{vE if kk < 9 else vE2} offset:{(kk - 1)*4096 + mt*1024}", ("w", kk + 15))
                if kk >= 3: S.at(b + 2, "wlg", tag=[("w", kk + 13)])
            else:
                for n, x in enumerate(w_ops(kk + 15)):
                    if n < 4: S.at(b + 3 + n, "vm", *x)
                    else: S.at(b + 6, "s", x)
            if kk == NL + 1: S.at(b + 2, "wlg", tag=[("w", NL + 15)])
        mm(kk, (2, 3), (0, 8 + (kk & 7)))
    for kk in range(16, 32):
        b = 16*kk
        S.at(b - 1, "wvm", tag=[("C", kk, 0), ("C", kk, 1), ("W", kk)])
        if kk + 7 < 32:
            for j in (2, 3): S.at(b + 2*j - 3, "vm", *c_op(8 + ((kk - 1) & 7), kk + 7, j))
            if kk >= 17:
                for j in (0, 1): S.at(b + 5 + 2*j, "vm", *c_op((kk - 1) & 7, kk + 7, j))
        if kk == 16:
            for n, x in enumerate(w_ops(31)[:4]): S.at(b + 5 + 2*n, "vm", *x)
        mm(kk, (0, 1, 2, 3), (kk & 7, 8 + (kk & 7)))
    B = TM
    ops = [f"v_sub_f32 v{G1}, 1.0, v{GV}"] + ffq.rnd(G1)
    for k in range(8):
        ops += [f"v_lshlrev_b32 v{B+2*k}, 16, v{XR+k}", f"v_and_b32 v{B+2*k+1}, 0xffff0000, v{XR+k}",
              f"v_mul_f32 v{B+2*k}, v{B+2*k}, v{G1}", f"v_mul_f32 v{B+2*k+1}, v{B+2*k+1}, v{G1}",
              f"v_cvt_pk_bf16_f32 v{B+2*k+1}, v{B+2*k}, v{B+2*k+1}", f"v_lshlrev_b32 v{B+2*k}, 16, v{B+2*k+1}", f"v_and_b32 v{B+2*k+1}, 0xffff0000, v{B+2*k+1}"]
    ops += [f"s_lshl_b32 s{sT}, s{sWv}, 12", f"v_add_u32 v{vY}, s{sT}, v{vSt}", f"v_add_u32 v{vY2}, 0x10000, v{vY}"]
    for n, x in enumerate(ops): S.at(16*26 + n, "v", x)
    if ST: S.at(256, "fn", lambda: stamp(A, 1)); S.at(511, "fn", lambda: stamp(A, 2))
    S.emit(); print('auto waits', A.auto - 1)
    for mt in range(4):
        for j in range(4): A(f"ds_write_b128 v{vE}, {vr(ACC + (mt*4+j)*4)} offset:{j*4096 + mt*1024}")
        if mt == 2: A("s_waitcnt lgkmcnt(4)")
    A("s_waitcnt lgkmcnt(0)\ns_barrier"); A.lg = []
    R = ACC
    def rr(mt):
        for ww in range(4): A.lds(f"ds_read_b128 {vr(R + (ww*4+mt)*4)}, v{(vY, vY2)[ww>>1]} offset:{(ww&1)*32768 + mt*1024}", mt)
    for mt in range(3): rr(mt)
    def unp(a, s): A(f"v_lshlrev_b32 v{a}, 16, v{s}\nv_and_b32 v{a+1}, 0xffff0000, v{s}")
    def pk(op, a, b, c, ex=""): A(f"v_pk_{op}_f32 v[{a}:{a+1}], v[{b}:{b+1}], v[{c}:{c+1}]{ex}")
    for k in range(8):
        a = R + 2*k
        if k % 2 == 0: A.wait_lg([k >> 1])
        if k == 0: rr(3)
        pk("add", a, a, a+16); pk("add", a+32, a+32, a+48); pk("add", a, a, a+32)
        A(f"v_cvt_pk_bf16_f32 v{a+1}, v{a}, v{a+1}"); unp(a, a+1)
        pk("mul", a, a, GV, " op_sel_hi:[1,0]")
        A(f"v_cvt_pk_bf16_f32 v{a+1}, v{a}, v{a+1}"); unp(a, a+1)
        xi = (k & 1)*4 + (k >> 1)
        pk("add", a, a, B+2*xi)
        A(f"v_cvt_pk_bf16_f32 v{XR+xi}, v{a}, v{a+1}")
        if k >= 6: A(f"buffer_store_dwordx4 {vr(XR+4*(k&1))}, v{vRow}, s[{sOut}:{sOut+3}], s{sXo} offen offset:{(k&1)*16}")
    if ST: stamp_end(A, stampk, sWS, sWv)
    A(f"L_end_{name}:\ns_endpgm")
    Y = TM
    for j in range(2):
        A(f"L_own{j}_{name}:")
        for hf in range(2):
            for q in range(7): A(f"ds_read_b128 {vr(Y + 4 + 4*q)}, v{vE} offset:{j*YL + (hf*7+q)*1024}")
            A("s_waitcnt lgkmcnt(0)")
            for (a, b) in ((1, 2), (3, 4), (5, 6), (1, 3), (5, 7)) + (((0, 1), (0, 5)) if hf else ()):
                for e in (0, 2): pk("add", Y+4*a+e, Y+4*a+e, Y+4*b+e)
            if not hf:
                for e in (0, 2): pk("add", Y+e, Y+4+e, Y+20+e)
        for sw in ("v_permlane16_swap_b32", "v_permlane32_swap_b32"):
            for r in range(4): A(f"v_mov_b32 v{Y+4+r}, v{Y+r}")
            for r in range(4): A(f"{sw} v{Y+r}, v{Y+4+r}")
            for r in range(4): A(f"v_add_f32 v{Y+r}, v{Y+r}, v{Y+4+r}")
        A(f"ds_write_b128 v{vE}, {vr(Y)} offset:{YX}")
        A(f"s_and_b32 s54, s{sK[j]}, 0xffff0000\ns_xor_b32 s55, s54, 0x80000000\ns_xor_b32 s56, s54, 0xffff0000")
        A(f"s_bitcmp1_b32 s54, 31\ns_cselect_b32 s55, s55, s56\nv_mov_b32 v{SG}, s55")
        for x in ffq.sigm(SG) + ffq.rnd(SG): A(x)
        A(f"v_cmp_eq_u32 vcc, s{sTok[j]}, v{vI}")
        A("s_waitcnt lgkmcnt(0)\ns_barrier")
        for hf in range(2):
            for k in range(8): A(f"ds_read_b128 {vr(Y + 4*k)}, v{(vY, vY2)[k>>2]} offset:{YX + ((k>>1)&1)*32768 + (hf*2 + (k&1))*16}")
            A("s_waitcnt lgkmcnt(0)")
            for k in range(4):
                a = Y + 2*k; b = Y + 8 + 2*k; x = XR + hf*4 + k
                pk("add", a, a, a+8); pk("add", a+16, a+16, a+24); pk("add", a, a, a+16)
                A(f"v_cvt_pk_bf16_f32 v{a+1}, v{a}, v{a+1}"); unp(b, x); unp(a, a+1)
                pk("mul", a, a, SG, " op_sel_hi:[1,0]")
                A(f"v_cvt_pk_bf16_f32 v{a+1}, v{a}, v{a+1}"); unp(a, a+1)
                pk("add", a, a, b)
                A(f"v_cvt_pk_bf16_f32 v{a}, v{a}, v{a+1}")
                A(f"v_cndmask_b32 v{x}, v{x}, v{a}, vcc")
        A(f"s_barrier\ns_branch L_ownr{j}_{name}")
    def spin(tag, ld, test):
        A(f"L_{tag}stub_{name}:")
        if tag == "e":
            A("s_waitcnt vmcnt(0)"); fst(A, 17); fst(A, 101)
        sc = 17 if tag != "e" else 49
        A(f"s_mov_b32 s{sc}, 0\nL_{tag}spin_{name}:\ns_sleep {o.get('slp', 8)}")
        A(ld); A("s_waitcnt vmcnt(0)"); A(test)
        A(f"s_add_u32 s{sc}, s{sc}, 1\ns_cmp_lt_u32 s{sc}, 0x20000\ns_cbranch_scc1 L_{tag}spin_{name}\ns_branch L_{tag}back_{name}")
    spin("w", f"buffer_load_dwordx4 v[24:27], v29, s[{sDbg}:{sDbg+3}], 0 offen sc0 sc1", f"v_and_b32 v24, v24, v27\nv_cmp_ne_u32 vcc, -1, v24\ns_cbranch_vccz L_wback_{name}")
    spin("c", POLL, f"v_cmp_eq_u32 vcc, 0, v{PF}\ns_cmp_eq_u32 vcc_hi, 0\ns_cbranch_scc1 L_cback_{name}")
    spin("e", POLL, f"v_cmp_eq_u32 vcc, 0, v{PF}\ns_cmp_eq_u32 vcc_lo, 0\ns_cbranch_scc1 L_eback_{name}")
    spin("y", f"buffer_load_dword v{PD}, v{vZ}, s[{sDbg}:{sDbg+3}], 0 offen offset:128 sc0 sc1", f"v_cmp_ne_u32 vcc, -1, v{PD}\ns_cbranch_vccz L_yback_{name}")
```

```python
from asmlib import *
from k1 import Sched, MF, wave_reduce_add
import k2
from k2 import S as S_, P, C, O, Kf, Vf, Q, Lr, ONES, NEGV, vSt, vA, vNM, vNMP, vNEG, vT, vPark
from k2 import sX, sW, sWS, sKV, sH, sI, sWv, sW8, sN, sSw, sA, sB, sT, sG, sEv, sTT, sRbA, sRbB, sRbP, sTri, sRet, sCtxA, sCtxB, sBad, sTmp, sRbS
import kf, ffq
from sched2 import Sched2
from k2 import interval, hook_site, flush, gen_hook, gen_slow

sDbg = 4
sPO, sNW0, sM1, sM2, sCnt = 3, 14, 15, 16, 17
vPa, vPd = 28, 29

def srd2(A, d, nbytes):
    A(f"s_mov_b32 s{d+2}, {nbytes}")
    A(f"s_mov_b32 s{d+3}, 0x20000")
def srd3(A, d): A(f"s_and_b32 s{d+1}, s{d+1}, 0xffff")

def gen(name, L=16, NB=6, st_flags="sc1", extra_start=6*64, store_start=9*64-32, store_step=10, stampk=None, opt={},
        sig_hs=6, poll1=330, chk_hs=13, code_kb=64, pfk3=None, hmap=1, kv_flags=None, rot=0, dbg='', fuse=1, oo={}, lp='kcvq', lpv=20, lpq=200, s2=1, lpx=300, lpw=(-990, 150, 420), dr=(520, 20, 10, 5), l2g=7, pw=-1, tw=0, cpf=1, pfl=0, fq={}):
    A = Asm()
    ST = stampk is not None
    A(khead(name))
    A(f"s_cmp_ge_u32 s2, 256\ns_cbranch_scc1 L_end_{name}")
    sC, sK, sV, sR, sGw = 24, 28, 32, 48, 52
    A(f"s_load_dwordx2 s[{sC}:{sC+1}], s[0:1], 8")
    A(f"s_load_dwordx2 s[{sK}:{sK+1}], s[0:1], 24")
    A(f"s_load_dwordx2 s[{sX}:{sX+1}], s[0:1], 0")
    A(f"s_load_dwordx2 s[{sV}:{sV+1}], s[0:1], 32")
    A(f"s_load_dwordx2 s[{sR}:{sR+1}], s[0:1], 56")
    A(f"s_load_dwordx2 s[{sGw}:{sGw+1}], s[0:1], 88")
    A(f"s_load_dwordx2 s[{sWS}:{sWS+1}], s[0:1], 112")
    A(f"s_load_dwordx2 s[{sDbg}:{sDbg+1}], s[0:1], 104")
    A("s_load_dwordx2 s[12:13], s[0:1], 16")
    A("s_getpc_b64 s[62:63]")
    A(f"L_pc_{name}:")
    if cpf:
        A("v_lshrrev_b32 v1, 6, v0\nv_and_b32 v2, 7, v0\nv_lshl_or_b32 v1, v1, 3, v2")
        A("s_lshr_b32 s44, s2, 3\ns_lshl_b32 s44, s44, 11")
        A("v_lshl_add_u32 v1, v1, 6, s44")
        A(f"v_min_u32 v1, L_last_{name}-L_pc_{name}-4, v1")
        A.vmem("global_load_dword v30, v1, s[62:63]", "pf")
    else:
        A("v_lshlrev_b32 v1, 6, v0")
        A.vmem("global_load_dword v30, v1, s[62:63]", "pf")
        A("s_bfe_u32 s44, s2, 0x20003")
        A(f"s_add_u32 s44, s44, 1\ns_lshl_b32 s44, s44, 14")
        A(f"s_min_u32 s44, s44, L_last_{name}-L_pc_{name}-0x4000")
        A("v_add_u32 v2, s44, v1")
        A.vmem("global_load_dword v31, v2, s[62:63]", "pf")
    if ST: stamp_begin(A)
    A("v_lshrrev_b32 v1, 6, v0")
    A("v_and_b32 v0, 63, v0")
    A(f"v_readfirstlane_b32 s{sWv}, v1")
    if hmap:
        A(f"s_and_b32 s{sH}, s2, 7\ns_lshl_b32 s{sH}, s{sH}, 2\ns_bfe_u32 s{sI}, s2, 0x20003\ns_or_b32 s{sH}, s{sH}, s{sI}")
    else:
        A(f"s_and_b32 s{sH}, s2, 31")
    A(f"s_lshr_b32 s{sI}, s2, 5")
    if kv_flags is None: kv_flags = st_flags
    aW = list(range(2, 10)); aV = list(range(10, 14)); aC = [14, 15, 26, 27]
    dW = 16; dV = [17, 18]; dC = [19, 20]
    t0, t1, t2, t3 = 22, 23, 24, 25
    A(f"v_lshrrev_b32 v{t0}, 4, v0")
    A(f"v_and_b32 v{t1}, 15, v0")
    A(f"s_lshl_b32 s{sW8}, s{sWv}, 13")
    A(f"s_and_b32 s44, s{sWv}, 1")
    A("s_lshl_b32 s44, s44, 3")
    A(f"v_lshlrev_b32 v{t2}, 1, v{t0}")
    A(f"v_xor_b32 v{t2}, v{t2}, v{t1}")
    A(f"v_xor_b32 v{t2}, s44, v{t2}")
    A(f"v_lshlrev_b32 v{dW}, 13, v{t0}")
    A(f"v_lshl_or_b32 v{dW}, v{t2}, 4, v{dW}")
    A(f"v_lshrrev_b32 v{t1}, 3, v0")
    A(f"v_and_b32 v{t2}, 7, v0")
    A(f"v_xor_b32 v{t3}, v{t2}, v{t0}")
    A(f"v_lshlrev_b32 v{dC[0]}, 10, v{t1}")
    A(f"v_lshl_or_b32 v{dC[0]}, v{t3}, 4, v{dC[0]}")
    A(f"v_xor_b32 v{dC[1]}, 64, v{dC[0]}")
    A(f"v_lshlrev_b32 v{vSt}, 4, v0")
    srd2(A, sC, 2048*1024); srd2(A, sK, 4096*1024); srd2(A, sX, 2048*1024); srd2(A, sV, 4096*1024)
    srd2(A, sWS, WS_BYTES); srd2(A, sR, 1024); srd2(A, sGw, 1024); srd2(A, sDbg, 256)
    A(f"s_lshl_b32 s45, s{sI}, 2\ns_add_u32 s45, s45, s{sWv}")
    A("s_lshl_b32 s46, s45, 16")
    A(f"s_lshl_b32 s47, s{sH}, 8")
    A(f"s_lshl_b32 s56, s{sWv}, 16\ns_add_u32 s56, s56, s47")
    A(f"s_lshl_b32 s57, s{sWv}, 17\ns_add_u32 s57, s57, s47")
    A(f"s_lshl_b32 s60, s2, 2\ns_add_u32 s60, s60, s{sWv}\ns_lshl_b32 s61, s60, 11")
    sRot, sCb, sWc = 101, 100, sTmp
    if rot == 1:
        A(f"s_lshr_b32 s{sRot}, s2, 2\ns_and_b32 s{sRot}, s{sRot}, 6\ns_add_u32 s{sRot}, s{sRot}, s2\ns_add_u32 s{sRot}, s{sRot}, s{sI}")
    elif rot == 2:
        A(f"s_lshr_b32 s{sRot}, s2, 2\ns_and_b32 s{sRot}, s{sRot}, 6\ns_add_u32 s{sRot}, s{sRot}, s{sI}")
    else: A(f"s_mov_b32 s{sRot}, {rot-10 if rot >= 10 else 0}")
    A(f"s_and_b32 s{sRot}, s{sRot}, 7\ns_lshl_b32 s{sRot}, s{sRot}, 7")
    if hmap:
        A(f"s_lshr_b32 s66, s2, 3\ns_lshl_b32 s66, s66, 2\ns_add_u32 s66, s66, s{sWv}\ns_lshl_b32 s66, s66, 5\ns_and_b32 s67, s2, 7\ns_add_u32 s66, s66, s67\ns_lshl_b32 s66, s66, 10")
        A(f"v_and_b32 v32, 15, v0\nv_lshlrev_b32 v32, 6, v32\nv_lshl_or_b32 v32, v{t0}, 13, v32")
    else:
        A("s_lshl_b32 s66, s60, 12")
        A("v_lshlrev_b32 v32, 6, v0")
    A("v_lshlrev_b32 v33, 5, v0")
    A(f"s_lshr_b32 s67, s2, 3\ns_lshl_b32 s67, s67, 2\ns_add_u32 s67, s67, s{sWv}\ns_lshl_b32 s67, s67, 14")
    A(f"s_mov_b32 s63, {WS_R}\ns_lshl_b32 s58, s{sH}, 19\ns_add_u32 s62, s58, {WS_V}")
    A(f"v_lshlrev_b32 v38, {l2g}, v0")
    A(f"v_lshrrev_b32 v39, 2, v0\nv_and_b32 v1, 3, v0\nv_lshlrev_b32 v39, 13, v39\nv_lshl_or_b32 v39, v1, 6, v39")
    A("s_lshl_b32 s19, s45, 17\ns_add_u32 s19, s19, s47")
    A("s_waitcnt lgkmcnt(0)")
    if ST and not fuse: stamp(A, 11)
    if tw:
        for (p, o) in [(sC, "s46"), (sK, "s56"), (sX, "s61"), (sK, "s66"), (sC, "s61"), (sR, "0"), (sGw, "0"), (sWS, "s63"), (sDbg, "0")] + \
                      ([(sV, "s57"), (sV, "s66"), (12, "s66"), (12, "s56"), (sWS, "s58"), (sWS, "s62")] if tw > 1 else []):
            A(f"s_load_dword s59, s[{p}:{p+1}], {o}")
    for d in (sK, sC): srd3(A, d)
    def pf0():
        if 'c' in lp: A.vmem(f"buffer_load_dword v35, v33, s[{sC}:{sC+3}], s61 offen", "pf")
        if 'k' in lp: A.vmem(f"buffer_load_dword v34, v32, s[{sK}:{sK+3}], s66 offen", "pf")
    if pfl == 0: pf0()
    for d in (sX, sV, sR, sGw, sWS, sDbg): srd3(A, d)
    RG = 192
    S = Sched2(A) if s2 else Sched(A)
    def weave(g, lines, per=2, kind="v"):
        n = 0
        for ln in lines:
            for x in ln.split("\n"):
                S.at(g + int(n / per), kind, x); n += 1
        return g + int((n - 1) / per) + 1
    Q0 = 1024
    def wslot(hs):
        if hs < 22: return ((hs % 8) >> 2, hs & 3)
        if hs < 24: return (2, hs - 22)
        return (3 + ((hs >> 2) & 1 ^ 0 if False else (((hs - 24) >> 2) & 1)), hs & 3)
    sXs, sXl, sWb = 8, 9, 10
    busy = []
    def claim(reg, g0, g1):
        for (r, a, b) in busy: assert r != reg or g1 < a or g0 > b, (reg, g0, g1, a, b)
        busy.append((reg, g0, g1))
    def dma_w(gap, hs, spread=1):
        b, t = wslot(hs)
        sWc = 59 if 22 <= hs < 32 else sTmp
        claim(sWc, gap, gap + spread)
        if hs < 16: k0, ex, base, sr = hs*64, 0, 56, sK
        elif hs < 32: k0, ex, base, sr = ((hs-16) & 7)*128, ((hs-16) >> 3)*128, 57, sV
        else: k0, ex, base, sr = (hs-32)*64, 0, sWb, sW
        S.at(gap, "s", f"s_add_u32 s{sWc}, s{sRot}, {k0}")
        S.at(gap, "s", f"s_and_b32 s{sWc}, s{sWc}, 1023")
        S.at(gap, "s", f"s_lshl_b32 s{sWc}, s{sWc}, 12")
        S.at(gap, "s", f"s_add_u32 s{sWc}, s{sWc}, s{base}")
        if ex: S.at(gap, "s", f"s_add_u32 s{sWc}, s{sWc}, {ex}")
        for j in range(2):
            lds = b*32768 + t*2048 + j*1024
            vo = dV[j] if 16 <= hs < 32 else dW
            g = gap + j*spread
            S.at(g, "s", f"s_add_u32 m0, s{sW8}, {lds}")
            if j: S.at(g, "s", f"s_add_u32 s{sWc}, s{sWc}, {(8 if 16 <= hs < 32 else 4)*8192}")
            elif not s2 or gap < 0: S.at(g, "s", "s_nop 0")
            S.at(g, "vm", f"buffer_load_dwordx4 v{vo}, s[{sr}:{sr+3}], s{sWc} offen lds", ("W", hs))
    def cblock(s): return 2 + ((s+1) % 3) if s < 8 else (s - 8 + 1) % 3
    def dma_c(gap, s, spread=2):
        claim(sCb, gap, gap + 7*spread)
        S.at(gap, "s", f"s_add_u32 s{sCb}, s{sRot}, {(s & 7)*128}")
        S.at(gap, "s", f"s_and_b32 s{sCb}, s{sCb}, 1023")
        for j in range(8):
            g = gap + j*spread
            S.at(g, "s", f"s_add_u32 m0, s{sW8}, {cblock(s)*32768 + j*1024}")
            if j == 0: S.at(g, "s", f"s_add_u32 s{sCb}, s{sCb}, s{46 if s < 8 else sXs}")
            elif j == 4 and s >= 8: S.at(g, "s", f"s_add_u32 s{sCb}, s{sCb}, s{sXl}")
            else: S.at(g, "s", f"s_add_u32 s{sCb}, s{sCb}, 8192")
            sr = sC if s < 8 else sX
            S.at(g, "vm", f"buffer_load_dwordx4 v{dC[j&1]}, s[{sr}:{sr+3}], s{sCb} offen lds", ("C", s))
    def creg(ks, tg): return ((ks & 15)*4 + tg) * 4
    def read_c(gap, s, spread=4):
        S.at(gap, "wvm", tag=[("C", s)])
        n = 0
        cb = cblock(s) - (2 if s < 8 else 0)
        for k2_ in range(2):
            for tg in range(4):
                off = (cb & 1)*32768 + tg*2048
                S.at(gap + n*spread, "lds", f"ds_read_b128 {ar(creg(2*s+k2_, tg))}, v{aC[k2_ + 2*(cb>>1)]} offset:{off}", ("c", 2*s+k2_, tg))
                n += 1
    g = -1000
    for n_, (kind, idx) in enumerate([("C",0),("W",0),("W",1),("R",0),("C",1),("W",2),("W",3),("C",2),("W",4),("W",5)]):
        if n_ == pw: S.at(g, "wvm", tag=["pf"])
        if pfl and n_ == pfl: S.at(g, "fn", pf0)
        if n_ == 4 and ST and not fuse: S.at(g, "fn", lambda: stamp(A, 12))
        if kind == "C": dma_c(g, idx, 1); g += 8
        elif kind == "W": dma_w(g, idx); g += 2
        else:
            S.at(g, "vm", f"buffer_load_dwordx4 {vr(RG)}, v{vSt}, s[{sX}:{sX+3}], s61 offen", "rg")
            S.at(g, "vm", f"buffer_load_dwordx4 {vr(RG+4)}, v{vSt}, s[{sX}:{sX+3}], s61 offen offset:1024", "rg")
            S.at(g, "vm", f"buffer_load_dwordx4 {vr(RG+8)}, v{vSt}, s[{sR}:{sR+3}], 0 offen", "rg")
            S.at(g, "vm", f"buffer_load_dwordx4 {vr(RG+12)}, v{vSt}, s[{sGw}:{sGw+3}], 0 offen", "rg")
            g += 1
    def consts_a():
        A(f"v_bfe_u32 v{t1}, v0, 2, 2")
        A(f"v_and_b32 v{t2}, 3, v0")
        A(f"v_and_b32 v{t3}, 1, v{t0}")
        A(f"v_lshl_or_b32 v{t3}, v{t3}, 2, v{t1}")
        A(f"v_lshlrev_b32 v{aW[0]}, 13, v{t0}")
        A(f"v_lshl_or_b32 v{aW[0]}, v{t1}, 8, v{aW[0]}")
        A(f"v_lshl_or_b32 v{aW[0]}, v{t3}, 5, v{aW[0]}")
        A(f"v_lshl_or_b32 v{aW[0]}, v{t2}, 3, v{aW[0]}")
        for d in range(1, 8): A(f"v_xor_b32 v{aW[d]}, {d<<5}, v{aW[0]}")
        A(f"v_lshrrev_b32 v{aV[0]}, 1, v{t0}")
        A(f"v_lshlrev_b32 v{aV[0]}, 13, v{aV[0]}")
        A(f"v_and_b32 v{t3}, 1, v{t0}")
        A(f"v_lshl_or_b32 v{aV[0]}, v{t3}, 10, v{aV[0]}")
        A(f"v_lshl_or_b32 v{aV[0]}, v{t1}, 7, v{aV[0]}")
        A(f"v_lshl_or_b32 v{aV[0]}, v{t3}, 6, v{aV[0]}")
        A(f"v_lshrrev_b32 v{t3}, 1, v{t1}")
        A(f"v_lshl_or_b32 v{aV[0]}, v{t3}, 5, v{aV[0]}")
        A(f"v_lshl_or_b32 v{aV[0]}, v{t2}, 3, v{aV[0]}")
        for d in range(1, 4): A(f"v_xor_b32 v{aV[d]}, {d<<5}, v{aV[0]}")
        A(f"v_and_b32 v{t1}, 15, v0")
        A(f"v_lshrrev_b32 v{t2}, 1, v{t1}")
        A(f"v_xor_b32 v{t2}, v{t2}, v{t0}")
        A(f"v_lshlrev_b32 v{aC[0]}, 7, v{t1}")
        A(f"v_lshl_or_b32 v{aC[0]}, v{t2}, 4, v{aC[0]}")
        A(f"v_add_u32 v{aC[0]}, s{sW8}, v{aC[0]}")
        A(f"v_add_u32 v{aC[0]}, 0x10000, v{aC[0]}")
        A(f"v_xor_b32 v{aC[1]}, 64, v{aC[0]}")
        A(f"v_add_u32 v{aC[2]}, 0x10000, v{aC[0]}")
        A(f"v_add_u32 v{aC[3]}, 0x10000, v{aC[1]}")
        A(f"v_lshrrev_b32 v{t1}, 3, v0")
        A(f"v_and_b32 v{t2}, 7, v0")
        A(f"v_and_b32 v{t3}, 1, v{t0}")
        A(f"v_lshlrev_b32 v{t3}, 1, v{t3}")
        A(f"v_xor_b32 v{t3}, v{t3}, v{t2}")
        A(f"v_lshlrev_b32 v{dV[0]}, 13, v{t1}")
        A(f"v_lshl_or_b32 v{dV[0]}, v{t3}, 4, v{dV[0]}")
        A(f"v_xor_b32 v{dV[1]}, 64, v{dV[0]}")
        A(f"s_lshl_b32 s58, s{sH}, 6\ns_lshl_b32 s63, s45, 1\ns_add_u32 s58, s58, s63\ns_lshl_b32 s58, s58, 13")
        pass
        A(f"s_lshl_b32 s{sXs}, s{sI}, 17")
        A(f"s_lshl_b32 s44, s{sWv}, 15")
        A(f"s_lshl_b32 s{sXl}, s{sI}, 18")
        A(f"s_sub_u32 s{sXl}, {(15<<17) - 3*8192}, s{sXl}")
        A(f"s_add_u32 s{sXs}, s{sXs}, s44")
        A(f"s_mov_b32 s{sWb}, s56")
        A(f"s_lshl_b32 s11, s{sWv}, 12")
        A(f"s_cmp_eq_u32 s{sWv}, 0")
        A(f"s_cselect_b32 s{sPO}, 0, 0x1000")
        A(f"s_cselect_b32 s{sNW0}, 0, -1")
        A(f"s_and_b32 s44, s{sH}, 24")
        A(f"s_lshl_b32 s{sM1}, 1, s44")
        A(f"s_lshr_b32 s63, s{sI}, 1\ns_lshr_b32 s{sM2}, 255, s63\ns_lshl_b32 s{sM2}, s{sM2}, s44")
        A(f"s_and_b32 s44, s{sH}, 7\ns_lshl_b32 s44, s44, 4")
        A(f"v_lshl_add_u32 v{vPa}, v0, 8, s44")
        A(f"s_lshl_b32 s44, s{sM1}, s{sI}\nv_mov_b32 v31, s44")
        A("s_mov_b32 s63, 0x3e0293ee")
    if 'v' in lp: S.at(lpv, "vm", f"buffer_load_dword v36, v32, s[{sV}:{sV+3}], s66 offen", "pf")
    if 'q' in lp:
        for k, x in enumerate([f"s_mov_b32 s{sR}, s12", f"s_and_b32 s{sR+1}, s13, 0xffff", f"s_mov_b32 s{sR+2}, {4096*1024}"]): S.at(lpq - 4 + k, "s", x)
        S.at(lpq, "vm", f"buffer_load_dword v37, v32, s[{sR}:{sR+3}], s66 offen", "pf")
    def l2pull(g, sr):
        for k in range(256 >> l2g):
            S.at(g + 2*k, "vm", f"buffer_load_dword v35, v38, s[{sr}:{sr+3}], s67 offen", "pf")
            S.at(g + 2*k + 1, "s", f"s_add_u32 s67, s67, {64 << l2g}")
        S.at(g + 2*k + 1, "s", f"s_sub_u32 s67, s67, 16384")
    if 'C' in lp: l2pull(-988, sC)
    if 'X' in lp: l2pull(lpx, sX)
    for c, g, sr in zip("KVQ", lpw, (sK, sV, sR)):
        if c in lp: S.at(g, "vm", f"buffer_load_dword v34, v39, s[{sr}:{sr+3}], s19 offen", "pf")
    S.at(-950, "fn", consts_a)
    read_c(-800, 0, 1)
    S.at(-700, "wlg", tag=[("c", 1, 3)])
    dma_c(-600, 3, 1)
    FB = 40
    ACC1, ACC2 = 64, 192
    def acc(p, dt, tg):
        if p == 0: return ACC1 + (dt*4 + tg)*4
        if p == 1: return ACC2 + (dt*4 + tg)*4
        if p == 2: return ACC1 + (dt*4 + tg)*4
        return O(dt, tg)
    win = 0
    hsR, hsC, hsX = fq.get("hsR", 7), fq.get("hsC", 19), fq.get("hsX", 43)
    def checkr():
        A.wait_vm("pollr")
        A(f"v_or_b32 v{vPd}, s{sNW0}, v{vPd}")
        A(f"v_cmp_ne_u32 vcc, -1, v{vPd}")
        A(f"s_cbranch_vccnz L_rstub_{name}")
        A(f"L_rback_{name}:")
    gb = lambda hs: 32*hs - L - 1
    for f in range(384):
        fb = FB + (f % NB)*4
        hs = f >> 3
        b, t = wslot(hs)
        if f < 128:
            p, ks, dt = 0, f >> 3, f & 7
            offs = [(b*32768 + t*2048 + pp*1024, aW[dt]) for pp in range(2)]
        elif f < 256:
            f2 = f - 128
            p, ks, dt = 1 + (f2 >> 6), (f2 >> 2) & 15, f2 & 3
            w2 = b >> 1
            if w2 != win:
                for d in range(4): S.at(4*f - L - 1, "v", f"v_add_u32 v{aV[d]}, 0x10000, v{aV[d]}")
                win = w2
            offs = [((b&1)*32768 + (ks&1)*16384 + t*2048 + pp*512, aV[dt]) for pp in range(2)]
        else:
            p, ks, dt = 3, 16 + ((f - 256) >> 3), f & 7
            offs = [((b-3)*32768 + t*2048 + pp*1024, aW[dt]) for pp in range(2)]
        if f % 8 == 0:
            S.at(gb(hs), "wvm", tag=[("W", hs)])
            if hs == 32 + sig_hs: S.at(gb(hs), "wvm", tag=["st"])
            if hs == hsR: S.at(gb(hs), "wvm", tag=["rgs"])
            if hs == hsC: S.at(gb(hs), "fn", lambda: checkr())
            if hs in (26, 27, hsX): S.at(gb(hs), "wlg", tag=["fx"])
            if hs == 32 + chk_hs: S.at(gb(hs), "fn", lambda: check(0, sM1))
            if not ('b' in dbg and 17 <= hs < 32): S.at(gb(hs), "s", "s_barrier")
            if hs + 6 < 22 or 32 <= hs + 6 < 48: dma_w(gb(hs) + 3, hs + 6, 4)
        for pp in range(2):
            if 'r' in dbg and 128 <= f < 256 and (f & 3): continue
            S.at(4*f - L + pp, "lds", f"ds_read_b64_tr_b16 v[{fb+2*pp}:{fb+2*pp+1}], v{offs[pp][1]} offset:{offs[pp][0]}", ("w", f))
        for tg in range(4):
            d = acc(p, dt, tg); c = vr(d) if (ks & 15) else "0"
            need = [("w", f)] + ([("c", ks, tg)] if p in (0, 3) else [])
            if p in (0, 3): S.mfma(f"{MF} {vr(d)}, {vr(fb)}, {ar(creg(ks,tg))}, {c}", need)
            else: S.mfma(f"{MF} {vr(d)}, {ar(creg(ks,tg))}, {vr(fb)}, {c}", need)
    for s in range(1, 8):
        read_c(64*(s-1) + 6, s, 4)
        if s + 3 < 8:
            S.at(64*(s-1) + 46, "wlg", tag=[("c", 2*s+1, 3)])
            dma_c(64*(s-1) + 46, s + 3, 2)
    g = extra_start + 2
    for hs in range(22, 32):
        blk = wslot(hs)[0]
        g = max(g, 64*(blk + 3) + 2)
        dma_w(g, hs, 4); g += 12
    last_dma = g
    def drain(gap0, step, p, sel=slice(None)):
        g = gap0
        items = []
        if p == 0:
            for ds in range(4):
                for tg in range(4):
                    items.append((acc(0, 2*ds, tg), acc(0, 2*ds+1, tg), WS_K + (tg >> 1)*8192 + ((tg & 1)*4 + ds)*1024))
        else:
            for dt in range(4):
                for u in range(2):
                    items.append((acc(p, dt, 2*u), acc(p, dt, 2*u+1), WS_V + u*8192 + ((p-1)*4 + dt)*1024))
        for (a0, a1, off) in items[sel]:
            if p == 0:
                for k, a in enumerate((a0, a0+1, a0+2, a0+3, a1, a1+1, a1+2, a1+3)):
                    S.at(g - 4 + (k >> 1), "v", f"v_mul_f32 v{a}, s63, v{a}")
            S.at(g, "v", f"v_cvt_pk_bf16_f32 v{a0}, v{a0}, v{a0+1}")
            S.at(g, "v", f"v_cvt_pk_bf16_f32 v{a0+1}, v{a0+2}, v{a0+3}")
            S.at(g+1, "v", f"v_cvt_pk_bf16_f32 v{a0+2}, v{a1}, v{a1+1}")
            S.at(g+1, "v", f"v_cvt_pk_bf16_f32 v{a0+3}, v{a1+2}, v{a1+3}")
            S.at(g+2, "s", f"s_add_u32 s62, s58, {off}")
            if not ('s' in dbg and p < 2): S.at(g+2, "vm", f"buffer_store_dwordx4 {vr(a0)}, v{vSt}, s[{sWS}:{sWS+3}], s62 offen {kv_flags}", "st")
            g += step
        return g
    if dr is None:
        e = drain(max(store_start, last_dma) + 2, store_step, 0)
        assert e <= 768 + 8, e
        drain(768 + 10, 12, 1)
        e2 = drain(Q0 + 2, 4, 2)
    else:
        g0 = max(dr[0], last_dma + 2)
        e = drain(g0, dr[1], 0, slice(0, dr[2]))
        assert g0 + 8*dr[1] <= 768 + 4
        e = max(e, 778); n2 = 16 - dr[2]
        stp = (Q0 - 6 - e) // (8 + n2)
        e = drain(e, stp, 0, slice(dr[2], 16))
        drain(e, stp, 1)
        e2 = drain(Q0 + 2, dr[3], 2)
    def lwait(): A("s_waitcnt lgkmcnt(0)"); A.lg = []
    weave0 = weave
    def ffn(e2):
        SL = fq.get('sl', 14)
        def weave(g, lines, per=2): return weave0(g, lines, per, 'v~')
        S.at(0, "wvm~", tag=["rg"])
        g = weave(0, ["s_lshl_b32 s67, s60, 1", "s_sub_u32 s67, 2047, s67"] + ffq.rg_ops(RG, t0, 65, 67), fq.get("per", 1)) + SL
        weave(g - 3, ["s_lshl_b32 s62, s60, 3", f"s_add_u32 s62, s62, {WS_R}"])
        S.at(g, "vm", f"buffer_store_dword v{RG+24}, v{RG+25}, s[{sWS}:{sWS+3}], s62 offen sc1", "rgs")
        if fuse:
            weave(g - 2, [f"s_lshl_b32 s49, s{sH}, 10", f"s_add_u32 s49, s49, {kf.WS_FL}", f"v_mov_b32 v{vPd}, 0"])
            S.at(g + 1, "vm", f"buffer_store_dword v{vPd}, v{vSt}, s[{sWS}:{sWS+3}], s49 offen sc1", "rgs")
            assert g < 440
        assert g + 12 < gb(hsR)
        S.at(gb(hsR) + 1, "vm", f"buffer_atomic_or v31, v{vPa}, s[{sDbg}:{sDbg+3}], s{sPO} offen offset:4 sc1", "sig")
        g = fq.get("gf", 500)
        S.at(g - 70, "s", "s_load_dwordx4 s[28:31], s[0:1], 64")
        S.at(g - 23, "fn", lwait)
        weave(g - 22, [f"s_min_u32 s51, s{sH}, 27", f"s_mul_i32 s49, s45, {16*3584}", "s_lshl_b32 s50, s51, 7", "v_lshrrev_b32 v23, 3, v0", "v_and_b32 v24, 7, v0", "s_add_u32 s49, s49, s50",
                       f"v_mul_u32_u24 v23, {2*3584}, v23", "v_lshl_add_u32 v23, v24, 4, v23", "v_add_u32 v23, s49, v23"], 1)
        for k in range(4):
            S.at(g, "s", f"s_add_u32 m0, s{sW8}, {65536 + 4096 + k*1024 - (k&1)*3584}")
            S.at(g, "vm", f"global_load_lds_dwordx4 v23, s[{28+(k&2)}:{29+(k&2)}] offset:{(k&1)*3584}", "fw"); g += fq.get("fs", 6)
        assert g < fq.get("gt", 750)
        weave(836, [f"s_add_u32 s62, s{sW8}, 65536", f"v_add_u32 v38, s62, v{vSt}"])
        S.at(850, "wvm", tag=["fw"])
        for k in range(4): S.at(850 + k, "lds", f"ds_read_b128 {ar(64+4*k)}, v38 offset:{4096 + k*1024}", "fz")
        S.at(860, "wlg", tag=["fz"])
        weave(Q0 + 16, [f"v_accvgpr_read_b32 v{64+k}, a{64+k}" for k in range(16)], 1)
        g = fq.get("gq", 480)
        weave(g - 4, ["v_and_b32 v33, 7, v0", "v_lshlrev_b32 v33, 4, v33"])
        S.at(g, "vm", f"buffer_load_dword v{vPd}, v33, s[{sDbg}:{sDbg+3}], s{sPO} offen offset:4 sc0 sc1", "pollr")
        g = gb(hsC) + 1
        KEY, m1, m2, tt = 32, 128+32, 129+32, 130+32
        weave(g - 4, [f"s_lshl_b32 s48, s{sWv}, 11", f"s_add_u32 s48, s48, {WS_R}"])
        for j in range(2): S.at(g + j, "vm", f"buffer_load_dwordx4 {vr(KEY+4*j)}, v{vSt}, s[{sWS}:{sWS+3}], s48 offen offset:{j*1024} sc0 sc1", "key")
        g = fq.get("gt", 750)
        m1, m2, tt = 24, 25, 23
        S.at(g, "wvm~", tag=["key"])
        g = weave(g, ffq.top_a(KEY, m1, m2, tt) + [f"s_lshl_b32 s48, s{sWv}, 9", f"v_lshl_add_u32 v{tt}, v0, 3, s48"], 1) + SL
        assert g < gb(26) - 2, g
        S.at(g, "lds", f"ds_write_b64 v{tt}, v[{m1}:{m2}]", "fx")
        weave(g + 1, [f"v_and_b32 v{tt}, 15, v0", f"v_lshlrev_b32 v{tt}, 7, v{tt}"])
        S.at(gb(26) + 1, "lds", f"ds_read_b64 v[34:35], v{tt}", "fx")
        g = gb(27) + 1
        XS = 32
        o = ffq.merge4(34, 35, tt) + ["v_lshrrev_b32 v36, 3, v0", "s_lshl_b32 s50, s45, 5", "v_lshlrev_b32 v36, 2, v36", "v_readfirstlane_b32 s48, v34", "v_readfirstlane_b32 s49, v35"]
        for j in range(2): o += [f"s_andn2_b32 s{48+j}, 0x7ff, s{48+j}", f"s_lshl_b32 s{48+j}, s{48+j}, 10", f"s_add_u32 s{48+j}, s{48+j}, s50"]
        S.at(g, "wlg~", tag=["fx"])
        g = weave(g, o, 1) + SL
        for j in range(2): S.at(g + j, "vm", f"buffer_load_dword v{XS+j}, v36, s[{sX}:{sX+3}], s{48+j} offen", "xs")
        g = weave(g + 2, ["s_cmp_eq_u32 s60, 0", f"s_cselect_b32 s48, {ffq.WS_TOP}, {ffq.BIG}", f"v_mov_b32 v{tt}, 0"])
        S.at(g, "vm", f"buffer_store_dwordx2 v[34:35], v{tt}, s[{sWS}:{sWS+3}], s48 offen sc1", "st")
        G0, U0, WD, PM, T, SM = 64, 72, 80, 88, 92, 96
        assert g < Q0
        ge = e2 + 1
        g = Q0 + fq.get("gd", 64)
        S.at(g, "wvm~", tag=["xs"])
        g = weave(g, ffq.dot_ops(G0, U0, XS, PM, SM, (12, 13)) + [f"s_lshl_b32 s12, s{sWv}, 10", "v_and_b32 v37, 7, v0", "v_lshrrev_b32 v36, 3, v0", f"s_add_u32 s12, s12, {7*16384}", "v_lshl_or_b32 v37, v37, 3, v36",
                  f"s_lshl_b32 s13, s{sWv}, 8", "v_lshl_add_u32 v37, v37, 4, s12", f"s_add_u32 s13, s13, {7*16384}", "v_lshl_add_u32 v36, v0, 2, s13"], fq.get("per2", 0.6)) + SL
        g = max(g, gb(42) + 2)
        assert g < gb(hsX) - 4, g
        for k in range(2): S.at(g + k, "lds", f"ds_write_b64 v37, v[{SM+16*k}:{SM+16*k+1}] offset:{8*k}", "fx")
        g = gb(hsX) + 1
        for w in range(4): S.at(g, "lds", f"ds_read_b32 v{SM+w}, v36 offset:{w*1024}", "fy")
        g = weave(g + 1, ["v_lshrrev_b32 v38, 5, v0", "v_and_b32 v37, 31, v0", "v_lshlrev_b32 v38, 10, v38", f"s_lshl_b32 s10, s{sH}, 13", "v_lshl_add_u32 v37, v37, 2, v38",
                          f"s_lshl_b32 s12, s{sWv}, 11", "s_add_u32 s10, s10, s12", f"s_lshl_b32 s12, s{sI}, 7", "s_add_u32 s10, s10, s12", f"s_add_u32 s10, s10, {ffq.WS_PRE}"], 2)
        S.at(g, "wlg~", tag=["fy"])
        g = weave(g, [f"v_add_f32 v{SM}, v{SM}, v{SM+1}", f"v_add_f32 v{SM+2}, v{SM+2}, v{SM+3}", f"v_add_f32 v{SM}, v{SM}, v{SM+2}"], 1) + SL
        S.at(g, "vm", f"buffer_store_dword v{SM}, v37, s[{sWS}:{sWS+3}], s10 offen sc1", "ya")
        print("ffn ends", g + 4 - Q0)
        return ge
    weave(520, [f"s_mov_b32 s{sW}, s12", f"s_and_b32 s{sW+1}, s13, 0xffff", f"s_mov_b32 s{sW+2}, {4096*1024}"] +
          [f"v_add_u32 v{aW[d]}, 0x18000, v{aW[d]}" for d in range(8)] +
          [f"v_subrev_u32 v{aC[d]}, 0x10000, v{aC[d]}" for d in range(4)], 1)
    if 'Q' not in lp and not hmap: g = weave(last_dma + 20, [f"v_lshrrev_b32 v{t1}, 2, v0", f"v_and_b32 v{t2}, 3, v0", f"v_lshlrev_b32 v{t1}, 13, v{t1}",
                         f"v_lshl_or_b32 v{t1}, v{t2}, 6, v{t1}", "s_lshl_b32 s63, s45, 17", "s_add_u32 s63, s63, s47"], 1)
    if 'Q' not in lp and not hmap: S.at(g + 1, "vm", f"buffer_load_dword v30, v{t1}, s[{sW}:{sW+3}], s63 offen", "pf")
    dma_c(gb(23) + 2, 8, 3)
    dma_c(861, 9, 2)
    dma_c(880, 10, 3)
    for s in range(8, 16):
        b = Q0 + 64*(s-9)
        read_c(b + 6, s, 4)
        S.at(b + 46, "wlg", tag=[("c", 2*s+1, 3)])
        if s + 3 < 16: dma_c(b + 46, s + 3, 2)
    cq = []
    cq += [f"v_and_b32 v{t1}, 15, v0", f"v_lshlrev_b32 v{t2}, 2, v{t0}", f"v_sub_u32 v{t2}, v{t1}, v{t2}"]
    cq += [f"v_cmp_le_i32 s[{sTri[r]}:{sTri[r]+1}], {r}, v{t2}" for r in range(4)]
    cq += [f"s_lshr_b32 s{sT}, s{sWv}, 1\ns_lshl_b32 s{sT}, s{sT}, 24",
        f"s_lshl_b32 s{sG}, s{sH}, 19\ns_add_u32 s{sG}, s{sG}, s{sT}",
        f"s_lshl_b32 s{sT}, s{sI}, 15\ns_sub_u32 s{sT}, {64*8192}, s{sT}",
        f"s_mov_b32 s{sKV}, s{sWS}\ns_mov_b32 s{sKV+1}, s{sWS+1}\ns_add_u32 s{sKV+2}, s{sG}, s{sT}\ns_mov_b32 s{sKV+3}, 0x20000",
        f"s_and_b32 s{sT}, s{sWv}, 1\ns_lshl_b32 s{sT}, s{sT}, 12\ns_add_u32 s{sG}, s{sG}, s{sT}",
        f"s_lshl_b32 s{sTT}, s{sI}, 2\ns_add_u32 s{sRbA}, s{sTT}, s{sWv}",
        f"s_sub_u32 s{sRbB}, 60, s{sTT}\ns_xor_b32 s{sRbP}, s{sWv}, 1\ns_add_u32 s{sRbP}, s{sRbP}, s{sRbB}\ns_add_u32 s{sRbB}, s{sRbB}, s{sWv}",
        f"s_add_u32 s{sTT}, s{sTT}, 4\ns_mov_b32 s{sRbS}, s{sRbA}",
        f"s_and_b32 s{sT}, s{sWv}, 2\ns_add_u32 s{sSw}, s{sTT}, s{sT}\ns_sub_u32 s{sSw}, s{sSw}, 2",
        f"s_mov_b32 s{sEv}, 63\ns_mov_b32 s{sEv+1}, 0",
        f"s_lshl_b64 s[{sEv}:{sEv+1}], s[{sEv}:{sEv+1}], s{sTT}",
        f"s_lshr_b64 s[{sEv}:{sEv+1}], s[{sEv}:{sEv+1}], 5",
        f"s_or_b32 s{sEv}, s{sEv}, {0x80000000 + (sum(1 << e for e in oo.get('e', (9, 15))) if fuse else 0)}\ns_or_b32 s{sEv+1}, s{sEv+1}, 1",
        (f"s_mov_b64 s[{sEv}:{sEv+1}], 0\n" if 'h' in dbg else "") + f"s_mov_b32 s{sN}, 0\ns_mov_b32 s{sA}, 16384",
        f"s_and_b32 s{sT}, s{sWv}, 1\ns_add_u32 s{sT}, s{sT}, 2\ns_sub_u32 s{sT}, s{sT}, s{sTT}\ns_lshl_b32 s{sB}, s{sT}, 14",
        f"s_lshl_b32 s{sT}, s{sH}, 12\ns_add_u32 s{sT}, s{sT}, {WS_CTX}",
        f"s_lshl_b32 s{sCtxA}, s{sRbA}, 18\ns_add_u32 s{sCtxA}, s{sCtxA}, s{sT}",
        f"s_lshl_b32 s{sCtxB}, s{sRbB}, 18\ns_add_u32 s{sCtxB}, s{sCtxB}, s{sT}",
        f"s_mov_b64 s[{sBad}:{sBad+1}], 0\ns_mov_b64 s[{sBad+2}:{sBad+3}], 0"]
    ge = weave(ffn(e2) + 2, cq, 1)
    assert ge < gb(32 + sig_hs) - 4, ge
    S.at(gb(32 + sig_hs) + 1, "vm", f"buffer_atomic_or v31, v{vPa}, s[{sDbg}:{sDbg+3}], s{sPO} offen offset:8 sc1", "sig")
    POLL = f"buffer_load_dword v{vPd}, v{vPa}, s[{sDbg}:{sDbg+3}], s{sPO} offen offset:8 sc0 sc1"
    def check(k, sm):
        A.wait_vm("poll")
        A(f"v_readfirstlane_b32 s{sT}, v{vPd}")
        A(f"s_mov_b32 s{sCnt}, s{sm}")
        A(f"s_or_b32 s{sT}, s{sT}, s{sNW0}")
        A(f"s_and_b32 s{sT}, s{sT}, s{sm}")
        A(f"s_cmp_lg_u32 s{sT}, s{sm}")
        A(f"s_cbranch_scc1 L_pstub{k}_{name}")
        A(f"L_pback{k}_{name}:")
    S.at(Q0 + poll1, "vm", POLL, "poll")
    def dma_kv(gap, u, spread=2):
        for r in (sTmp, sCb): claim(r, gap, gap + 1 + 3*spread)
        S.at(gap, "s", f"s_add_u32 m0, s11, {u*16384}")
        S.at(gap, "s", f"s_add_u32 s{sTmp}, s{sG}, {u*8192}")
        for j in range(4):
            S.at(gap + 1 + j*spread, "vm", f"buffer_load_dwordx4 v{vSt}, s[{sKV}:{sKV+3}], s{sTmp} offen offset:{j*1024} lds", ("KV", u))
    g = gb(32 + chk_hs) + 2
    free = {0: gb(42), 1: gb(42), 2: gb(44), 3: gb(44), 4: gb(46), 5: gb(46), 6: gb(46)}
    for u in range(7):
        g = max(g, free[u] + 2)
        dma_kv(g, u); g += 10
    S.at(g, "vm", POLL, "poll")
    assert g < Q0 + 505
    for ds in range(4):
        g = Q0 + 480 + 8*ds + 8 + 3
        for tg in range(4):
            a0, a1 = O(2*ds, tg), O(2*ds+1, tg)
            S.at(g, "v", f"v_cvt_pk_bf16_f32 v{a0}, v{a0}, v{a0+1}")
            S.at(g, "v", f"v_cvt_pk_bf16_f32 v{a0+1}, v{a0+2}, v{a0+3}")
            S.at(g, "v", f"v_cvt_pk_bf16_f32 v{a0+2}, v{a1}, v{a1+1}")
            S.at(g, "v", f"v_cvt_pk_bf16_f32 v{a0+3}, v{a1+2}, v{a1+3}")
            for r in range(4): S.at(g+1, "v", f"v_accvgpr_write_b32 a{Q(tg,ds)+r}, v{a0+r}")
            g += 2
    S.at(Q0 + 512, "s", "s_nop 4")
    if ST and not oo.get("st"):
        S.at(-901, "fn", lambda: stamp(A, 1))
        S.at(0, "fn", lambda: stamp(A, 2))
        S.at(512, "fn", lambda: stamp(A, 3))
        S.at(768, "fn", lambda: stamp(A, 4))
        S.at(Q0, "fn", lambda: stamp(A, 5))
        S.at(gb(32 + sig_hs) + 2, "fn", lambda: stamp(A, 6))
        S.at(gb(32 + chk_hs) + 1, "fn", lambda: stamp(A, 7))
        S.at(Q0 + 511, "fn", lambda: stamp(A, 8))
    S.at(Q0 + 507, "wlg", tag=[("w", 383)])
    S.at(Q0 + 507, "wvm", tag=[("KV", 1)])
    S.at(Q0 + 507, "s", "s_barrier")
    S.at(Q0 + 508, "v", f"v_mov_b32 v{vA[0]}, v{vSt}")
    S.at(Q0 + 508, "v", f"v_add_u32 v{vA[1]}, 0x4000, v{vSt}")
    for f in range(8): S.at(Q0 + 509 + (f >> 2), "lds", f"ds_read_b128 {ar(Kf(f))}, v{vSt} offset:{f*1024}", ("k", f))
    S.emit(verbose=fq.get('v'))
    S = S_
    A(f"s_add_u32 s{sT}, s{sW8}, 0x20000")
    A(f"v_add_u32 v{vPark}, s{sT}, v{vSt}")
    for q in range(2):
        for ds in range(4):
            A.lds(f"ds_write_b128 v{vPark}, {vr(O(2*ds, 2+q))} offset:{(q*4+ds)*1024}", "pk")
            if len(A.lg) >= 14: A.wait_lg([("k", 7)])
    A(f"v_xor_b32 v{vPark}, 0x2000, v{vPark}")
    A(f"v_mov_b32 v{vNEG}, {NEGV}")
    A(f"v_mov_b32 v{vT[0]}, 0x3f803f80")
    for r in range(4): A(f"v_accvgpr_write_b32 a{ONES+r}, v{vT[0]}")
    A("s_waitcnt lgkmcnt(0)"); A.lg = []
    A("s_load_dwordx2 s[8:9], s[0:1], 40\ns_load_dwordx2 s[12:13], s[0:1], 80")
    z = [f"v_mov_b64 v[{128+2*k}:{129+2*k}], 0" for k in range(64)] + [f"v_accvgpr_write_b32 a{Lr(0)+k}, 0" for k in range(16)]
    for kt in range(2):
        for ds in range(4):
            for qg in range(4):
                cc = "0" if ds == 0 else vr(S(kt, qg))
                A(f"{MF} {vr(S(kt,qg))}, {ar(Kf(kt*4+ds))}, {ar(Q(qg,ds))}, {cc}")
                for _ in range(2): A(z.pop(0))
    for f in range(8): A(f"ds_read_b128 {ar(Kf(f))}, v{vA[1]} offset:{f*1024}")
    while z: A(z.pop(0))
    A(f"s_cmp_lg_u32 s{sRbA}, 0\ns_cbranch_scc1 L_nd0_{name}")
    for r in range(4):
        A(f"v_cndmask_b32 v{S(0,0)+r}, v{vNEG}, v{S(0,0)+r}, s[{sTri[r]}:{sTri[r]+1}]")
        A(f"v_mov_b32 v{S(1,0)+r}, v{vNEG}")
        A(f"v_cndmask_b32 v{S(1,1)+r}, v{vNEG}, v{S(1,1)+r}, s[{sTri[r]}:{sTri[r]+1}]")
    A(f"L_nd0_{name}:")
    for qg in range(4):
        a, b = S(0, qg), S(1, qg); d = vNM[qg]
        A(f"v_max3_f32 v{d}, v{a}, v{a+1}, v{a+2}")
        A(f"v_max3_f32 v{d}, v{d}, v{a+3}, v{b}")
        A(f"v_max3_f32 v{d}, v{d}, v{b+1}, v{b+2}")
        A(f"v_max_f32 v{d}, v{d}, v{b+3}")
    for sw in ("v_permlane16_swap_b32", "v_permlane32_swap_b32"):
        for qg in range(4): A(f"v_mov_b32 v{vT[qg]}, v{vNM[qg]}")
        for qg in range(4): A(f"{sw} v{vNM[qg]}, v{vT[qg]}")
        for qg in range(4): A(f"v_max_f32 v{vNM[qg]}, v{vNM[qg]}, v{vT[qg]}")
    for qg in range(4): A(f"v_xor_b32 v{vNM[qg]}, 0x80000000, v{vNM[qg]}")
    A(f"s_lshl_b32 s{sT}, s{sWv}, 9\ns_add_u32 s{sT}, s{sT}, {7*16384}")
    A(f"v_lshlrev_b32 v{vT[0]}, 3, v0")
    A(f"v_add_u32 v{vT[0]}, s{sT}, v{vT[0]}")
    A(f"ds_write_b64 v{vT[0]}, v[{vNM[2]}:{vNM[3]}]")
    A(f"v_xor_b32 v{vT[0]}, 512, v{vT[0]}")
    for kt in range(2):
        for qg in range(4):
            for r in range(4): A(f"v_add_f32 v{S(kt,qg)+r}, v{S(kt,qg)+r}, v{vNM[qg]}")
    A("s_waitcnt lgkmcnt(0)\ns_barrier")
    A(f"ds_read_b64 v[{vNMP[0]}:{vNMP[1]}], v{vT[0]}")
    for kt in range(2):
        for qg in range(4):
            for r in range(4): A(f"v_mov_b32 v{C(kt,qg)+r}, v{vNM[qg]}")
    check(1, sM2)
    A("s_waitcnt lgkmcnt(0)\ns_barrier")
    A(f"buffer_atomic_or v31, v{vPa}, s[{sDbg}:{sDbg+3}], s{sPO} offen offset:12 sc1")
    A(f"s_add_u32 m0, s11, {7*16384}")
    A(f"s_add_u32 s{sG}, s{sG}, {7*8192}")
    for j in range(4): A(f"buffer_load_dwordx4 v{vSt}, s[{sKV}:{sKV+3}], s{sG} offen offset:{j*1024} lds")
    if fuse: kf.pre(A)
    else: pf_k3(A)
    pf_wd(A)
    opt = dict(opt); opt['t32'] = wo_st(fuse); opt['t32w'] = 1; opt['t33'] = ffn2()
    tl = [(0, 0), (0, 1), (0, 2), (0, 3), (1, 0), (1, 1)]
    for (kt, qg) in tl:
        for r in range(4): A(f"v_exp_f32 v{S(kt,qg)+r}, v{S(kt,qg)+r}")
    for (kt, qg) in tl:
        for r in (0, 2): A(f"v_cvt_pk_bf16_f32 v{P(0,qg)+2*kt+(r>>1)}, v{S(kt,qg)+r}, v{S(kt,qg)+r+1}")
    if ST and not oo.get('st'): stamp(A, 9)
    A(f".p2align 6\nL_l1_{name}:")
    hook_site(A, 0, name); interval(A, 0, "L1", name, opt)
    hook_site(A, 1, name); interval(A, 1, "L1", name, opt)
    A(f"s_cmp_lt_u32 s{sN}, s{sSw}\ns_cbranch_scc1 L_l1_{name}")
    A(f"s_cmp_ge_u32 s{sN}, 32\ns_cbranch_scc1 L_tail_{name}")
    A(f".p2align 6\nL_l2_{name}:")
    hook_site(A, 2, name); interval(A, 0, "L2", name, opt)
    hook_site(A, 3, name); interval(A, 1, "L2", name, opt)
    A(f"s_cmp_lt_u32 s{sN}, 32\ns_cbranch_scc1 L_l2_{name}")
    A(f"L_tail_{name}:")
    if fuse: kf.tail_head(A, name, oo)
    else:
        A("s_waitcnt vmcnt(4)")
        A(f"v_readfirstlane_b32 s{sT}, v{vPd}")
        A(f"s_mul_i32 s{sCnt}, s{sM1}, 255")
        A(f"s_and_b32 s{sT}, s{sT}, s{sCnt}")
        A(f"s_cmp_lg_u32 s{sT}, s{sCnt}")
        A(f"s_cbranch_scc1 L_pstub2_{name}")
    A(f"L_pback2_{name}:")
    hook_site(A, 4, name)
    A.vm = []; A.lg = []
    A.vmem(f"buffer_load_dwordx4 v[24:27], v{vSt}, s[{sWS}:{sWS+3}], s16 offen sc0 sc1", "pre")
    if fuse:
        n0, n1 = oo.get("nw", (6, 12))
        A(f"s_getpc_b64 s[64:65]\nL_pc2_{name}:\ns_lshl_b32 s{sT}, s{sWv}, 12\nv_lshl_add_u32 v29, v0, 6, s{sT}\nv_min_u32 v29, L_last_{name}-L_pc2_{name}-2052, v29")
        A.vmem("global_load_dword v29, v29, s[64:65] offset:2048", "pf")
        for kk in range(n0): kf.emit(A, kf.w_ops(kk))
        opt['t32w'] = len(A.vm)
        opt['t33'] = ffn2(A, [x for kk in range(n0, n1) for x in kf.w_ops(kk)])
    interval(A, 0, "T32", name, opt)
    A.vm += ["wd"]*8
    interval(A, 1, "T33", name, opt)
    if ST: stamp(A, 10)
    if fuse: kf.gen(A, name, st_flags, ST, stampk, oo, n1)
    else: old_tail(A, name, st_flags, ST, stampk)
    for k in range(5):
        A(f"L_stub{k}_{name}:")
        if k & 1 and not fuse:
            A(f"s_cmp_eq_u32 s{sN}, 31\ns_cselect_b32 s{sT}, 0, 0x1000")
            A(f"buffer_load_dword v{vPd}, v{vPa}, s[{sDbg}:{sDbg+3}], s{sT} offen offset:12 sc0 sc1")
        A(f"s_call_b64 s[{sRet}:{sRet+1}], L_{'ev' if k & 1 and fuse else 'hook'}_{name}\ns_branch L_back{k}_{name}")
    if fuse: kf.events(A, name, oo)
    for k in range(3):
        A(f"L_pstub{k}_{name}:\ns_mov_b32 s{sRot}, {12 if k == 2 else 8}\ns_call_b64 s[{sRet}:{sRet+1}], L_spin_{name}\ns_branch L_pback{k}_{name}")
    A(f"L_rstub_{name}:")
    A("s_mov_b32 s49, 0")
    A(f"L_rspin_{name}:")
    A("s_sleep 4")
    A(f"buffer_load_dword v{vPd}, v33, s[{sDbg}:{sDbg+3}], 0 offen offset:4 sc0 sc1")
    A("s_waitcnt vmcnt(0)")
    A(f"v_cmp_ne_u32 vcc, -1, v{vPd}")
    A("s_add_u32 s49, s49, 1")
    A(f"s_cbranch_vccz L_rback_{name}")
    A(f"s_cmp_lt_u32 s49, 0x20000\ns_cbranch_scc1 L_rspin_{name}")
    A(f"s_branch L_rback_{name}")
    A(f"L_spin_{name}:")
    A(f"s_mov_b32 s{sTmp}, 0")
    A(f"L_spinl_{name}:")
    A("s_sleep 4")
    A(f"buffer_load_dword v{vPd}, v{vPa}, s[{sDbg}:{sDbg+3}], s{sRot} offen sc0 sc1")
    A("s_waitcnt vmcnt(0)")
    A(f"v_readfirstlane_b32 s{sT}, v{vPd}")
    A(f"s_add_u32 s{sTmp}, s{sTmp}, 1")
    A(f"s_and_b32 s{sT}, s{sT}, s{sCnt}")
    A(f"s_cmp_eq_u32 s{sT}, s{sCnt}\ns_cbranch_scc1 L_spinx_{name}")
    A(f"s_cmp_lt_u32 s{sTmp}, 0x20000\ns_cbranch_scc1 L_spinl_{name}")
    A(f"L_spinx_{name}:")
    A(f"s_setpc_b64 s[{sRet}:{sRet+1}]")
    gen_hook(A, name, st_flags)
    gen_slow(A, name, st_flags)
    A(f'L_last_{name}:')
    return A.text() + kdesc(name, 512, 256)

def old_tail(A, name, st_flags, ST, stampk):
    A("s_barrier")
    A(f"s_lshl_b32 s{sT}, s{sWv}, 14")
    A(f"v_add_u32 v{vT[0]}, s{sT}, v{vSt}")
    A(f"s_lshl_b32 s{sT}, s{sWv}, 9\ns_add_u32 s{sT}, s{sT}, 65536")
    A(f"v_lshlrev_b32 v{vT[1]}, 2, v0")
    A(f"v_add_u32 v{vT[1]}, s{sT}, v{vT[1]}")
    for dt in range(8):
        for q in range(2):
            A(f"ds_write_b128 v{vT[0]}, {vr(O(dt,q))} offset:{(dt*2+q)*1024}")
        if dt == 5: A("s_waitcnt lgkmcnt(8)")
    for q in range(2): A(f"ds_write_b32 v{vT[1]}, a{Lr(q)} offset:{q*256}")
    A(f"v_xor_b32 v{vT[0]}, 0x4000, v{vT[0]}")
    A(f"v_xor_b32 v{vT[1]}, 512, v{vT[1]}")
    A(f"v_accvgpr_read_b32 v{vNM[0]}, a{Lr(2)}")
    A(f"v_accvgpr_read_b32 v{vNM[2]}, a{Lr(3)}")
    A(f"v_mov_b32 v{vT[4]}, 0x5d800000")
    A("s_waitcnt lgkmcnt(0)\ns_barrier")
    for q in range(2): A.lds(f"ds_read_b32 v{vNMP[q]}, v{vT[1]} offset:{q*256}", "l")
    def rd(k):
        q, dt = k >> 3, k & 7
        A.lds(f"ds_read_b128 {vr(32 + k*4)}, v{vT[0]} offset:{(dt*2+q)*1024}", ("o", k))
    for k in range(12): rd(k)
    A.wait_lg("l")
    A(f"v_add_f32 v{vNM[0]}, v{vNM[0]}, v{vNMP[0]}")
    A(f"v_add_f32 v{vNM[2]}, v{vNM[2]}, v{vNMP[1]}")
    for k in range(16):
        q, dt = k >> 3, k & 7
        A.wait_lg([("o", k)])
        if k + 12 < 16: rd(k + 12)
        o = O(dt, 2+q)
        A(f"v_pk_add_f32 v[{o}:{o+1}], v[{o}:{o+1}], v[{32+k*4}:{33+k*4}]")
        A(f"v_pk_add_f32 v[{o+2}:{o+3}], v[{o+2}:{o+3}], v[{34+k*4}:{35+k*4}]")
    flush(A, 2, [vNM[0], vNM[2]], sCtxB, sBad+2, st_flags)
    A(f"s_or_b64 s[12:13], s[{sBad}:{sBad+1}], s[{sBad+2}:{sBad+3}]")
    A(f"s_cbranch_scc1 L_slow_{name}")
    A(f"L_fin_{name}:")
    if ST: stamp_end(A, stampk, sWS, sWv)
    A(f"L_end_{name}:\ns_endpgm")

WOA = 160
def pf_k3(A):
    A(f"s_lshl_b32 s{sT}, s2, 2\ns_add_u32 s{sT}, s{sT}, s{sWv}\ns_lshl_b32 s{sT}, s{sT}, 12")
    A("v_and_b32 v29, 15, v0\nv_lshlrev_b32 v29, 4, v29\nv_lshl_or_b32 v29, v22, 10, v29")
    A(f"s_mov_b32 s10, {4096*1024}\ns_mov_b32 s11, 0x20000")
    A("s_and_b32 s9, s9, 0xffff")
    for j in range(4): A(f"buffer_load_dwordx4 {ar(WOA+4*j)}, v29, s[8:11], s{sT} offen offset:{j*256}")
    A("v_bfe_u32 v30, v0, 3, 1\nv_and_b32 v31, 7, v0\nv_lshlrev_b32 v30, 19, v30\nv_lshl_or_b32 v30, v22, 7, v30\nv_lshl_or_b32 v30, v31, 4, v30")
    A(f"s_lshr_b32 s{sT}, s{sT}, 3")
    for j in range(4): A(f"s_add_u32 s{8+j}, s{sT}, {WS_WO + (j << 20)}")
def pf_wd(A):
    A(f"s_min_u32 s{sT}, s{sH}, 27\ns_lshl_b32 s{sT}, s{sT}, 3\ns_add_u32 s{sT}, s{sT}, s{sI}\ns_lshl_b32 s{sTmp}, s{sT}, 13\ns_add_u32 s{sTmp}, s{sTmp}, 4096")
    A(f"v_lshl_add_u32 v23, v0, 2, s{sTmp}\ns_lshl_b32 s{sTmp}, s{sWv}, 8\nv_add_u32 v23, s{sTmp}, v23")
    A(f"s_mul_i32 s{sTmp}, s{sWv}, {2048-256}\nv_mul_u32_u24 v20, 28, v0\nv_add3_u32 v20, v20, v23, s{sTmp}")
    A("global_load_dword v20, v20, s[12:13] offset:-4096")
    A("v_lshrrev_b32 v19, 5, v0\nv_and_b32 v18, 31, v0\nv_mul_u32_u24 v19, 57344, v19\nv_lshl_add_u32 v18, v18, 3, v19")
    A(f"v_add_u32 v19, {8*57344}, v18")
    A(f"s_mul_i32 s14, s{sWv}, {2*57344}\ns_lshl_b32 s{sT}, s{sT}, 8\ns_add_u32 s14, s14, s{sT}\ns_add_u32 s14, s14, {WS_Y}")
    A(f"s_lshl_b32 s16, s{sH}, 3\ns_add_u32 s16, s16, s{sI}\ns_lshl_b32 s16, s16, 10\ns_add_u32 s16, s16, {ffq.WS_PRE}")
    A(f"s_cmp_lt_u32 s{sH}, 28\ns_cselect_b32 s14, s14, {ffq.BIG}")
WDA = 176
def ffn2(A=None, extra=()):
    o = ["s_waitcnt vmcnt(12)" if not A else (lambda: (A.wait_vm("pre"), kf.early33(A)))] + ffq.act2_ops(24, 96, 104, 108, (8, 9, 10, 11))
    o.insert(next(k for k, x in enumerate(o) if "readlane" in str(x)), "s_waitcnt vmcnt(4)" if not A else (lambda: A.wait_vm("wd")))
    st = [f"buffer_store_dwordx2 v[{108+2*k}:{109+2*k}], v{18+k}, s[{sWS}:{sWS+3}], s14 offen sc1" for k in range(2)]
    o += st if not A else [(lambda x=x: kf.emit(A, [(x, "ys")])) for x in st]
    ex = {}
    for n, x in enumerate(extra): ex.setdefault(n * 36 // len(extra), []).append(lambda x=x: kf.emit(A, [x]))
    for n, x in enumerate(o): ex.setdefault(min(n * 36 // len(o), 35), []).append(x)
    return ex
def wo_st(fuse): return [(f"global_load_dword v{96+f}, v23, s[12:13] offset:{f*1024-4096}", 1) for f in range(8)] + \
    [(f"buffer_store_dwordx4 {ar(WOA+4*j)}, v30, s[{sWS}:{sWS+3}], s{8+j} offen sc1", 1) for j in range(0 if fuse else 4)]

if __name__ == "__main__":
    import sys, json, hazard, k4 as k3
    kw = json.loads(sys.argv[1])
    st = not kw.pop("nostamp", 0)
    k3kw = kw.pop("k3", {})
    if kw.get("fuse", 1):
        hdr = "; @launch grid=(256,1,1) block=(256,1,1) lds=163840\n"
        body = gen("KN", stampk=0 if st else None, **kw)
        full = "gated_mix__compressed_kv_cla__moe_arch_mod__prompt_kernel"
        import re
        body = re.sub(r"(?<![A-Za-z0-9_])KN\b", full, body)
    else:
        hdr = "; @launch kernel=fz_kernel grid=(256,1,1) block=(256,1,1) lds=163840\n" + k3.launch("k3_kernel")
        body = gen("fz_kernel", stampk=0 if st else None, **kw) + k3.gen_k3("k3_kernel", stampk=1 if st else None, **k3kw)
    out = hdr + '.amdgcn_target "amdgcn-amd-amdhsa--gfx950"\n.text\n' + body
    r = hazard.check(out)
    for x in r[:int(sys.argv[3]) if len(sys.argv) > 3 else 0]: print(x)
    out, n = hazard.fix(out)
    open(sys.argv[2], "w").write(out)
    print(len(r), "hazards", n, "nops inserted", len(hazard.check(out)), "left", len(out), "bytes")
    import subprocess
    rr = subprocess.run(["clang", "-x", "assembler", "-target", "amdgcn-amd-amdhsa", "-mcpu=gfx950", "-c", sys.argv[2], "-o", "chk.o"], capture_output=True, text=True)
    assert not rr.returncode, rr.stderr[:600]
    sym = {}
    for ln in subprocess.run(["readelf", "-sW", "chk.o"], capture_output=True, text=True).stdout.split("\n"):
        p = ln.split()
        if len(p) == 8 and p[7].startswith("L_"): sym[p[7]] = int(p[1], 16)
    if kw.get("fuse", 1):
        print("code bytes", sym["L_last_KN"], "tail", sym["L_end_KN"] - sym["L_pc2_KN"], sym["L_last_KN"] - sym["L_pc2_KN"])
```

```python
from asmlib import *
from k1 import Sched, MF
from k2 import O, Lr, vSt, vNM, vNMP, vT
from k2 import sX, sWS, sH, sI, sWv, sN, sT, sRet, sCtxB, sBad, sTmp, sRbS, sRbB, sTT
from k2 import flush
import ffq
sDbg = 4; sPO = 3; vPa = 28
WOA = 160; sWb = 100
SLOT = [160, 176, 192, 208, 224, 240, 0, 16, 64, 80, 96, 112, 32, 48, 128, 144]

def pre(A):
    A(f"s_lshl_b32 s{sT}, s2, 2\ns_add_u32 s{sT}, s{sT}, s{sWv}")
    A(f"s_lshr_b32 s{sTmp}, s{sT}, 3\ns_and_b32 s{sT}, s{sT}, 7\ns_lshl_b32 s{sWb}, s{sTmp}, 8\ns_add_u32 s{sWb}, s{sWb}, s{sT}\ns_lshl_b32 s{sWb}, s{sWb}, 7")
    A("v_lshrrev_b32 v30, 3, v0\nv_and_b32 v23, 7, v0\nv_lshlrev_b32 v29, 12, v30\nv_lshl_or_b32 v29, v23, 4, v29")
    A(f"s_mov_b32 s10, {4096*1024}\ns_mov_b32 s11, 0x20000\ns_and_b32 s9, s9, 0xffff")
    for r in range(4): A(f"buffer_load_dwordx4 {ar(WOA+4*r)}, v29, s[8:11], s{sWb} offen offset:{r*1024}")
    A("v_and_b32 v30, 31, v0\nv_lshlrev_b32 v30, 5, v30\nv_lshrrev_b32 v20, 5, v0\nv_lshl_or_b32 v30, v20, 4, v30")
    A(f"s_lshl_b32 s8, s{sT}, 12\ns_lshr_b32 s9, s{sTmp}, 5\ns_lshl_b32 s9, s9, 10\ns_add_u32 s8, s8, s9\ns_and_b32 s9, s{sTmp}, 31\ns_lshl_b32 s9, s9, 4\ns_add_u32 s8, s8, s9\ns_add_u32 s8, s8, {WS_FL + 12}")
    A(f"s_lshl_b32 s9, s{sT}, 19\ns_lshl_b32 s{sTmp}, s{sTmp}, 12\ns_add_u32 s9, s9, s{sTmp}\ns_add_u32 s9, s9, {WS_WO}")
    A("s_mov_b32 s10, 0x05040100\ns_mov_b32 s11, 0x07060302")
    A(f"s_lshl_b32 s{sWb}, s{sI}, 2\ns_add_u32 s{sWb}, s{sWb}, s{sWv}\ns_lshl_b32 s{sWb}, s{sWb}, 17\ns_add_u32 s{sWb}, s{sWb}, {WS_WO}")

    A(f"s_lshl_b32 s101, s{sRbS}, 10\ns_lshl_b32 s{sT}, s{sH}, 4\ns_add_u32 s101, s101, s{sT}\ns_add_u32 s101, s101, {WS_FL}")

WS_FL = 55 << 20
def fst(A, so, tag=None):
    A("s_mov_b64 exec, 1")
    x = f"buffer_store_dword v31, v{vSt}, s[{sWS}:{sWS+3}], s{so} offen sc1"
    if tag: A.vmem(x, tag)
    else: A(x)
    A("s_mov_b64 exec, -1")
def early33(A):
    A(f"s_cmp_eq_u64 s[{sBad}:{sBad+1}], 0\ns_cselect_b32 s17, s101, {ffq.BIG}")
    fst(A, 17, "fl")

def events(A, name, o):
    E1, E2 = o.get("e", (9, 15))[:2]
    A(f"L_ev_{name}:")
    if len(o.get("e", ())) >= 4:
        P1 = o["e"][2]
        A(f"s_cmp_lt_u32 s{sN}, {P1}\ns_cbranch_scc1 L_ev1_{name}")
        A(f"s_cmp_lg_u32 s{sN}, {P1}\ns_cbranch_scc1 L_ev3_{name}")
        A(f"s_lshr_b32 s17, s{sWb}, 7\ns_add_u32 s17, s17, {WS_FL - (WS_WO >> 7)}")
        A(f"buffer_load_dword v24, v{vSt}, s[{sWS}:{sWS+3}], s17 offen offset:12 sc0 sc1")
        A(f"v_lshlrev_b32 v26, 7, v0\ns_branch L_hook_{name}")
        A(f"L_ev3_{name}:")
        for k, (P2, (tq, t0)) in enumerate(zip(o["e"][3:], o["tq"])):
            A(f"s_cmp_lg_u32 s{sN}, {P2}\ns_cbranch_scc1 L_ev4{k}_{name}")
            if k == 0: A(f"s_waitcnt vmcnt({4*(P2 - P1)})")
            A(f"v_cmp_eq_u32 vcc, 0, v24\ns_and_b32 s17, s{sH}, 3\ns_mul_i32 s17, s17, {tq*8192}\ns_add_u32 s17, s17, s{sWb}")
            A(f"s_add_u32 s17, s17, {t0*4096}\ns_cmp_lg_u32 vcc_lo, 0\ns_cbranch_scc1 L_hook_{name}")
            assert t0 + 8*tq <= 32
            for q in range(tq):
                A(f"buffer_load_dword v25, v26, s[{sWS}:{sWS+3}], s17 offen")
                if q + 1 < tq: A("s_add_u32 s17, s17, 8192")
            A(f"s_branch L_hook_{name}")
            A(f"L_ev4{k}_{name}:")
    A(f"s_cmp_lg_u32 s{sN}, 31\ns_cbranch_scc1 L_ev1_{name}")
    A(f"s_lshl_b32 s{sT}, s{sI}, 2\ns_add_u32 s{sT}, s{sT}, s{sWv}\nv_mov_b32 v29, s{sT}\nv_mov_b32 v24, s{sH}\nv_cmp_gt_u32 vcc, 32, v0\nv_cndmask_b32 v29, v24, v29, vcc")
    A(f"v_lshl_add_u32 v29, v29, 10, v{vSt}\nv_add_u32 v29, {WS_FL}, v29")
    A(f"s_cmp_eq_u64 s[{sBad}:{sBad+1}], 0\ns_cselect_b32 s17, s101, {ffq.BIG}\ns_cmp_lt_u32 s{sTT}, 32\ns_cselect_b32 s17, s17, {ffq.BIG}\ns_cselect_b32 s101, {ffq.BIG}, s101")
    A("s_waitcnt vmcnt(16)")
    fst(A, 17)
    A(f"buffer_load_dword v24, v29, s[{sWS}:{sWS+3}], 0 offen offset:12 sc0 sc1")
    A(f"L_ev1_{name}:")
    A(f"s_cmp_lg_u32 s{sN}, {E2}\ns_cbranch_scc1 L_ev2_{name}")
    A("s_waitcnt vmcnt(16)")
    fst(A, 8)
    A(f"L_ev2_{name}:")
    A(f"s_cmp_lg_u32 s{sN}, {E1}\ns_cbranch_scc1 L_hook_{name}")
    T = (11, 16, 20, 29)
    for q in range(4):
        d = (24, 12)[q & 1]
        for r in range(4): A(f"v_accvgpr_read_b32 v{T[r]}, a{WOA+4*r+q}")
        for s in range(2):
            for hh in range(2): A(f"v_perm_b32 v{d+2*s+hh}, v{T[2*hh+1]}, v{T[2*hh]}, s{10+s}")
        for hh in range(2): A(f"v_permlane32_swap_b32 v{d+hh}, v{d+2+hh}")
        A(f"buffer_store_dwordx4 {vr(d)}, v30, s[{sWS}:{sWS+3}], s9 offen offset:{q*1024} sc1")
    A(f"s_branch L_hook_{name}")

def w_ops(kk):
    o = [(f"buffer_load_dwordx4 {ar(SLOT[kk & 15] + 4*mt)}, v{vSt}, s[{sWS}:{sWS+3}], s{sWb} offen offset:{mt*1024}", ("W", kk)) for mt in range(4)]
    return o + [f"s_add_u32 s{sWb}, s{sWb}, 4096"]
def emit(A, ops):
    for x in ops:
        if isinstance(x, tuple):
            if len(A.vm) >= 62: A.wait_vm([A.vm[1]])
            A.vmem(*x)
        else: A(x)

def tail_head(A, name, o):
    A("s_waitcnt vmcnt(4)")
    A(f"v_cmp_eq_u32 vcc, 0, v24\ns_and_b32 s{sT}, vcc_hi, 0xff\ns_or_b32 s{sT}, s{sT}, vcc_lo")
    A(f"s_cbranch_scc1 L_wstub_{name}")
    A(f"L_wback_{name}:")

def gen(A, name, st_flags, ST, stampk, o, nw):
    NC = o.get("NC", 8)
    A(f"s_lshl_b32 s14, s{sH}, 10\ns_add_u32 s14, s14, {WS_FL}")
    emit(A, [(f"buffer_load_dword v29, v{vSt}, s[{sWS}:{sWS+3}], s14 offen sc0 sc1", "poll")])
    wc = o.get("wc", 0)
    if wc:
        for kk in range(nw, 14): emit(A, w_ops(kk))
        nw = 14
    A("s_barrier")
    A(f"s_lshl_b32 s{sT}, s{sWv}, 14")
    A(f"v_add_u32 v{vT[0]}, s{sT}, v{vSt}")
    A(f"s_lshl_b32 s{sT}, s{sWv}, 9\ns_add_u32 s{sT}, s{sT}, 65536")
    A(f"v_lshlrev_b32 v{vT[1]}, 2, v0")
    A(f"v_add_u32 v{vT[1]}, s{sT}, v{vT[1]}")
    for dt in range(8):
        for q in range(2):
            A(f"ds_write_b128 v{vT[0]}, {vr(O(dt,q))} offset:{(dt*2+q)*1024}")
        if dt == 5: A("s_waitcnt lgkmcnt(8)")
    for q in range(2): A(f"ds_write_b32 v{vT[1]}, a{Lr(q)} offset:{q*256}")
    A(f"v_xor_b32 v{vT[0]}, 0x4000, v{vT[0]}")
    A(f"v_xor_b32 v{vT[1]}, 512, v{vT[1]}")
    A(f"v_accvgpr_read_b32 v{vNM[0]}, a{Lr(2)}")
    A(f"v_accvgpr_read_b32 v{vNM[2]}, a{Lr(3)}")
    A(f"v_mov_b32 v{vT[4]}, 0x5d800000")
    A("s_waitcnt lgkmcnt(0)")
    if wc > 1:
        for kk in range(nw, 16): emit(A, w_ops(kk))
        nw = 16
    A("s_barrier"); A.lg = []
    for q in range(2): A.lds(f"ds_read_b32 v{vNMP[q]}, v{vT[1]} offset:{q*256}", "l")
    def rd(k):
        A.lds(f"ds_read_b128 {vr(32 + k*4)}, v{vT[0]} offset:{((k&7)*2+(k>>3))*1024}", ("o", k))
    for k in range(12): rd(k)
    A.wait_lg("l")
    A(f"v_add_f32 v{vNM[0]}, v{vNM[0]}, v{vNMP[0]}")
    A(f"v_add_f32 v{vNM[2]}, v{vNM[2]}, v{vNMP[1]}")
    for k in range(16):
        A.wait_lg([("o", k)])
        if k + 12 < 16: rd(k + 12)
        a = O(k & 7, 2 + (k >> 3))
        A(f"v_pk_add_f32 v[{a}:{a+1}], v[{a}:{a+1}], v[{32+k*4}:{33+k*4}]")
        A(f"v_pk_add_f32 v[{a+2}:{a+3}], v[{a+2}:{a+3}], v[{34+k*4}:{35+k*4}]")
    while len(A.vm) > 54: A.wait_vm([A.vm[0]])
    flush(A, 2, [vNM[0], vNM[2]], sCtxB, sBad+2, st_flags, tag="ctx")
    A(f"s_or_b64 s[12:13], s[{sBad}:{sBad+1}], s[{sBad+2}:{sBad+3}]")
    A(f"s_cbranch_scc1 L_slow_{name}")
    A(f"L_fin_{name}:")
    if ST: stamp(A, 11)
    vC = [vSt, 18, 19, 20]; vRow, vI, vY, vE, vZ, vL8, vG, vY2 = 2, 3, 4, 5, 6, 7, 8, 9
    GV, G1, SG, PD = 10, 12, 14, 16
    XR = 24; ACC = 32; CB = 96; TM = CB + 128
    sOut = 28; sK = [44, 45]; sRt, sRg, sCb, sXo, sGo, sYo, sPo, sMk, sLy = 8, 9, 10, 11, 12, 13, 14, 15, 16
    sTok, sYj, sOwn = [46, 47], [50, 51], [52, 53]
    sCk = [56, 57, 58, 59, 60, 61, 62, 63]
    PF = 11
    A(f"s_lshl_b32 s{sPo}, s{sH}, 10\ns_add_u32 s{sPo}, s{sPo}, {WS_FL}")
    POLL = f"buffer_load_dword v{PF}, v{vSt}, s[{sWS}:{sWS+3}], s{sPo} offen sc0 sc1"
    n1 = max(o.get("n1", 8), nw)
    for kk in range(nw, n1): emit(A, w_ops(kk))
    A(f"s_load_dwordx2 s[{sOut}:{sOut+1}], s[0:1], 96")
    A(f"s_lshl_b32 s{sCb}, s{sH}, 18\ns_lshl_b32 s{sT}, s{sWv}, 15\ns_add_u32 s{sCb}, s{sCb}, s{sT}\ns_add_u32 s{sCb}, s{sCb}, {WS_CTX}")
    for k in range(8): A(f"s_add_u32 s{sCk[k]}, s{sCb}, {k*4096}")
    for j in range(1, 4): A(f"v_add_u32 v{vC[j]}, {((j&1) + 64*(j>>1))*131072}, v{vSt}")
    A(f"s_lshl_b32 s{sRg}, s{sH}, 1\ns_and_b32 s{sT}, s{sWv}, 1\ns_add_u32 s{sRg}, s{sRg}, s{sT}\ns_and_b32 s{sT}, s{sWv}, 2\ns_lshl_b32 s{sT}, s{sT}, 5\ns_add_u32 s{sRg}, s{sRg}, s{sT}")
    A(f"v_and_b32 v{vG}, 15, v0\nv_lshlrev_b32 v{vRow}, 10, v{vG}\nv_lshl_or_b32 v{vRow}, v22, 5, v{vRow}")
    A(f"s_lshl_b32 s{sXo}, s{sRg}, 14\ns_lshl_b32 s{sT}, s{sI}, 7\ns_add_u32 s{sXo}, s{sXo}, s{sT}")
    A(f"s_lshl_b32 s{sT}, s{sRg}, 4\nv_add_u32 v{vI}, s{sT}, v{vG}\nv_lshlrev_b32 v{vG}, 2, v{vG}")
    A(f"s_lshl_b32 s{sGo}, s{sRg}, 6\ns_add_u32 s{sGo}, s{sGo}, {WS_G}")
    A(f"s_lshl_b32 s{sT}, s{sH}, 4\ns_add_u32 s{sT}, s{sT}, {WS_FL}\ns_lshl_b32 s101, s{sRbS}, 10\ns_add_u32 s101, s101, s{sT}")
    A(f"s_cmp_eq_u64 s[{sBad}:{sBad+1}], 0\ns_cselect_b32 s101, {ffq.BIG}, s101")
    A(f"s_lshl_b32 s17, s{sRbB}, 10\ns_add_u32 s17, s17, s{sT}\ns_sub_u32 s17, s17, {32768 - 512}")
    A.wait_vm("poll")
    A(f"v_cmp_eq_u32 vcc, 0, v29")
    A(f"s_cmp_lg_u32 vcc_lo, 0\ns_cbranch_scc1 L_estub_{name}")
    A(f"L_eback_{name}:")
    def c_op(e, kk, j): return (f"buffer_load_dwordx4 {vr(CB + e*8 + 4*(j&1))}, v{vC[j]}, s[{sWS}:{sWS+3}], s{sCk[kk>>2]} offen offset:{(kk&3)*1024}", ("C", kk, j >> 1))
    ka = o.get("ka", 3)
    for kk in range(16):
        if kk == 4 and ka >= 4: A.wait_vm("ctx")
        emit(A, [c_op(kk, kk, 0), c_op(kk, kk, 1)])
        if n1 + kk < 16: emit(A, w_ops(n1 + kk))
        if kk == ka:
            A.wait_vm("ctx")
            fst(A, 17, "fl"); fst(A, 101, "fl")
        if kk == o.get("kb", 6):
            A("s_barrier")
    YL = 14336; YX = 28672
    A(f"s_mul_i32 s{sYo}, s{sI}, 57344\ns_mul_i32 s{sLy}, s{sWv}, 14336\ns_add_u32 s{sYo}, s{sYo}, s{sLy}\ns_add_u32 s{sYo}, s{sYo}, {WS_Y}")
    A(f"v_lshlrev_b32 v{vY}, 6, v22\nv_add_u32 v{vY2}, 0x10000, v{vY}")
    A(f"s_lshl_b32 s{sLy}, s{sWv}, 15\nv_add_u32 v{vE}, s{sLy}, v{vSt}")
    A(f"v_mov_b32 v{vL8}, 0\ns_mov_b32 s{sT}, {ffq.WS_TOP}")
    A(f"s_mul_i32 s{sTmp}, s{sWv}, 56\nv_min_u32 v{vZ}, 55, v0\nv_add_u32 v{vZ}, s{sTmp}, v{vZ}\nv_and_b32 v{PD}, 7, v{vZ}\nv_lshrrev_b32 v{vZ}, 3, v{vZ}")
    A(f"s_lshr_b32 s{sTmp}, s{sI}, 1\ns_lshl_b32 s{sTmp}, s{sTmp}, 10\ns_add_u32 s{sTmp}, s{sTmp}, {WS_FL + 28*1024 + 512}")
    A(f"v_lshlrev_b32 v{PD}, 12, v{PD}\nv_lshl_add_u32 v{vZ}, v{vZ}, 4, s{sTmp}\nv_sub_u32 v{vZ}, v{vZ}, v{PD}")
    A(f"s_mov_b32 s{sOut+2}, {2048*1024}\ns_mov_b32 s{sOut+3}, 0x20000")
    A(f"s_waitcnt lgkmcnt(0)\ns_and_b32 s{sOut+1}, s{sOut+1}, 0xffff")
    if ST: stamp(A, 12)
    S = Sched(A); A.auto = 1
    S.at(1, "vm", f"buffer_load_dwordx2 v[{SG}:{SG+1}], v{vL8}, s[{sWS}:{sWS+3}], s{sT} offen sc0 sc1", "top")
    for hh in range(2): S.at(2 + hh, "vm", f"buffer_load_dwordx4 {vr(XR+4*hh)}, v{vRow}, s[{sX}:{sX+3}], s{sXo} offen offset:{hh*16}", "x")
    S.at(4, "vm", f"buffer_load_dword v{GV}, v{vG}, s[{sWS}:{sWS+3}], s{sGo} offen sc0 sc1", "x")
    def own():
        A.wait_vm("top")
        for j in range(2):
            A(f"v_readfirstlane_b32 s{sK[j]}, v{SG+j}")
            A(f"s_andn2_b32 s{sTok[j]}, 0x7ff, s{sK[j]}\ns_bfe_u32 s{sT}, s{sTok[j]}, 0x50005\ns_add_u32 s{sYj[j]}, s{sYo}, {j*8*57344}")
            A(f"s_cmp_eq_u32 s{sT}, s{sH}\ns_cselect_b32 s{sYj[j]}, s{sYj[j]}, {ffq.BIG}\ns_cselect_b32 s{sOwn[j]}, 0, -1")
        A(f"s_and_b32 s{sMk}, s{sOwn[0]}, s{sOwn[1]}\ns_and_b32 s{sRt}, s{sMk}, {ffq.BIG}")
    S.at(127, "fn", own)
    kp, kc, ks0, ks1 = o.get("ky", (9, 14, 22, 25))
    S.at(16*kp + 4, "vm", f"buffer_load_dword v{PD}, v{vZ}, s[{sWS}:{sWS+3}], s{sRt} offen sc0 sc1", "poll")
    S.at(16*kc + 1, "wvm", tag=["poll"])
    S.at(16*kc + 1, "v", f"v_or_b32 v{PD}, s{sMk}, v{PD}")
    S.at(16*kc + 2, "v", f"v_cmp_eq_u32 vcc, 0, v{PD}")
    S.at(16*kc + 3, "s", f"s_cbranch_vccnz L_ystub_{name}\nL_yback_{name}:")
    for j in range(2):
        for q in range(4):
            b = 16*(kc + 4*j + q)
            S.at(b + 3, "s", f"s_add_u32 m0, s{sLy}, {(YL if j else 0) + q*4096}")
            for mt in range(4):
                if q*4 + mt < 14: S.at(b + 4 + 3*mt, "vm", f"buffer_load_dwordx4 v{vSt}, s[{sWS}:{sWS+3}], s{sYj[j]} offen offset:{mt*1024} lds", ("y", j))
            S.at(b + 14, "s", f"s_add_u32 s{sYj[j]}, s{sYj[j]}, 4096")
        b = 16*(ks0, ks1)[j] + 10
        S.at(b, "wvm", tag=[("y", j), "x"])
        S.at(b, "s", f"s_cmp_eq_u32 s{sOwn[j]}, 0\ns_cbranch_scc1 L_own{j}_{name}\nL_ownr{j}_{name}:")
    def mm(kk, js, e):
        for mt in range(4):
            for j in js:
                d = ACC + (mt*4 + j)*4
                S.mfma(f"{MF} {vr(d)}, {ar(SLOT[kk & 15] + mt*4)}, {vr(CB + e[j>>1]*8 + 4*(j&1))}, {vr(d) if kk else 0}")
    gp = o.get("gp", 72); NL = o.get("NL", 8); g0, gs = o.get("gl", (6, 12)); vE2 = 17
    S.at(0, "s", f"s_lshl_b32 s{sCb}, s{sWv}, 13\ns_add_u32 s{sCb}, s{sCb}, {131072 - 8*4096}\nv_add_u32 v{vE2}, s{sCb}, v{vSt}")
    for q in range(NL):
        b = g0 + q*gs
        S.at(b, "s", f"s_add_u32 m0, s{sLy if q < 8 else sCb}, {q*4096}")
        for mt in range(4): S.at(b + mt*(gs // 4), "vm", f"buffer_load_dwordx4 v{vSt}, s[{sWS}:{sWS+3}], s{sWb} offen offset:{mt*1024} lds", ("WL", q))
        S.at(b + 3*(gs // 4), "s", f"s_add_u32 s{sWb}, s{sWb}, 4096")
    assert g0 + NL*gs <= 127 + gs // 4 and 128 + 8*min(NL, 8) + 16 <= 16*kc
    for kk in range(16):
        b = 8*kk
        S.at(b - 1, "wvm", tag=[("C", kk, 0), ("W", kk)])
        if 1 <= kk <= 8:
            for j in range(2): S.at(b + 2 + 3*j, "vm", *c_op(kk - 1, kk + 15, j))
        mm(kk, (0, 1), (kk, 0))
    S.at(gp, "vm", POLL, "lp")
    S.at(127, "wvm", tag=["lp"])
    S.at(127, "v", f"v_cmp_eq_u32 vcc, 0, v{PF}")
    S.at(127, "s", f"s_cmp_lg_u32 vcc_hi, 0\ns_cbranch_scc1 L_cstub_{name}\nL_cback_{name}:")
    if ST: S.at(127, "fn", lambda: stamp(A, 3))
    tl = o.get("tl", "")
    TL = lambda v: f"buffer_load_dword v13, v{v}, s[{sWS}:{sWS+3}], s{sTmp} offen"
    S.at(5, "v", "v_and_b32 v1, 31, v0\nv_lshlrev_b32 v1, 7, v1\nv_lshrrev_b32 v23, 5, v0\nv_lshl_or_b32 v1, v23, 17, v1\nv_lshlrev_b32 v23, 7, v0")
    if "e" in tl:
        S.at(o.get("ge", 76), "s", f"s_bitcmp1_b32 s{sI}, 0\ns_cselect_b32 s{sTmp}, s{sCk[7]}, s{sCk[6]}")
        S.at(o.get("ge", 76), "vm", TL(1), "t")
    if "w" in tl:
        S.at(125, "s", f"s_and_b32 s{sTmp}, s{sH}, 3\ns_min_u32 s{sTmp}, s{sTmp}, 2\ns_lshl_b32 s{sTmp}, s{sTmp}, 13\ns_add_u32 s{sTmp}, s{sTmp}, s{sWb}")
        S.at(125, "vm", TL(23), "t")
    if "l" in tl:
        S.at(126, "s", f"s_add_u32 s{sTmp}, s{sI}, 2\ns_sub_u32 s17, s{sI}, 4\ns_cmp_lt_u32 s{sI}, 6\ns_cselect_b32 s{sTmp}, s{sTmp}, s17\ns_lshl_b32 s{sTmp}, s{sTmp}, 12\ns_add_u32 s{sTmp}, s{sTmp}, s{sCk[0]}\ns_add_u32 s{sTmp}, s{sTmp}, {64*131072}")
        S.at(127, "vm", TL(1), "t")
    RD = o.get("RD", 8); assert RD == 8 or (RD == 12 and ks0 >= 24)
    le = lambda kk: 8 + kk % RD
    for kk in range(RD):
        for j in (2, 3): S.at(127, "vm", *c_op(le(kk), kk, j))
    for kk in range(16):
        b = 128 + 8*kk
        S.at(b - 1, "wvm", tag=[("C", kk, 1)])
        if kk >= 1:
            for j in (2, 3): S.at(b + j - 1, "vm", *c_op(le(kk - 1), kk + RD - 1, j))
            if kk - 1 < NL:
                S.at(b + 3, "wvm", tag=[("WL", kk - 1)])
                for mt in range(4): S.at(b + 3 + mt, "lds", f"ds_read_b128 {ar(SLOT[kk - 1] + 4*mt)}, v{vE if kk < 9 else vE2} offset:{(kk - 1)*4096 + mt*1024}", ("w", kk + 15))
                if kk >= 3: S.at(b + 2, "wlg", tag=[("w", kk + 13)])
            else:
                for n, x in enumerate(w_ops(kk + 15)):
                    if n < 4: S.at(b + 3 + n, "vm", *x)
                    else: S.at(b + 6, "s", x)
            if kk == NL + 1: S.at(b + 2, "wlg", tag=[("w", NL + 15)])
        mm(kk, (2, 3), (0, le(kk)))
    for kk in range(16, 32):
        b = 16*kk
        S.at(b - 1, "wvm", tag=[("C", kk, 0), ("C", kk, 1), ("W", kk)])
        if kk + RD - 1 < 32:
            for j in (2, 3): S.at(b + 2*j - 3, "vm", *c_op(le(kk - 1), kk + RD - 1, j))
        if kk + 7 < 32:
            if kk >= 17:
                for j in (0, 1): S.at(b + 5 + 2*j, "vm", *c_op((kk - 1) & 7, kk + 7, j))
        if kk == 16:
            for n, x in enumerate(w_ops(31)[:4]): S.at(b + 5 + 2*n, "vm", *x)
        mm(kk, (0, 1, 2, 3), (kk & 7, le(kk)))
    B = TM
    ops = [f"v_sub_f32 v{G1}, 1.0, v{GV}"] + ffq.rnd(G1)
    for k in range(8):
        ops += [f"v_lshlrev_b32 v{B+2*k}, 16, v{XR+k}", f"v_and_b32 v{B+2*k+1}, 0xffff0000, v{XR+k}",
              f"v_mul_f32 v{B+2*k}, v{B+2*k}, v{G1}", f"v_mul_f32 v{B+2*k+1}, v{B+2*k+1}, v{G1}",
              f"v_cvt_pk_bf16_f32 v{B+2*k+1}, v{B+2*k}, v{B+2*k+1}", f"v_lshlrev_b32 v{B+2*k}, 16, v{B+2*k+1}", f"v_and_b32 v{B+2*k+1}, 0xffff0000, v{B+2*k+1}"]
    ops += [f"s_lshl_b32 s{sT}, s{sWv}, 12", f"v_add_u32 v{vY}, s{sT}, v{vSt}", f"v_add_u32 v{vY2}, 0x10000, v{vY}"]
    for n, x in enumerate(ops): S.at(16*26 + n, "v", x)
    if ST: S.at(256, "fn", lambda: stamp(A, 1)); S.at(511, "fn", lambda: stamp(A, 2))
    S.emit(); print('auto waits', A.auto - 1)
    for mt in range(4):
        for j in range(4): A(f"ds_write_b128 v{vE}, {vr(ACC + (mt*4+j)*4)} offset:{j*4096 + mt*1024}")
        if mt == 2: A("s_waitcnt lgkmcnt(4)")
    A("s_waitcnt lgkmcnt(0)\ns_barrier"); A.lg = []
    R = ACC
    def rr(mt):
        for ww in range(4): A.lds(f"ds_read_b128 {vr(R + (ww*4+mt)*4)}, v{(vY, vY2)[ww>>1]} offset:{(ww&1)*32768 + mt*1024}", mt)
    for mt in range(3): rr(mt)
    def unp(a, s): A(f"v_lshlrev_b32 v{a}, 16, v{s}\nv_and_b32 v{a+1}, 0xffff0000, v{s}")
    def pk(op, a, b, c, ex=""): A(f"v_pk_{op}_f32 v[{a}:{a+1}], v[{b}:{b+1}], v[{c}:{c+1}]{ex}")
    for k in range(8):
        a = R + 2*k
        if k % 2 == 0: A.wait_lg([k >> 1])
        if k == 0: rr(3)
        pk("add", a, a, a+16); pk("add", a+32, a+32, a+48); pk("add", a, a, a+32)
        A(f"v_cvt_pk_bf16_f32 v{a+1}, v{a}, v{a+1}"); unp(a, a+1)
        pk("mul", a, a, GV, " op_sel_hi:[1,0]")
        A(f"v_cvt_pk_bf16_f32 v{a+1}, v{a}, v{a+1}"); unp(a, a+1)
        xi = (k & 1)*4 + (k >> 1)
        pk("add", a, a, B+2*xi)
        A(f"v_cvt_pk_bf16_f32 v{XR+xi}, v{a}, v{a+1}")
        if k >= 6: A(f"buffer_store_dwordx4 {vr(XR+4*(k&1))}, v{vRow}, s[{sOut}:{sOut+3}], s{sXo} offen offset:{(k&1)*16}")
    if ST: stamp_end(A, stampk, sWS, sWv)
    A(f"L_end_{name}:\ns_endpgm")
    Y = TM
    for j in range(2):
        A(f"L_own{j}_{name}:")
        for hf in range(2):
            for q in range(7): A(f"ds_read_b128 {vr(Y + 4 + 4*q)}, v{vE} offset:{j*YL + (hf*7+q)*1024}")
            A("s_waitcnt lgkmcnt(0)")
            for (a, b) in ((1, 2), (3, 4), (5, 6), (1, 3), (5, 7)) + (((0, 1), (0, 5)) if hf else ()):
                for e in (0, 2): pk("add", Y+4*a+e, Y+4*a+e, Y+4*b+e)
            if not hf:
                for e in (0, 2): pk("add", Y+e, Y+4+e, Y+20+e)
        for sw in ("v_permlane16_swap_b32", "v_permlane32_swap_b32"):
            for r in range(4): A(f"v_mov_b32 v{Y+4+r}, v{Y+r}")
            for r in range(4): A(f"{sw} v{Y+r}, v{Y+4+r}")
            for r in range(4): A(f"v_add_f32 v{Y+r}, v{Y+r}, v{Y+4+r}")
        A(f"ds_write_b128 v{vE}, {vr(Y)} offset:{YX}")
        A(f"s_and_b32 s54, s{sK[j]}, 0xffff0000\ns_xor_b32 s55, s54, 0x80000000\ns_xor_b32 s56, s54, 0xffff0000")
        A(f"s_bitcmp1_b32 s54, 31\ns_cselect_b32 s55, s55, s56\nv_mov_b32 v{SG}, s55")
        for x in ffq.sigm(SG) + ffq.rnd(SG): A(x)
        A(f"v_cmp_eq_u32 vcc, s{sTok[j]}, v{vI}")
        A("s_waitcnt lgkmcnt(0)\ns_barrier")
        for hf in range(2):
            for k in range(8): A(f"ds_read_b128 {vr(Y + 4*k)}, v{(vY, vY2)[k>>2]} offset:{YX + ((k>>1)&1)*32768 + (hf*2 + (k&1))*16}")
            A("s_waitcnt lgkmcnt(0)")
            for k in range(4):
                a = Y + 2*k; b = Y + 8 + 2*k; x = XR + hf*4 + k
                pk("add", a, a, a+8); pk("add", a+16, a+16, a+24); pk("add", a, a, a+16)
                A(f"v_cvt_pk_bf16_f32 v{a+1}, v{a}, v{a+1}"); unp(b, x); unp(a, a+1)
                pk("mul", a, a, SG, " op_sel_hi:[1,0]")
                A(f"v_cvt_pk_bf16_f32 v{a+1}, v{a}, v{a+1}"); unp(a, a+1)
                pk("add", a, a, b)
                A(f"v_cvt_pk_bf16_f32 v{a}, v{a}, v{a+1}")
                A(f"v_cndmask_b32 v{x}, v{x}, v{a}, vcc")
        A(f"s_barrier\ns_branch L_ownr{j}_{name}")
    def spin(tag, ld, test):
        A(f"L_{tag}stub_{name}:")
        if tag == "e":
            A("s_waitcnt vmcnt(0)"); fst(A, 17); fst(A, 101)
        sc = 17 if tag != "e" else 49
        A(f"s_mov_b32 s{sc}, 0\nL_{tag}spin_{name}:\ns_sleep {o.get('slp', 8)}")
        A(ld); A("s_waitcnt vmcnt(0)"); A(test)
        A(f"s_add_u32 s{sc}, s{sc}, 1\ns_cmp_lt_u32 s{sc}, 0x20000\ns_cbranch_scc1 L_{tag}spin_{name}\ns_branch L_{tag}back_{name}")
    spin("w", f"buffer_load_dword v24, v29, s[{sWS}:{sWS+3}], 0 offen offset:12 sc0 sc1", f"v_cmp_eq_u32 vcc, 0, v24\ns_and_b32 s{sT}, vcc_hi, 0xff\ns_or_b32 s{sT}, s{sT}, vcc_lo\ns_cbranch_scc0 L_wback_{name}")
    spin("c", POLL, f"v_cmp_eq_u32 vcc, 0, v{PF}\ns_cmp_eq_u32 vcc_hi, 0\ns_cbranch_scc1 L_cback_{name}")
    spin("e", POLL, f"v_cmp_eq_u32 vcc, 0, v{PF}\ns_cmp_eq_u32 vcc_lo, 0\ns_cbranch_scc1 L_eback_{name}")
    spin("y", f"buffer_load_dword v{PD}, v{vZ}, s[{sWS}:{sWS+3}], 0 offen sc0 sc1", f"v_cmp_eq_u32 vcc, 0, v{PD}\ns_cbranch_vccz L_yback_{name}")
```

```python
from asmlib import *
from k1 import Sched, MF, wave_reduce_add
import k2
from k2 import S as S_, P, C, O, Kf, Vf, Q, Lr, ONES, NEGV, vSt, vA, vNM, vNMP, vNEG, vT, vPark
from k2 import sX, sW, sWS, sKV, sH, sI, sWv, sW8, sN, sSw, sA, sB, sT, sG, sEv, sTT, sRbA, sRbB, sRbP, sTri, sRet, sCtxA, sCtxB, sBad, sTmp, sRbS
import kf, ffq
from sched2 import Sched2
from k2 import interval, hook_site, flush, gen_hook, gen_slow

sDbg = 4
sPO, sNW0, sM1, sM2, sCnt = 3, 14, 15, 16, 17
vPa, vPd = 28, 29

def srd2(A, d, nbytes):
    A(f"s_mov_b32 s{d+2}, {nbytes}")
    A(f"s_mov_b32 s{d+3}, 0x20000")
def srd3(A, d): A(f"s_and_b32 s{d+1}, s{d+1}, 0xffff")

def gen(name, L=16, NB=6, st_flags="sc1", extra_start=6*64, store_start=9*64-32, store_step=10, stampk=None, opt={},
        sig_hs=6, poll1=330, chk_hs=13, code_kb=64, pfk3=None, hmap=1, kv_flags=None, rot=0, dbg='', fuse=1, oo={}, lp='kcvq', lpv=20, lpq=200, s2=1, lpx=300, lpw=(-990, 150, 420), dr=(520, 20, 10, 5), l2g=7, pw=-1, tw=0, cpf=1, pfl=0, fq={}):
    A = Asm(); kvf = fuse; rb = fuse and oo.get("rb", 1); ro = 0 if rb else 4
    ST = stampk is not None
    A(khead(name))
    A(f"s_cmp_ge_u32 s2, 256\ns_cbranch_scc1 L_end_{name}")
    sC, sK, sV, sR, sGw = 24, 28, 32, 48, 52
    A(f"s_load_dwordx2 s[{sC}:{sC+1}], s[0:1], 8")
    A(f"s_load_dwordx2 s[{sK}:{sK+1}], s[0:1], 24")
    A(f"s_load_dwordx2 s[{sX}:{sX+1}], s[0:1], 0")
    A(f"s_load_dwordx2 s[{sV}:{sV+1}], s[0:1], 32")
    A(f"s_load_dwordx2 s[{sR}:{sR+1}], s[0:1], 56")
    A(f"s_load_dwordx2 s[{sGw}:{sGw+1}], s[0:1], 88")
    A(f"s_load_dwordx2 s[{sWS}:{sWS+1}], s[0:1], 112")
    A(f"s_load_dwordx2 s[{sDbg}:{sDbg+1}], s[0:1], 104")
    A("s_load_dwordx2 s[12:13], s[0:1], 16")
    A("s_getpc_b64 s[62:63]")
    A(f"L_pc_{name}:")
    if cpf:
        A("v_lshrrev_b32 v1, 6, v0\nv_and_b32 v2, 7, v0\nv_lshl_or_b32 v1, v1, 3, v2")
        A("s_lshr_b32 s44, s2, 3\ns_lshl_b32 s44, s44, 11")
        A("v_lshl_add_u32 v1, v1, 6, s44")
        A(f"v_min_u32 v1, L_last_{name}-L_pc_{name}-4, v1")
        A.vmem("global_load_dword v30, v1, s[62:63]", "pf")
    else:
        A("v_lshlrev_b32 v1, 6, v0")
        A.vmem("global_load_dword v30, v1, s[62:63]", "pf")
        A("s_bfe_u32 s44, s2, 0x20003")
        A(f"s_add_u32 s44, s44, 1\ns_lshl_b32 s44, s44, 14")
        A(f"s_min_u32 s44, s44, L_last_{name}-L_pc_{name}-0x4000")
        A("v_add_u32 v2, s44, v1")
        A.vmem("global_load_dword v31, v2, s[62:63]", "pf")
    if ST: stamp_begin(A)
    A("v_lshrrev_b32 v1, 6, v0")
    A("v_and_b32 v0, 63, v0")
    A(f"v_readfirstlane_b32 s{sWv}, v1")
    if hmap:
        A(f"s_and_b32 s{sH}, s2, 7\ns_lshl_b32 s{sH}, s{sH}, 2\ns_bfe_u32 s{sI}, s2, 0x20003\ns_or_b32 s{sH}, s{sH}, s{sI}")
    else:
        A(f"s_and_b32 s{sH}, s2, 31")
    A(f"s_lshr_b32 s{sI}, s2, 5")
    if kv_flags is None: kv_flags = st_flags
    aW = list(range(2, 10)); aV = list(range(10, 14)); aC = [14, 15, 26, 27]
    dW = 16; dV = [17, 18]; dC = [19, 20]
    t0, t1, t2, t3 = 22, 23, 24, 25
    A(f"v_lshrrev_b32 v{t0}, 4, v0")
    A(f"v_and_b32 v{t1}, 15, v0")
    A(f"s_lshl_b32 s{sW8}, s{sWv}, 13")
    A(f"s_and_b32 s44, s{sWv}, 1")
    A("s_lshl_b32 s44, s44, 3")
    A(f"v_lshlrev_b32 v{t2}, 1, v{t0}")
    A(f"v_xor_b32 v{t2}, v{t2}, v{t1}")
    A(f"v_xor_b32 v{t2}, s44, v{t2}")
    A(f"v_lshlrev_b32 v{dW}, 13, v{t0}")
    A(f"v_lshl_or_b32 v{dW}, v{t2}, 4, v{dW}")
    A(f"v_lshrrev_b32 v{t1}, 3, v0")
    A(f"v_and_b32 v{t2}, 7, v0")
    A(f"v_xor_b32 v{t3}, v{t2}, v{t0}")
    A(f"v_lshlrev_b32 v{dC[0]}, 10, v{t1}")
    A(f"v_lshl_or_b32 v{dC[0]}, v{t3}, 4, v{dC[0]}")
    A(f"v_xor_b32 v{dC[1]}, 64, v{dC[0]}")
    A(f"v_lshlrev_b32 v{vSt}, 4, v0")
    srd2(A, sC, 2048*1024); srd2(A, sK, 4096*1024); srd2(A, sX, 2048*1024); srd2(A, sV, 4096*1024)
    srd2(A, sWS, WS_BYTES); srd2(A, sR, 1024); srd2(A, sGw, 1024); srd2(A, sDbg, 256)
    A(f"s_lshl_b32 s45, s{sI}, 2\ns_add_u32 s45, s45, s{sWv}")
    A("s_lshl_b32 s46, s45, 16")
    A(f"s_lshl_b32 s47, s{sH}, 8")
    A(f"s_lshl_b32 s56, s{sWv}, 16\ns_add_u32 s56, s56, s47")
    A(f"s_lshl_b32 s57, s{sWv}, 17\ns_add_u32 s57, s57, s47")
    A(f"s_lshl_b32 s60, s2, 2\ns_add_u32 s60, s60, s{sWv}\ns_lshl_b32 s61, s60, 11")
    sRot, sCb, sWc = 101, 100, sTmp
    if rot == 1:
        A(f"s_lshr_b32 s{sRot}, s2, 2\ns_and_b32 s{sRot}, s{sRot}, 6\ns_add_u32 s{sRot}, s{sRot}, s2\ns_add_u32 s{sRot}, s{sRot}, s{sI}")
    elif rot == 2:
        A(f"s_lshr_b32 s{sRot}, s2, 2\ns_and_b32 s{sRot}, s{sRot}, 6\ns_add_u32 s{sRot}, s{sRot}, s{sI}")
    else: A(f"s_mov_b32 s{sRot}, {rot-10 if rot >= 10 else 0}")
    A(f"s_and_b32 s{sRot}, s{sRot}, 7\ns_lshl_b32 s{sRot}, s{sRot}, 7")
    if hmap:
        A(f"s_lshr_b32 s66, s2, 3\ns_lshl_b32 s66, s66, 2\ns_add_u32 s66, s66, s{sWv}\ns_lshl_b32 s66, s66, 5\ns_and_b32 s67, s2, 7\ns_add_u32 s66, s66, s67\ns_lshl_b32 s66, s66, 10")
        A(f"v_and_b32 v32, 15, v0\nv_lshlrev_b32 v32, 6, v32\nv_lshl_or_b32 v32, v{t0}, 13, v32")
    else:
        A("s_lshl_b32 s66, s60, 12")
        A("v_lshlrev_b32 v32, 6, v0")
    A("v_lshlrev_b32 v33, 5, v0")
    A(f"s_lshr_b32 s67, s2, 3\ns_lshl_b32 s67, s67, 2\ns_add_u32 s67, s67, s{sWv}\ns_lshl_b32 s67, s67, 14")
    A(f"s_mov_b32 s63, {WS_R}\ns_lshl_b32 s58, s{sH}, 19\ns_add_u32 s62, s58, {WS_V}")
    A(f"v_lshlrev_b32 v38, {l2g}, v0")
    A(f"v_lshrrev_b32 v39, 2, v0\nv_and_b32 v1, 3, v0\nv_lshlrev_b32 v39, 13, v39\nv_lshl_or_b32 v39, v1, 6, v39")
    A("s_lshl_b32 s19, s45, 17\ns_add_u32 s19, s19, s47")
    A("s_waitcnt lgkmcnt(0)")
    if ST and not fuse: stamp(A, 11)
    if tw:
        for (p, o) in [(sC, "s46"), (sK, "s56"), (sX, "s61"), (sK, "s66"), (sC, "s61"), (sR, "0"), (sGw, "0"), (sWS, "s63"), (sDbg, "0")] + \
                      ([(sV, "s57"), (sV, "s66"), (12, "s66"), (12, "s56"), (sWS, "s58"), (sWS, "s62")] if tw > 1 else []):
            A(f"s_load_dword s59, s[{p}:{p+1}], {o}")
    for d in (sK, sC): srd3(A, d)
    def pf0():
        if 'c' in lp: A.vmem(f"buffer_load_dword v35, v33, s[{sC}:{sC+3}], s61 offen", "pf")
        if 'k' in lp: A.vmem(f"buffer_load_dword v34, v32, s[{sK}:{sK+3}], s66 offen", "pf")
    if pfl == 0: pf0()
    for d in (sX, sV, sR, sGw, sWS, sDbg): srd3(A, d)
    RG = 192
    S = Sched2(A) if s2 else Sched(A)
    def weave(g, lines, per=2, kind="v"):
        n = 0
        for ln in lines:
            for x in ln.split("\n"):
                S.at(g + int(n / per), kind, x); n += 1
        return g + int((n - 1) / per) + 1
    Q0 = 1024
    def wslot(hs):
        if hs < 22: return ((hs % 8) >> 2, hs & 3)
        if hs < 24: return (2, hs - 22)
        return (3 + ((hs >> 2) & 1 ^ 0 if False else (((hs - 24) >> 2) & 1)), hs & 3)
    sXs, sXl, sWb = 8, 9, 10
    busy = []
    def claim(reg, g0, g1):
        for (r, a, b) in busy: assert r != reg or g1 < a or g0 > b, (reg, g0, g1, a, b)
        busy.append((reg, g0, g1))
    def dma_w(gap, hs, spread=1):
        b, t = wslot(hs)
        sWc = 59 if 22 <= hs < 32 else sTmp
        claim(sWc, gap, gap + spread)
        if hs < 16: k0, ex, base, sr = hs*64, 0, 56, sK
        elif hs < 32: k0, ex, base, sr = ((hs-16) & 7)*128, ((hs-16) >> 3)*128, 57, sV
        else: k0, ex, base, sr = (hs-32)*64, 0, sWb, sW
        S.at(gap, "s", f"s_add_u32 s{sWc}, s{sRot}, {k0}")
        S.at(gap, "s", f"s_and_b32 s{sWc}, s{sWc}, 1023")
        S.at(gap, "s", f"s_lshl_b32 s{sWc}, s{sWc}, 12")
        S.at(gap, "s", f"s_add_u32 s{sWc}, s{sWc}, s{base}")
        if ex: S.at(gap, "s", f"s_add_u32 s{sWc}, s{sWc}, {ex}")
        for j in range(2):
            lds = b*32768 + t*2048 + j*1024
            vo = dV[j] if 16 <= hs < 32 else dW
            g = gap + j*spread
            S.at(g, "s", f"s_add_u32 m0, s{sW8}, {lds}")
            if j: S.at(g, "s", f"s_add_u32 s{sWc}, s{sWc}, {(8 if 16 <= hs < 32 else 4)*8192}")
            elif not s2 or gap < 0: S.at(g, "s", "s_nop 0")
            S.at(g, "vm", f"buffer_load_dwordx4 v{vo}, s[{sr}:{sr+3}], s{sWc} offen lds", ("W", hs))
    def cblock(s): return 2 + ((s+1) % 3) if s < 8 else (s - 8 + 1) % 3
    def dma_c(gap, s, spread=2):
        claim(sCb, gap, gap + 7*spread)
        S.at(gap, "s", f"s_add_u32 s{sCb}, s{sRot}, {(s & 7)*128}")
        S.at(gap, "s", f"s_and_b32 s{sCb}, s{sCb}, 1023")
        for j in range(8):
            g = gap + j*spread
            S.at(g, "s", f"s_add_u32 m0, s{sW8}, {cblock(s)*32768 + j*1024}")
            if j == 0: S.at(g, "s", f"s_add_u32 s{sCb}, s{sCb}, s{46 if s < 8 else sXs}")
            elif j == 4 and s >= 8: S.at(g, "s", f"s_add_u32 s{sCb}, s{sCb}, s{sXl}")
            else: S.at(g, "s", f"s_add_u32 s{sCb}, s{sCb}, 8192")
            sr = sC if s < 8 else sX
            S.at(g, "vm", f"buffer_load_dwordx4 v{dC[j&1]}, s[{sr}:{sr+3}], s{sCb} offen lds", ("C", s))
    def creg(ks, tg): return ((ks & 15)*4 + tg) * 4
    def read_c(gap, s, spread=4):
        S.at(gap, "wvm", tag=[("C", s)])
        n = 0
        cb = cblock(s) - (2 if s < 8 else 0)
        for k2_ in range(2):
            for tg in range(4):
                off = (cb & 1)*32768 + tg*2048
                S.at(gap + n*spread, "lds", f"ds_read_b128 {ar(creg(2*s+k2_, tg))}, v{aC[k2_ + 2*(cb>>1)]} offset:{off}", ("c", 2*s+k2_, tg))
                n += 1
    g = -1000
    for n_, (kind, idx) in enumerate([("C",0),("W",0),("W",1),("R",0),("C",1),("W",2),("W",3),("C",2),("W",4),("W",5)]):
        if n_ == pw: S.at(g, "wvm", tag=["pf"])
        if pfl and n_ == pfl: S.at(g, "fn", pf0)
        if n_ == 4 and ST and not fuse: S.at(g, "fn", lambda: stamp(A, 12))
        if kind == "C": dma_c(g, idx, 1); g += 8
        elif kind == "W": dma_w(g, idx); g += 2
        else:
            S.at(g, "vm", f"buffer_load_dwordx4 {vr(RG)}, v{vSt}, s[{sX}:{sX+3}], s61 offen", "rg")
            S.at(g, "vm", f"buffer_load_dwordx4 {vr(RG+4)}, v{vSt}, s[{sX}:{sX+3}], s61 offen offset:1024", "rg")
            S.at(g, "vm", f"buffer_load_dwordx4 {vr(RG+8)}, v{vSt}, s[{sR}:{sR+3}], 0 offen", "rg")
            S.at(g, "vm", f"buffer_load_dwordx4 {vr(RG+12)}, v{vSt}, s[{sGw}:{sGw+3}], 0 offen", "rg")
            g += 1
    def consts_a():
        A(f"v_bfe_u32 v{t1}, v0, 2, 2")
        A(f"v_and_b32 v{t2}, 3, v0")
        A(f"v_and_b32 v{t3}, 1, v{t0}")
        A(f"v_lshl_or_b32 v{t3}, v{t3}, 2, v{t1}")
        A(f"v_lshlrev_b32 v{aW[0]}, 13, v{t0}")
        A(f"v_lshl_or_b32 v{aW[0]}, v{t1}, 8, v{aW[0]}")
        A(f"v_lshl_or_b32 v{aW[0]}, v{t3}, 5, v{aW[0]}")
        A(f"v_lshl_or_b32 v{aW[0]}, v{t2}, 3, v{aW[0]}")
        for d in range(1, 8): A(f"v_xor_b32 v{aW[d]}, {d<<5}, v{aW[0]}")
        A(f"v_lshrrev_b32 v{aV[0]}, 1, v{t0}")
        A(f"v_lshlrev_b32 v{aV[0]}, 13, v{aV[0]}")
        A(f"v_and_b32 v{t3}, 1, v{t0}")
        A(f"v_lshl_or_b32 v{aV[0]}, v{t3}, 10, v{aV[0]}")
        A(f"v_lshl_or_b32 v{aV[0]}, v{t1}, 7, v{aV[0]}")
        A(f"v_lshl_or_b32 v{aV[0]}, v{t3}, 6, v{aV[0]}")
        A(f"v_lshrrev_b32 v{t3}, 1, v{t1}")
        A(f"v_lshl_or_b32 v{aV[0]}, v{t3}, 5, v{aV[0]}")
        A(f"v_lshl_or_b32 v{aV[0]}, v{t2}, 3, v{aV[0]}")
        for d in range(1, 4): A(f"v_xor_b32 v{aV[d]}, {d<<5}, v{aV[0]}")
        A(f"v_and_b32 v{t1}, 15, v0")
        A(f"v_lshrrev_b32 v{t2}, 1, v{t1}")
        A(f"v_xor_b32 v{t2}, v{t2}, v{t0}")
        A(f"v_lshlrev_b32 v{aC[0]}, 7, v{t1}")
        A(f"v_lshl_or_b32 v{aC[0]}, v{t2}, 4, v{aC[0]}")
        A(f"v_add_u32 v{aC[0]}, s{sW8}, v{aC[0]}")
        A(f"v_add_u32 v{aC[0]}, 0x10000, v{aC[0]}")
        A(f"v_xor_b32 v{aC[1]}, 64, v{aC[0]}")
        A(f"v_add_u32 v{aC[2]}, 0x10000, v{aC[0]}")
        A(f"v_add_u32 v{aC[3]}, 0x10000, v{aC[1]}")
        A(f"v_lshrrev_b32 v{t1}, 3, v0")
        A(f"v_and_b32 v{t2}, 7, v0")
        A(f"v_and_b32 v{t3}, 1, v{t0}")
        A(f"v_lshlrev_b32 v{t3}, 1, v{t3}")
        A(f"v_xor_b32 v{t3}, v{t3}, v{t2}")
        A(f"v_lshlrev_b32 v{dV[0]}, 13, v{t1}")
        A(f"v_lshl_or_b32 v{dV[0]}, v{t3}, 4, v{dV[0]}")
        A(f"v_xor_b32 v{dV[1]}, 64, v{dV[0]}")
        A(f"s_lshl_b32 s58, s{sH}, 6\ns_lshl_b32 s63, s45, 1\ns_add_u32 s58, s58, s63\ns_lshl_b32 s58, s58, 13")
        pass
        A(f"s_lshl_b32 s{sXs}, s{sI}, 17")
        A(f"s_lshl_b32 s44, s{sWv}, 15")
        A(f"s_lshl_b32 s{sXl}, s{sI}, 18")
        A(f"s_sub_u32 s{sXl}, {(15<<17) - 3*8192}, s{sXl}")
        A(f"s_add_u32 s{sXs}, s{sXs}, s44")
        A(f"s_mov_b32 s{sWb}, s56")
        A(f"s_lshl_b32 s11, s{sWv}, 12")
        A(f"s_cmp_eq_u32 s{sWv}, 0")
        A(f"s_cselect_b32 s{sPO}, 0, 0x1000")
        A(f"s_cselect_b32 s{sNW0}, 0, -1")
        A(f"s_and_b32 s44, s{sH}, 24")
        A(f"s_lshl_b32 s{sM1}, 1, s44")
        A(f"s_lshr_b32 s63, s{sI}, 1\ns_lshr_b32 s{sM2}, 255, s63\ns_lshl_b32 s{sM2}, s{sM2}, s44")
        A(f"s_and_b32 s44, s{sH}, 7\ns_lshl_b32 s44, s44, 4")
        A(f"v_lshl_add_u32 v{vPa}, v0, 8, s44")
        A(f"s_lshl_b32 s44, s{sM1}, s{sI}\nv_mov_b32 v31, s44")
        if kvf:
            A(f"s_lshl_b32 s63, s63, 3\ns_lshr_b32 s{sM2}, -1, s63\ns_not_b32 s{sM2}, s{sM2}\ns_lshl_b32 s{sM1}, s{sH}, 10\ns_add_u32 s{sM1}, s{sM1}, {kf.WS_FL}")
            A(f"s_and_b32 s44, s{sH}, 7\ns_lshl_b32 s44, s44, 4\nv_min_u32 v{vPa}, 1, v0\nv_lshl_add_u32 v{vPa}, v{vPa}, 30, s44")
            A(f"s_cmp_eq_u32 s{sWv}, 0\ns_cselect_b32 s{sM1}, s{sM1}, {ffq.BIG}")
        A("s_mov_b32 s63, 0x3e0293ee")
    if 'v' in lp: S.at(lpv, "vm", f"buffer_load_dword v36, v32, s[{sV}:{sV+3}], s66 offen", "pf")
    if 'q' in lp:
        for k, x in enumerate([f"s_mov_b32 s{sR}, s12", f"s_and_b32 s{sR+1}, s13, 0xffff", f"s_mov_b32 s{sR+2}, {4096*1024}"]): S.at(lpq - 4 + k, "s", x)
        S.at(lpq, "vm", f"buffer_load_dword v37, v32, s[{sR}:{sR+3}], s66 offen", "pf")
    def l2pull(g, sr):
        for k in range(256 >> l2g):
            S.at(g + 2*k, "vm", f"buffer_load_dword v35, v38, s[{sr}:{sr+3}], s67 offen", "pf")
            S.at(g + 2*k + 1, "s", f"s_add_u32 s67, s67, {64 << l2g}")
        S.at(g + 2*k + 1, "s", f"s_sub_u32 s67, s67, 16384")
    if 'C' in lp: l2pull(-988, sC)
    if 'X' in lp: l2pull(lpx, sX)
    for c, g, sr in zip("KVQ", lpw, (sK, sV, sR)):
        if c in lp: S.at(g, "vm", f"buffer_load_dword v34, v39, s[{sr}:{sr+3}], s19 offen", "pf")
    S.at(-950, "fn", consts_a)
    read_c(-800, 0, 1)
    S.at(-700, "wlg", tag=[("c", 1, 3)])
    dma_c(-600, 3, 1)
    FB = 40
    ACC1, ACC2 = 64, 192
    def acc(p, dt, tg):
        if p == 0: return ACC1 + (dt*4 + tg)*4
        if p == 1: return ACC2 + (dt*4 + tg)*4
        if p == 2: return ACC1 + (dt*4 + tg)*4
        return O(dt, tg)
    win = 0
    hsR, hsC, hsX = fq.get("hsR", 7), fq.get("hsC", 19), fq.get("hsX", 43)
    def checkr():
        A.wait_vm("pollr")
        A(f"v_or_b32 v{vPd}, s{sNW0}, v{vPd}")
        A(f"v_cmp_ne_u32 vcc, -1, v{vPd}")
        A(f"s_cbranch_vccnz L_rstub_{name}")
        A(f"L_rback_{name}:")
    gb = lambda hs: 32*hs - L - 1
    for f in range(384):
        fb = FB + (f % NB)*4
        hs = f >> 3
        b, t = wslot(hs)
        if f < 128:
            p, ks, dt = 0, f >> 3, f & 7
            offs = [(b*32768 + t*2048 + pp*1024, aW[dt]) for pp in range(2)]
        elif f < 256:
            f2 = f - 128
            p, ks, dt = 1 + (f2 >> 6), (f2 >> 2) & 15, f2 & 3
            w2 = b >> 1
            if w2 != win:
                for d in range(4): S.at(4*f - L - 1, "v", f"v_add_u32 v{aV[d]}, 0x10000, v{aV[d]}")
                win = w2
            offs = [((b&1)*32768 + (ks&1)*16384 + t*2048 + pp*512, aV[dt]) for pp in range(2)]
        else:
            p, ks, dt = 3, 16 + ((f - 256) >> 3), f & 7
            offs = [((b-3)*32768 + t*2048 + pp*1024, aW[dt]) for pp in range(2)]
        if f % 8 == 0:
            S.at(gb(hs), "wvm", tag=[("W", hs)])
            if hs == 32 + sig_hs: S.at(gb(hs), "wvm", tag=["st"])
            if hs == hsR: S.at(gb(hs), "wvm", tag=["rgs"])
            if hs == hsC: S.at(gb(hs), "fn", lambda: checkr())
            if hs in (26, 27, hsX): S.at(gb(hs), "wlg", tag=["fx"])
            if hs == 32 + chk_hs: S.at(gb(hs), "fn", lambda: check(0, sM1))
            if not ('b' in dbg and 17 <= hs < 32): S.at(gb(hs), "s", "s_barrier")
            if hs + 6 < 22 or 32 <= hs + 6 < 48: dma_w(gb(hs) + 3, hs + 6, 4)
        for pp in range(2):
            if 'r' in dbg and 128 <= f < 256 and (f & 3): continue
            S.at(4*f - L + pp, "lds", f"ds_read_b64_tr_b16 v[{fb+2*pp}:{fb+2*pp+1}], v{offs[pp][1]} offset:{offs[pp][0]}", ("w", f))
        for tg in range(4):
            d = acc(p, dt, tg); c = vr(d) if (ks & 15) else "0"
            need = [("w", f)] + ([("c", ks, tg)] if p in (0, 3) else [])
            if p in (0, 3): S.mfma(f"{MF} {vr(d)}, {vr(fb)}, {ar(creg(ks,tg))}, {c}", need)
            else: S.mfma(f"{MF} {vr(d)}, {ar(creg(ks,tg))}, {vr(fb)}, {c}", need)
    for s in range(1, 8):
        read_c(64*(s-1) + 6, s, 4)
        if s + 3 < 8:
            S.at(64*(s-1) + 46, "wlg", tag=[("c", 2*s+1, 3)])
            dma_c(64*(s-1) + 46, s + 3, 2)
    g = extra_start + 2
    for hs in range(22, 32):
        blk = wslot(hs)[0]
        g = max(g, 64*(blk + 3) + 2)
        dma_w(g, hs, 4); g += 12
    last_dma = g
    def drain(gap0, step, p, sel=slice(None)):
        g = gap0
        items = []
        if p == 0:
            for ds in range(4):
                for tg in range(4):
                    items.append((acc(0, 2*ds, tg), acc(0, 2*ds+1, tg), WS_K + (tg >> 1)*8192 + ((tg & 1)*4 + ds)*1024))
        else:
            for dt in range(4):
                for u in range(2):
                    items.append((acc(p, dt, 2*u), acc(p, dt, 2*u+1), WS_V + u*8192 + ((p-1)*4 + dt)*1024))
        for (a0, a1, off) in items[sel]:
            if p == 0:
                for k, a in enumerate((a0, a0+1, a0+2, a0+3, a1, a1+1, a1+2, a1+3)):
                    S.at(g - 4 + (k >> 1), "v", f"v_mul_f32 v{a}, s63, v{a}")
            S.at(g, "v", f"v_cvt_pk_bf16_f32 v{a0}, v{a0}, v{a0+1}")
            S.at(g, "v", f"v_cvt_pk_bf16_f32 v{a0+1}, v{a0+2}, v{a0+3}")
            S.at(g+1, "v", f"v_cvt_pk_bf16_f32 v{a0+2}, v{a1}, v{a1+1}")
            S.at(g+1, "v", f"v_cvt_pk_bf16_f32 v{a0+3}, v{a1+2}, v{a1+3}")
            S.at(g+2, "s", f"s_add_u32 s62, s58, {off}")
            if not ('s' in dbg and p < 2): S.at(g+2, "vm", f"buffer_store_dwordx4 {vr(a0)}, v{vSt}, s[{sWS}:{sWS+3}], s62 offen {kv_flags}", "st")
            g += step
        return g
    if dr is None:
        e = drain(max(store_start, last_dma) + 2, store_step, 0)
        assert e <= 768 + 8, e
        drain(768 + 10, 12, 1)
        e2 = drain(Q0 + 2, 4, 2)
    else:
        g0 = max(dr[0], last_dma + 2)
        e = drain(g0, dr[1], 0, slice(0, dr[2]))
        assert g0 + 8*dr[1] <= 768 + 4
        e = max(e, 778); n2 = 16 - dr[2]
        stp = (Q0 - 6 - e) // (8 + n2)
        e = drain(e, stp, 0, slice(dr[2], 16))
        drain(e, stp, 1)
        e2 = drain(Q0 + 2, dr[3], 2)
    def lwait(): A("s_waitcnt lgkmcnt(0)"); A.lg = []
    weave0 = weave
    def ffn(e2):
        SL = fq.get('sl', 14)
        def weave(g, lines, per=2): return weave0(g, lines, per, 'v~')
        S.at(0, "wvm~", tag=["rg"])
        g = weave(0, ["s_lshl_b32 s67, s60, 1", "s_sub_u32 s67, 2047, s67"] + ffq.rg_ops(RG, t0, 65, 67), fq.get("per", 1)) + SL
        weave(g - 3, ["s_lshl_b32 s62, s60, 3", f"s_add_u32 s62, s62, {WS_R}"])
        S.at(g, "vm", f"buffer_store_dword v{RG+24}, v{RG+25}, s[{sWS}:{sWS+3}], s62 offen sc1", "rgs")
        if fuse:
            weave(g - 3, [f"s_cmp_eq_u32 s{sI}, 0\ns_cselect_b32 s49, s{sM1}, {ffq.BIG}", f"v_mov_b64 v[{RG}:{RG+1}], 0", f"v_mov_b64 v[{RG+2}:{RG+3}], 0"])
            S.at(g + 1, "vm", f"buffer_store_dwordx4 {vr(RG)}, v{vSt}, s[{sWS}:{sWS+3}], s49 offen sc1", "rgs")
            weave(g + 2, [f"s_and_b32 s{sCnt}, s{sH}, 8", f"s_add_u32 s{sCnt}, s{sCnt}, s{sI}", f"s_add_u32 s{sCnt}, s{sCnt}, s{sPO}", f"s_and_b32 s62, s{sH}, 16", "s_lshl_b32 s62, s62, 3", f"s_add_u32 s{sCnt}, s{sCnt}, s62", "v_mov_b32 v30, -1"])
            assert g < 440
        assert g + 12 < gb(hsR)
        S.at(gb(hsR) + 1, "vm", f"buffer_atomic_or v31, v{vPa}, s[{sDbg}:{sDbg+3}], s{sPO} offen offset:4 sc1" if not rb else f"buffer_store_byte v30, v{vPa}, s[{sDbg}:{sDbg+3}], s{sCnt} offen sc1", "sig")
        g = fq.get("gf", 500)
        S.at(g - 70, "s", "s_load_dwordx4 s[28:31], s[0:1], 64")
        S.at(g - 23, "fn", lwait)
        weave(g - 22, [f"s_min_u32 s51, s{sH}, 27", f"s_mul_i32 s49, s45, {16*3584}", "s_lshl_b32 s50, s51, 7", "v_lshrrev_b32 v23, 3, v0", "v_and_b32 v24, 7, v0", "s_add_u32 s49, s49, s50",
                       f"v_mul_u32_u24 v23, {2*3584}, v23", "v_lshl_add_u32 v23, v24, 4, v23", "v_add_u32 v23, s49, v23"], 1)
        for k in range(4):
            S.at(g, "s", f"s_add_u32 m0, s{sW8}, {65536 + 4096 + k*1024 - (k&1)*3584}")
            S.at(g, "vm", f"global_load_lds_dwordx4 v23, s[{28+(k&2)}:{29+(k&2)}] offset:{(k&1)*3584}", "fw"); g += fq.get("fs", 6)
        assert g < fq.get("gt", 750)
        weave(836, [f"s_add_u32 s62, s{sW8}, 65536", f"v_add_u32 v38, s62, v{vSt}"])
        S.at(850, "wvm", tag=["fw"])
        for k in range(4): S.at(850 + k, "lds", f"ds_read_b128 {ar(64+4*k)}, v38 offset:{4096 + k*1024}", "fz")
        S.at(860, "wlg", tag=["fz"])
        weave(Q0 + 16, [f"v_accvgpr_read_b32 v{64+k}, a{64+k}" for k in range(16)], 1)
        g = fq.get("gq", 480)
        weave(g - 4, ["v_and_b32 v33, 7, v0", "v_lshlrev_b32 v33, 4, v33"] if not rb else ["v_lshlrev_b32 v33, 2, v0"])
        S.at(g, "vm", f"buffer_load_dword v{vPd}, v33, s[{sDbg}:{sDbg+3}], s{sPO} offen offset:{ro} sc0 sc1", "pollr")
        g = gb(hsC) + 1
        KEY, m1, m2, tt = 32, 128+32, 129+32, 130+32
        weave(g - 4, [f"s_lshl_b32 s48, s{sWv}, 11", f"s_add_u32 s48, s48, {WS_R}"])
        for j in range(2): S.at(g + j, "vm", f"buffer_load_dwordx4 {vr(KEY+4*j)}, v{vSt}, s[{sWS}:{sWS+3}], s48 offen offset:{j*1024} sc0 sc1", "key")
        g = fq.get("gt", 750)
        m1, m2, tt = 24, 25, 23
        S.at(g, "wvm~", tag=["key"])
        g = weave(g, ffq.top_a(KEY, m1, m2, tt) + [f"s_lshl_b32 s48, s{sWv}, 9", f"v_lshl_add_u32 v{tt}, v0, 3, s48"], 1) + SL
        assert g < gb(26) - 2, g
        S.at(g, "lds", f"ds_write_b64 v{tt}, v[{m1}:{m2}]", "fx")
        weave(g + 1, [f"v_and_b32 v{tt}, 15, v0", f"v_lshlrev_b32 v{tt}, 7, v{tt}"])
        S.at(gb(26) + 1, "lds", f"ds_read_b64 v[34:35], v{tt}", "fx")
        g = gb(27) + 1
        XS = 32
        o = ffq.merge4(34, 35, tt) + ["v_lshrrev_b32 v36, 3, v0", "s_lshl_b32 s50, s45, 5", "v_lshlrev_b32 v36, 2, v36", "v_readfirstlane_b32 s48, v34", "v_readfirstlane_b32 s49, v35"]
        for j in range(2): o += [f"s_andn2_b32 s{48+j}, 0x7ff, s{48+j}", f"s_lshl_b32 s{48+j}, s{48+j}, 10", f"s_add_u32 s{48+j}, s{48+j}, s50"]
        S.at(g, "wlg~", tag=["fx"])
        g = weave(g, o, 1) + SL
        for j in range(2): S.at(g + j, "vm", f"buffer_load_dword v{XS+j}, v36, s[{sX}:{sX+3}], s{48+j} offen", "xs")
        g = weave(g + 2, ["s_cmp_eq_u32 s60, 0", f"s_cselect_b32 s48, {ffq.WS_TOP}, {ffq.BIG}", f"v_mov_b32 v{tt}, 0"])
        S.at(g, "vm", f"buffer_store_dwordx2 v[34:35], v{tt}, s[{sWS}:{sWS+3}], s48 offen sc1", "st")
        G0, U0, WD, PM, T, SM = 64, 72, 80, 88, 92, 96
        assert g < Q0
        ge = e2 + 1
        g = Q0 + fq.get("gd", 64)
        S.at(g, "wvm~", tag=["xs"])
        g = weave(g, ffq.dot_ops(G0, U0, XS, PM, SM, (12, 13)) + [f"s_lshl_b32 s12, s{sWv}, 10", "v_and_b32 v37, 7, v0", "v_lshrrev_b32 v36, 3, v0", f"s_add_u32 s12, s12, {7*16384}", "v_lshl_or_b32 v37, v37, 3, v36",
                  f"s_lshl_b32 s13, s{sWv}, 8", "v_lshl_add_u32 v37, v37, 4, s12", f"s_add_u32 s13, s13, {7*16384}", "v_lshl_add_u32 v36, v0, 2, s13"], fq.get("per2", 0.6)) + SL
        g = max(g, gb(42) + 2)
        assert g < gb(hsX) - 4, g
        for k in range(2): S.at(g + k, "lds", f"ds_write_b64 v37, v[{SM+16*k}:{SM+16*k+1}] offset:{8*k}", "fx")
        g = gb(hsX) + 1
        for w in range(4): S.at(g, "lds", f"ds_read_b32 v{SM+w}, v36 offset:{w*1024}", "fy")
        g = weave(g + 1, ["v_lshrrev_b32 v38, 5, v0", "v_and_b32 v37, 31, v0", "v_lshlrev_b32 v38, 10, v38", f"s_lshl_b32 s10, s{sH}, 13", "v_lshl_add_u32 v37, v37, 2, v38",
                          f"s_lshl_b32 s12, s{sWv}, 11", "s_add_u32 s10, s10, s12", f"s_lshl_b32 s12, s{sI}, 7", "s_add_u32 s10, s10, s12", f"s_add_u32 s10, s10, {ffq.WS_PRE}"], 2)
        S.at(g, "wlg~", tag=["fy"])
        g = weave(g, [f"v_add_f32 v{SM}, v{SM}, v{SM+1}", f"v_add_f32 v{SM+2}, v{SM+2}, v{SM+3}", f"v_add_f32 v{SM}, v{SM}, v{SM+2}"], 1) + SL
        S.at(g, "vm", f"buffer_store_dword v{SM}, v37, s[{sWS}:{sWS+3}], s10 offen sc1", "ya")
        print("ffn ends", g + 4 - Q0)
        return ge
    weave(520, [f"s_mov_b32 s{sW}, s12", f"s_and_b32 s{sW+1}, s13, 0xffff", f"s_mov_b32 s{sW+2}, {4096*1024}"] +
          [f"v_add_u32 v{aW[d]}, 0x18000, v{aW[d]}" for d in range(8)] +
          [f"v_subrev_u32 v{aC[d]}, 0x10000, v{aC[d]}" for d in range(4)], 1)
    if 'Q' not in lp and not hmap: g = weave(last_dma + 20, [f"v_lshrrev_b32 v{t1}, 2, v0", f"v_and_b32 v{t2}, 3, v0", f"v_lshlrev_b32 v{t1}, 13, v{t1}",
                         f"v_lshl_or_b32 v{t1}, v{t2}, 6, v{t1}", "s_lshl_b32 s63, s45, 17", "s_add_u32 s63, s63, s47"], 1)
    if 'Q' not in lp and not hmap: S.at(g + 1, "vm", f"buffer_load_dword v30, v{t1}, s[{sW}:{sW+3}], s63 offen", "pf")
    dma_c(gb(23) + 2, 8, 3)
    dma_c(861, 9, 2)
    dma_c(880, 10, 3)
    for s in range(8, 16):
        b = Q0 + 64*(s-9)
        read_c(b + 6, s, 4)
        S.at(b + 46, "wlg", tag=[("c", 2*s+1, 3)])
        if s + 3 < 16: dma_c(b + 46, s + 3, 2)
    cq = []
    cq += [f"v_and_b32 v{t1}, 15, v0", f"v_lshlrev_b32 v{t2}, 2, v{t0}", f"v_sub_u32 v{t2}, v{t1}, v{t2}"]
    cq += [f"v_cmp_le_i32 s[{sTri[r]}:{sTri[r]+1}], {r}, v{t2}" for r in range(4)]
    cq += [f"s_lshr_b32 s{sT}, s{sWv}, 1\ns_lshl_b32 s{sT}, s{sT}, 24",
        f"s_lshl_b32 s{sG}, s{sH}, 19\ns_add_u32 s{sG}, s{sG}, s{sT}",
        f"s_lshl_b32 s{sT}, s{sI}, 15\ns_sub_u32 s{sT}, {64*8192}, s{sT}",
        f"s_mov_b32 s{sKV}, s{sWS}\ns_mov_b32 s{sKV+1}, s{sWS+1}\ns_add_u32 s{sKV+2}, s{sG}, s{sT}\ns_mov_b32 s{sKV+3}, 0x20000",
        f"s_and_b32 s{sT}, s{sWv}, 1\ns_lshl_b32 s{sT}, s{sT}, 12\ns_add_u32 s{sG}, s{sG}, s{sT}",
        f"s_lshl_b32 s{sTT}, s{sI}, 2\ns_add_u32 s{sRbA}, s{sTT}, s{sWv}",
        f"s_sub_u32 s{sRbB}, 60, s{sTT}\ns_xor_b32 s{sRbP}, s{sWv}, 1\ns_add_u32 s{sRbP}, s{sRbP}, s{sRbB}\ns_add_u32 s{sRbB}, s{sRbB}, s{sWv}",
        f"s_add_u32 s{sTT}, s{sTT}, 4\ns_mov_b32 s{sRbS}, s{sRbA}",
        f"s_and_b32 s{sT}, s{sWv}, 2\ns_add_u32 s{sSw}, s{sTT}, s{sT}\ns_sub_u32 s{sSw}, s{sSw}, 2",
        f"s_mov_b32 s{sEv}, 63\ns_mov_b32 s{sEv+1}, 0",
        f"s_lshl_b64 s[{sEv}:{sEv+1}], s[{sEv}:{sEv+1}], s{sTT}",
        f"s_lshr_b64 s[{sEv}:{sEv+1}], s[{sEv}:{sEv+1}], 5",
        f"s_or_b32 s{sEv}, s{sEv}, {0x80000000 + (sum(1 << e for e in oo.get('e', (9, 15))) if fuse else 0)}\ns_or_b32 s{sEv+1}, s{sEv+1}, 1",
        (f"s_mov_b64 s[{sEv}:{sEv+1}], 0\n" if 'h' in dbg else "") + f"s_mov_b32 s{sN}, 0\ns_mov_b32 s{sA}, 16384",
        f"s_and_b32 s{sT}, s{sWv}, 1\ns_add_u32 s{sT}, s{sT}, 2\ns_sub_u32 s{sT}, s{sT}, s{sTT}\ns_lshl_b32 s{sB}, s{sT}, 14",
        f"s_lshl_b32 s{sT}, s{sH}, 12\ns_add_u32 s{sT}, s{sT}, {WS_CTX}",
        f"s_lshl_b32 s{sCtxA}, s{sRbA}, 18\ns_add_u32 s{sCtxA}, s{sCtxA}, s{sT}",
        f"s_lshl_b32 s{sCtxB}, s{sRbB}, 18\ns_add_u32 s{sCtxB}, s{sCtxB}, s{sT}",
        f"s_mov_b64 s[{sBad}:{sBad+1}], 0\ns_mov_b64 s[{sBad+2}:{sBad+3}], 0"]
    ge = weave(ffn(e2) + 2, cq, 1)
    assert ge < gb(32 + sig_hs) - 4, ge
    S.at(gb(32 + sig_hs) + 1, "vm", f"buffer_atomic_or v31, v{vPa}, s[{sDbg}:{sDbg+3}], s{sPO} offen offset:8 sc1" if not kvf else
         f"buffer_store_byte v30, v{vPa}, s[{sWS}:{sWS+3}], s{sCnt} offen offset:4 sc1", "sig")
    if kvf: S.at(gb(32 + sig_hs) - 3, "v", f"v_mov_b32 v30, -1\ns_add_u32 s{sCnt}, s{sM1}, s{sI}")
    POLL = f"buffer_load_dword v{vPd}, v{vPa}, s[{sDbg}:{sDbg+3}], s{sPO} offen offset:8 sc0 sc1"
    if kvf: POLL = f"buffer_load_dword v{vPd}, v{vPa}, s[{sWS}:{sWS+3}], s{sM1} offen offset:4 sc0 sc1"
    POLL2 = f"buffer_load_dword v30, v{vPa}, s[{sWS}:{sWS+3}], s{sM1} offen offset:8 sc0 sc1"
    def ktest(k):
        A(f"v_readfirstlane_b32 s{sT}, v{vPd}")
        if k:
            A(f"v_readfirstlane_b32 s{sCnt}, v30\ns_or_b32 s{sCnt}, s{sCnt}, s{sM2}\ns_and_b32 s{sT}, s{sT}, s{sCnt}")
            A(f"s_or_b32 s{sT}, s{sT}, s{sNW0}\ns_cmp_lg_u32 s{sT}, -1")
        else: A(f"s_or_b32 s{sT}, s{sT}, s{sNW0}\ns_bitcmp0_b32 s{sT}, 0")
    def check(k, sm):
        A.wait_vm("poll")
        if kvf:
            ktest(k)
            A(f"s_cbranch_scc1 L_pstub{k}_{name}\nL_pback{k}_{name}:")
            return
        A(f"v_readfirstlane_b32 s{sT}, v{vPd}")
        A(f"s_mov_b32 s{sCnt}, s{sm}")
        A(f"s_or_b32 s{sT}, s{sT}, s{sNW0}")
        A(f"s_and_b32 s{sT}, s{sT}, s{sm}")
        A(f"s_cmp_lg_u32 s{sT}, s{sm}")
        A(f"s_cbranch_scc1 L_pstub{k}_{name}")
        A(f"L_pback{k}_{name}:")
    S.at(Q0 + poll1, "vm", POLL, "poll")
    def dma_kv(gap, u, spread=2):
        for r in (sTmp, sCb): claim(r, gap, gap + 1 + 3*spread)
        S.at(gap, "s", f"s_add_u32 m0, s11, {u*16384}")
        S.at(gap, "s", f"s_add_u32 s{sTmp}, s{sG}, {u*8192}")
        for j in range(4):
            S.at(gap + 1 + j*spread, "vm", f"buffer_load_dwordx4 v{vSt}, s[{sKV}:{sKV+3}], s{sTmp} offen offset:{j*1024} lds", ("KV", u))
    g = gb(32 + chk_hs) + 2
    free = {0: gb(42), 1: gb(42), 2: gb(44), 3: gb(44), 4: gb(46), 5: gb(46), 6: gb(46)}
    for u in range(7):
        g = max(g, free[u] + 2)
        dma_kv(g, u); g += 10
    S.at(g, "vm", POLL, "poll")
    if kvf: S.at(g + 1, "vm", POLL2, "poll")
    assert g < Q0 + 505
    for ds in range(4):
        g = Q0 + 480 + 8*ds + 8 + 3
        for tg in range(4):
            a0, a1 = O(2*ds, tg), O(2*ds+1, tg)
            S.at(g, "v", f"v_cvt_pk_bf16_f32 v{a0}, v{a0}, v{a0+1}")
            S.at(g, "v", f"v_cvt_pk_bf16_f32 v{a0+1}, v{a0+2}, v{a0+3}")
            S.at(g, "v", f"v_cvt_pk_bf16_f32 v{a0+2}, v{a1}, v{a1+1}")
            S.at(g, "v", f"v_cvt_pk_bf16_f32 v{a0+3}, v{a1+2}, v{a1+3}")
            for r in range(4): S.at(g+1, "v", f"v_accvgpr_write_b32 a{Q(tg,ds)+r}, v{a0+r}")
            g += 2
    S.at(Q0 + 512, "s", "s_nop 4")
    if ST and not oo.get("st"):
        S.at(-901, "fn", lambda: stamp(A, 1))
        S.at(0, "fn", lambda: stamp(A, 2))
        S.at(512, "fn", lambda: stamp(A, 3))
        S.at(768, "fn", lambda: stamp(A, 4))
        S.at(Q0, "fn", lambda: stamp(A, 5))
        S.at(gb(32 + sig_hs) + 2, "fn", lambda: stamp(A, 6))
        S.at(gb(32 + chk_hs) + 1, "fn", lambda: stamp(A, 7))
        S.at(Q0 + 511, "fn", lambda: stamp(A, 8))
    S.at(Q0 + 507, "wlg", tag=[("w", 383)])
    S.at(Q0 + 507, "wvm", tag=[("KV", 1)])
    S.at(Q0 + 507, "s", "s_barrier")
    S.at(Q0 + 508, "v", f"v_mov_b32 v{vA[0]}, v{vSt}")
    S.at(Q0 + 508, "v", f"v_add_u32 v{vA[1]}, 0x4000, v{vSt}")
    for f in range(8): S.at(Q0 + 509 + (f >> 2), "lds", f"ds_read_b128 {ar(Kf(f))}, v{vSt} offset:{f*1024}", ("k", f))
    S.emit(verbose=fq.get('v'))
    S = S_
    A(f"s_add_u32 s{sT}, s{sW8}, 0x20000")
    A(f"v_add_u32 v{vPark}, s{sT}, v{vSt}")
    for q in range(2):
        for ds in range(4):
            A.lds(f"ds_write_b128 v{vPark}, {vr(O(2*ds, 2+q))} offset:{(q*4+ds)*1024}", "pk")
            if len(A.lg) >= 14: A.wait_lg([("k", 7)])
    A(f"v_xor_b32 v{vPark}, 0x2000, v{vPark}")
    A(f"v_mov_b32 v{vNEG}, {NEGV}")
    A(f"v_mov_b32 v{vT[0]}, 0x3f803f80")
    for r in range(4): A(f"v_accvgpr_write_b32 a{ONES+r}, v{vT[0]}")
    A("s_waitcnt lgkmcnt(0)"); A.lg = []
    A("s_load_dwordx2 s[8:9], s[0:1], 40\ns_load_dwordx2 s[12:13], s[0:1], 80")
    z = [f"v_mov_b64 v[{128+2*k}:{129+2*k}], 0" for k in range(64)] + [f"v_accvgpr_write_b32 a{Lr(0)+k}, 0" for k in range(16)]
    for kt in range(2):
        for ds in range(4):
            for qg in range(4):
                cc = "0" if ds == 0 else vr(S(kt, qg))
                A(f"{MF} {vr(S(kt,qg))}, {ar(Kf(kt*4+ds))}, {ar(Q(qg,ds))}, {cc}")
                for _ in range(2): A(z.pop(0))
    for f in range(8): A(f"ds_read_b128 {ar(Kf(f))}, v{vA[1]} offset:{f*1024}")
    while z: A(z.pop(0))
    A(f"s_cmp_lg_u32 s{sRbA}, 0\ns_cbranch_scc1 L_nd0_{name}")
    for r in range(4):
        A(f"v_cndmask_b32 v{S(0,0)+r}, v{vNEG}, v{S(0,0)+r}, s[{sTri[r]}:{sTri[r]+1}]")
        A(f"v_mov_b32 v{S(1,0)+r}, v{vNEG}")
        A(f"v_cndmask_b32 v{S(1,1)+r}, v{vNEG}, v{S(1,1)+r}, s[{sTri[r]}:{sTri[r]+1}]")
    A(f"L_nd0_{name}:")
    for qg in range(4):
        a, b = S(0, qg), S(1, qg); d = vNM[qg]
        A(f"v_max3_f32 v{d}, v{a}, v{a+1}, v{a+2}")
        A(f"v_max3_f32 v{d}, v{d}, v{a+3}, v{b}")
        A(f"v_max3_f32 v{d}, v{d}, v{b+1}, v{b+2}")
        A(f"v_max_f32 v{d}, v{d}, v{b+3}")
    for sw in ("v_permlane16_swap_b32", "v_permlane32_swap_b32"):
        for qg in range(4): A(f"v_mov_b32 v{vT[qg]}, v{vNM[qg]}")
        for qg in range(4): A(f"{sw} v{vNM[qg]}, v{vT[qg]}")
        for qg in range(4): A(f"v_max_f32 v{vNM[qg]}, v{vNM[qg]}, v{vT[qg]}")
    for qg in range(4): A(f"v_xor_b32 v{vNM[qg]}, 0x80000000, v{vNM[qg]}")
    A(f"s_lshl_b32 s{sT}, s{sWv}, 9\ns_add_u32 s{sT}, s{sT}, {7*16384}")
    A(f"v_lshlrev_b32 v{vT[0]}, 3, v0")
    A(f"v_add_u32 v{vT[0]}, s{sT}, v{vT[0]}")
    A(f"ds_write_b64 v{vT[0]}, v[{vNM[2]}:{vNM[3]}]")
    A(f"v_xor_b32 v{vT[0]}, 512, v{vT[0]}")
    for kt in range(2):
        for qg in range(4):
            for r in range(4): A(f"v_add_f32 v{S(kt,qg)+r}, v{S(kt,qg)+r}, v{vNM[qg]}")
    A("s_waitcnt lgkmcnt(0)\ns_barrier")
    A(f"ds_read_b64 v[{vNMP[0]}:{vNMP[1]}], v{vT[0]}")
    for kt in range(2):
        for qg in range(4):
            for r in range(4): A(f"v_mov_b32 v{C(kt,qg)+r}, v{vNM[qg]}")
    check(1, sM2)
    A("s_waitcnt lgkmcnt(0)\ns_barrier")
    if fuse:
        A(f"s_lshl_b32 s{sCnt}, s{sI}, 4\ns_add_u32 s{sCnt}, s{sCnt}, s{sM1}\ns_add_u32 s{sCnt}, s{sCnt}, 524")
        kf.fst(A, sCnt)
    else: A(f"buffer_atomic_or v31, v{vPa}, s[{sDbg}:{sDbg+3}], s{sPO} offen offset:12 sc1")
    A(f"s_add_u32 m0, s11, {7*16384}")
    A(f"s_add_u32 s{sG}, s{sG}, {7*8192}")
    for j in range(4): A(f"buffer_load_dwordx4 v{vSt}, s[{sKV}:{sKV+3}], s{sG} offen offset:{j*1024} lds")
    if fuse: kf.pre(A)
    else: pf_k3(A)
    pf_wd(A)
    opt = dict(opt); opt['t32'] = wo_st(fuse); opt['t32w'] = 1; opt['t33'] = ffn2()
    tl = [(0, 0), (0, 1), (0, 2), (0, 3), (1, 0), (1, 1)]
    for (kt, qg) in tl:
        for r in range(4): A(f"v_exp_f32 v{S(kt,qg)+r}, v{S(kt,qg)+r}")
    for (kt, qg) in tl:
        for r in (0, 2): A(f"v_cvt_pk_bf16_f32 v{P(0,qg)+2*kt+(r>>1)}, v{S(kt,qg)+r}, v{S(kt,qg)+r+1}")
    if ST and not oo.get('st'): stamp(A, 9)
    A(f".p2align 6\nL_l1_{name}:")
    hook_site(A, 0, name); interval(A, 0, "L1", name, opt)
    hook_site(A, 1, name); interval(A, 1, "L1", name, opt)
    A(f"s_cmp_lt_u32 s{sN}, s{sSw}\ns_cbranch_scc1 L_l1_{name}")
    A(f"s_cmp_ge_u32 s{sN}, 32\ns_cbranch_scc1 L_tail_{name}")
    A(f".p2align 6\nL_l2_{name}:")
    hook_site(A, 2, name); interval(A, 0, "L2", name, opt)
    hook_site(A, 3, name); interval(A, 1, "L2", name, opt)
    A(f"s_cmp_lt_u32 s{sN}, 32\ns_cbranch_scc1 L_l2_{name}")
    A(f"L_tail_{name}:")
    if fuse: kf.tail_head(A, name, oo)
    else:
        A("s_waitcnt vmcnt(4)")
        A(f"v_readfirstlane_b32 s{sT}, v{vPd}")
        A(f"s_mul_i32 s{sCnt}, s{sM1}, 255")
        A(f"s_and_b32 s{sT}, s{sT}, s{sCnt}")
        A(f"s_cmp_lg_u32 s{sT}, s{sCnt}")
        A(f"s_cbranch_scc1 L_pstub2_{name}")
    A(f"L_pback2_{name}:")
    hook_site(A, 4, name)
    A.vm = []; A.lg = []
    A.vmem(f"buffer_load_dwordx4 v[24:27], v{vSt}, s[{sWS}:{sWS+3}], s16 offen sc0 sc1", "pre")
    if fuse:
        n0, n1 = oo.get("nw", (6, 12))
        A(f"s_getpc_b64 s[64:65]\nL_pc2_{name}:\ns_lshl_b32 s{sT}, s{sWv}, 12\nv_lshl_add_u32 v29, v0, 6, s{sT}\nv_min_u32 v29, L_last_{name}-L_pc2_{name}-2052, v29")
        A.vmem("global_load_dword v29, v29, s[64:65] offset:2048", "pf")
        for kk in range(n0): kf.emit(A, kf.w_ops(kk))
        opt['t32w'] = len(A.vm)
        opt['t33'] = ffn2(A, [x for kk in range(n0, n1) for x in kf.w_ops(kk)])
    interval(A, 0, "T32", name, opt)
    A.vm += ["wd"]*8
    interval(A, 1, "T33", name, opt)
    if ST: stamp(A, 10)
    if fuse: kf.gen(A, name, st_flags, ST, stampk, oo, n1)
    else: old_tail(A, name, st_flags, ST, stampk)
    for k in range(5):
        A(f"L_stub{k}_{name}:")
        if k & 1 and not fuse:
            A(f"s_cmp_eq_u32 s{sN}, 31\ns_cselect_b32 s{sT}, 0, 0x1000")
            A(f"buffer_load_dword v{vPd}, v{vPa}, s[{sDbg}:{sDbg+3}], s{sT} offen offset:12 sc0 sc1")
        A(f"s_call_b64 s[{sRet}:{sRet+1}], L_{'ev' if k & 1 and fuse else 'hook'}_{name}\ns_branch L_back{k}_{name}")
    if fuse: kf.events(A, name, oo)
    for k in range(2 if kvf else 0):
        A(f"L_pstub{k}_{name}:\ns_mov_b32 s{sRot}, 0\nL_pspin{k}_{name}:\ns_sleep {oo.get('ksl', 4)}")
        A(POLL)
        if k: A(POLL2)
        A("s_waitcnt vmcnt(0)"); ktest(k)
        A(f"s_cbranch_scc0 L_pback{k}_{name}\ns_add_u32 s{sRot}, s{sRot}, 1\ns_cmp_lt_u32 s{sRot}, 0x20000\ns_cbranch_scc1 L_pspin{k}_{name}\ns_branch L_pback{k}_{name}")
    for k in range(0 if kvf else 3):
        A(f"L_pstub{k}_{name}:\ns_mov_b32 s{sRot}, {12 if k == 2 else 8}\ns_call_b64 s[{sRet}:{sRet+1}], L_spin_{name}\ns_branch L_pback{k}_{name}")
    A(f"L_rstub_{name}:")
    A("s_mov_b32 s49, 0")
    A(f"L_rspin_{name}:")
    A("s_sleep 4")
    A(f"buffer_load_dword v{vPd}, v33, s[{sDbg}:{sDbg+3}], 0 offen offset:{ro} sc0 sc1")
    A("s_waitcnt vmcnt(0)")
    A(f"v_cmp_ne_u32 vcc, -1, v{vPd}")
    A("s_add_u32 s49, s49, 1")
    A(f"s_cbranch_vccz L_rback_{name}")
    A(f"s_cmp_lt_u32 s49, 0x20000\ns_cbranch_scc1 L_rspin_{name}")
    A(f"s_branch L_rback_{name}")
    A(f"L_spin_{name}:")
    A(f"s_mov_b32 s{sTmp}, 0")
    A(f"L_spinl_{name}:")
    A("s_sleep 4")
    A(f"buffer_load_dword v{vPd}, v{vPa}, s[{sDbg}:{sDbg+3}], s{sRot} offen sc0 sc1")
    A("s_waitcnt vmcnt(0)")
    A(f"v_readfirstlane_b32 s{sT}, v{vPd}")
    A(f"s_add_u32 s{sTmp}, s{sTmp}, 1")
    A(f"s_and_b32 s{sT}, s{sT}, s{sCnt}")
    A(f"s_cmp_eq_u32 s{sT}, s{sCnt}\ns_cbranch_scc1 L_spinx_{name}")
    A(f"s_cmp_lt_u32 s{sTmp}, 0x20000\ns_cbranch_scc1 L_spinl_{name}")
    A(f"L_spinx_{name}:")
    A(f"s_setpc_b64 s[{sRet}:{sRet+1}]")
    gen_hook(A, name, st_flags)
    gen_slow(A, name, st_flags)
    A(f'L_last_{name}:')
    return A.text() + kdesc(name, 512, 256)

def old_tail(A, name, st_flags, ST, stampk):
    A("s_barrier")
    A(f"s_lshl_b32 s{sT}, s{sWv}, 14")
    A(f"v_add_u32 v{vT[0]}, s{sT}, v{vSt}")
    A(f"s_lshl_b32 s{sT}, s{sWv}, 9\ns_add_u32 s{sT}, s{sT}, 65536")
    A(f"v_lshlrev_b32 v{vT[1]}, 2, v0")
    A(f"v_add_u32 v{vT[1]}, s{sT}, v{vT[1]}")
    for dt in range(8):
        for q in range(2):
            A(f"ds_write_b128 v{vT[0]}, {vr(O(dt,q))} offset:{(dt*2+q)*1024}")
        if dt == 5: A("s_waitcnt lgkmcnt(8)")
    for q in range(2): A(f"ds_write_b32 v{vT[1]}, a{Lr(q)} offset:{q*256}")
    A(f"v_xor_b32 v{vT[0]}, 0x4000, v{vT[0]}")
    A(f"v_xor_b32 v{vT[1]}, 512, v{vT[1]}")
    A(f"v_accvgpr_read_b32 v{vNM[0]}, a{Lr(2)}")
    A(f"v_accvgpr_read_b32 v{vNM[2]}, a{Lr(3)}")
    A(f"v_mov_b32 v{vT[4]}, 0x5d800000")
    A("s_waitcnt lgkmcnt(0)\ns_barrier")
    for q in range(2): A.lds(f"ds_read_b32 v{vNMP[q]}, v{vT[1]} offset:{q*256}", "l")
    def rd(k):
        q, dt = k >> 3, k & 7
        A.lds(f"ds_read_b128 {vr(32 + k*4)}, v{vT[0]} offset:{(dt*2+q)*1024}", ("o", k))
    for k in range(12): rd(k)
    A.wait_lg("l")
    A(f"v_add_f32 v{vNM[0]}, v{vNM[0]}, v{vNMP[0]}")
    A(f"v_add_f32 v{vNM[2]}, v{vNM[2]}, v{vNMP[1]}")
    for k in range(16):
        q, dt = k >> 3, k & 7
        A.wait_lg([("o", k)])
        if k + 12 < 16: rd(k + 12)
        o = O(dt, 2+q)
        A(f"v_pk_add_f32 v[{o}:{o+1}], v[{o}:{o+1}], v[{32+k*4}:{33+k*4}]")
        A(f"v_pk_add_f32 v[{o+2}:{o+3}], v[{o+2}:{o+3}], v[{34+k*4}:{35+k*4}]")
    flush(A, 2, [vNM[0], vNM[2]], sCtxB, sBad+2, st_flags)
    A(f"s_or_b64 s[12:13], s[{sBad}:{sBad+1}], s[{sBad+2}:{sBad+3}]")
    A(f"s_cbranch_scc1 L_slow_{name}")
    A(f"L_fin_{name}:")
    if ST: stamp_end(A, stampk, sWS, sWv)
    A(f"L_end_{name}:\ns_endpgm")

WOA = 160
def pf_k3(A):
    A(f"s_lshl_b32 s{sT}, s2, 2\ns_add_u32 s{sT}, s{sT}, s{sWv}\ns_lshl_b32 s{sT}, s{sT}, 12")
    A("v_and_b32 v29, 15, v0\nv_lshlrev_b32 v29, 4, v29\nv_lshl_or_b32 v29, v22, 10, v29")
    A(f"s_mov_b32 s10, {4096*1024}\ns_mov_b32 s11, 0x20000")
    A("s_and_b32 s9, s9, 0xffff")
    for j in range(4): A(f"buffer_load_dwordx4 {ar(WOA+4*j)}, v29, s[8:11], s{sT} offen offset:{j*256}")
    A("v_bfe_u32 v30, v0, 3, 1\nv_and_b32 v31, 7, v0\nv_lshlrev_b32 v30, 19, v30\nv_lshl_or_b32 v30, v22, 7, v30\nv_lshl_or_b32 v30, v31, 4, v30")
    A(f"s_lshr_b32 s{sT}, s{sT}, 3")
    for j in range(4): A(f"s_add_u32 s{8+j}, s{sT}, {WS_WO + (j << 20)}")
def pf_wd(A):
    A(f"s_min_u32 s{sT}, s{sH}, 27\ns_lshl_b32 s{sT}, s{sT}, 3\ns_add_u32 s{sT}, s{sT}, s{sI}\ns_lshl_b32 s{sTmp}, s{sT}, 13\ns_add_u32 s{sTmp}, s{sTmp}, 4096")
    A(f"v_lshl_add_u32 v23, v0, 2, s{sTmp}\ns_lshl_b32 s{sTmp}, s{sWv}, 8\nv_add_u32 v23, s{sTmp}, v23")
    A(f"s_mul_i32 s{sTmp}, s{sWv}, {2048-256}\nv_mul_u32_u24 v20, 28, v0\nv_add3_u32 v20, v20, v23, s{sTmp}")
    A("global_load_dword v20, v20, s[12:13] offset:-4096")
    A("v_lshrrev_b32 v19, 5, v0\nv_and_b32 v18, 31, v0\nv_mul_u32_u24 v19, 57344, v19\nv_lshl_add_u32 v18, v18, 3, v19")
    A(f"v_add_u32 v19, {8*57344}, v18")
    A(f"s_mul_i32 s14, s{sWv}, {2*57344}\ns_lshl_b32 s{sT}, s{sT}, 8\ns_add_u32 s14, s14, s{sT}\ns_add_u32 s14, s14, {WS_Y}")
    A(f"s_lshl_b32 s16, s{sH}, 3\ns_add_u32 s16, s16, s{sI}\ns_lshl_b32 s16, s16, 10\ns_add_u32 s16, s16, {ffq.WS_PRE}")
    A(f"s_cmp_lt_u32 s{sH}, 28\ns_cselect_b32 s14, s14, {ffq.BIG}")
WDA = 176
def ffn2(A=None, extra=()):
    o = ["s_waitcnt vmcnt(12)" if not A else (lambda: (A.wait_vm("pre"), kf.early33(A)))] + ffq.act2_ops(24, 96, 104, 108, (8, 9, 10, 11))
    o.insert(next(k for k, x in enumerate(o) if "readlane" in str(x)), "s_waitcnt vmcnt(4)" if not A else (lambda: A.wait_vm("wd")))
    st = [f"buffer_store_dwordx2 v[{108+2*k}:{109+2*k}], v{18+k}, s[{sWS}:{sWS+3}], s14 offen sc1" for k in range(2)]
    o += st if not A else [(lambda x=x: kf.emit(A, [(x, "ys")])) for x in st]
    ex = {}
    for n, x in enumerate(extra): ex.setdefault(n * 36 // len(extra), []).append(lambda x=x: kf.emit(A, [x]))
    for n, x in enumerate(o): ex.setdefault(min(n * 36 // len(o), 35), []).append(x)
    return ex
def wo_st(fuse): return [(f"global_load_dword v{96+f}, v23, s[12:13] offset:{f*1024-4096}", 1) for f in range(8)] + \
    [(f"buffer_store_dwordx4 {ar(WOA+4*j)}, v30, s[{sWS}:{sWS+3}], s{8+j} offen sc1", 1) for j in range(0 if fuse else 4)]

if __name__ == "__main__":
    import sys, json, hazard, k4 as k3
    kw = json.loads(sys.argv[1])
    st = not kw.pop("nostamp", 0)
    k3kw = kw.pop("k3", {})
    if kw.get("fuse", 1):
        hdr = "; @launch grid=(256,1,1) block=(256,1,1) lds=163840\n"
        body = gen("KN", stampk=0 if st else None, **kw)
        full = "gated_mix__compressed_kv_cla__moe_arch_mod__prompt_kernel"
        import re
        body = re.sub(r"(?<![A-Za-z0-9_])KN\b", full, body)
    else:
        hdr = "; @launch kernel=fz_kernel grid=(256,1,1) block=(256,1,1) lds=163840\n" + k3.launch("k3_kernel")
        body = gen("fz_kernel", stampk=0 if st else None, **kw) + k3.gen_k3("k3_kernel", stampk=1 if st else None, **k3kw)
    out = hdr + '.amdgcn_target "amdgcn-amd-amdhsa--gfx950"\n.text\n' + body
    r = hazard.check(out)
    for x in r[:int(sys.argv[3]) if len(sys.argv) > 3 else 0]: print(x)
    out, n = hazard.fix(out)
    open(sys.argv[2], "w").write(out)
    print(len(r), "hazards", n, "nops inserted", len(hazard.check(out)), "left", len(out), "bytes")
    import subprocess
    rr = subprocess.run(["clang", "-x", "assembler", "-target", "amdgcn-amd-amdhsa", "-mcpu=gfx950", "-c", sys.argv[2], "-o", "chk.o"], capture_output=True, text=True)
    assert not rr.returncode, rr.stderr[:600]
    sym = {}
    for ln in subprocess.run(["readelf", "-sW", "chk.o"], capture_output=True, text=True).stdout.split("\n"):
        p = ln.split()
        if len(p) == 8 and p[7].startswith("L_"): sym[p[7]] = int(p[1], 16)
    if kw.get("fuse", 1):
        print("code bytes", sym["L_last_KN"], "tail", sym["L_end_KN"] - sym["L_pc2_KN"], sym["L_last_KN"] - sym["L_pc2_KN"])
```
